```python
import torch

def _softmax(x, axis=-1):
    return torch.softmax(x, dim=axis)
def _gelu(x):
    return torch.nn.functional.gelu(x, approximate="tanh")
def _silu(x):
    return torch.nn.functional.silu(x)
def _sigmoid(x):
    return torch.sigmoid(x)
def _layernorm(x, axis=-1, eps=1e-5):
    m = x.mean(dim=axis, keepdim=True)
    v = x.var(dim=axis, keepdim=True, unbiased=False)
    return (x - m) / torch.sqrt(v + eps)
def _scatter_add(tgt, idx, src, axis=0):
    return tgt.clone().index_add_(axis, idx, src)
def _segment_sum(src, seg, n):
    out = torch.zeros((n,) + src.shape[1:], dtype=src.dtype)
    return out.index_add_(0, seg, src)
def _pad(x, pw):
    flat = tuple(v for pair in reversed(pw) for v in pair)
    return torch.nn.functional.pad(x, flat)

kernel_name = 'recurrent_scan__ssm_conv_s4d__mixer_channel_mlp__prompt'

def setup_inputs():

    _w = (lambda a: (lambda t: t.to(torch.bfloat16) if t.is_floating_point() else t)(torch.as_tensor(a)))
    def _A_setup():
        Bsz, L, D, N = 1, 2048, 448, 256
        return {
            "u": _w((lambda *s: torch.randn(*s, dtype=torch.bfloat16) * 0.05)(Bsz, L, D)),
            "log_A_real": _w((lambda *s: torch.randn(*s, dtype=torch.bfloat16) * 3.2)(D, N) * 0.5),
            "A_imag": _w((lambda *s: torch.randn(*s, dtype=torch.bfloat16) * 0.2)(D, N) * 3.14),
            "C_real": _w((lambda *s: torch.randn(*s, dtype=torch.bfloat16) * 0.8)(D, N) / N ** 0.5),
            "C_imag": _w((lambda *s: torch.randn(*s, dtype=torch.bfloat16) * 0.8)(D, N) / N ** 0.5),
            "log_dt": _w((lambda *s: torch.randn(*s, dtype=torch.bfloat16) * 0.2)(D) * 0.5 - 4.0),
            "D_skip": _w((lambda *s: torch.randn(*s, dtype=torch.bfloat16) * 0.2)(D)),
        }
    _A_in = _A_setup()

    def _B_setup():
        B, S, D, F = 1, 2048, 448, 1792
        return {
            "x": _w((lambda *s: torch.randn(*s, dtype=torch.bfloat16) * 0.05)(B, S, D)),
            "w1": _w((lambda *s: torch.randn(*s, dtype=torch.bfloat16) * 1.6)(D, F) * (D ** -0.5)),
            "b1": _w((lambda *s: torch.randn(*s, dtype=torch.bfloat16) * 0.8)(F)),
            "w2": _w((lambda *s: torch.randn(*s, dtype=torch.bfloat16) * 0.1)(F, D) * (F ** -0.5)),
            "b2": _w((lambda *s: torch.randn(*s, dtype=torch.bfloat16) * 0.1)(D)),
        }
    _B_in = _B_setup()

    return {
        "A_u": _A_in["u"],
        "A_log_A_real": _A_in["log_A_real"],
        "A_A_imag": _A_in["A_imag"],
        "A_C_real": _A_in["C_real"],
        "A_C_imag": _A_in["C_imag"],
        "A_log_dt": _A_in["log_dt"],
        "A_D_skip": _A_in["D_skip"],
        "B_x": _B_in["x"],
        "B_w1": _B_in["w1"],
        "B_b1": _B_in["b1"],
        "B_w2": _B_in["w2"],
        "B_b2": _B_in["b2"],
    }

def reference(A_u, A_log_A_real, A_A_imag, A_C_real, A_C_imag, A_log_dt, A_D_skip, B_x, B_w1, B_b1, B_w2, B_b2):
    def _A_ref(u, log_A_real, A_imag, C_real, C_imag, log_dt, D_skip):
        L = u.shape[1]
        dt = torch.exp(log_dt)
        A = -torch.exp(log_A_real) + 1j * A_imag
        C = (C_real + 1j * C_imag) * dt[:, None]
        pos = (lambda x, dt: x.to(dt))(torch.arange(L), log_dt.dtype)
        P = torch.exp((A * dt[:, None])[:, :, None] * pos[None, None, :])
        K = 2.0 * torch.einsum("dn,dnl->dl", C, P).real
        L2 = 2 * L
        u_t = (lambda x, *d: x.permute(*d))(u, 0, 2, 1)
        Kf = (lambda x, *a, **k: torch.fft.rfft(x.float(), *a, **k))(K, L2)
        Uf = (lambda x, *a, **k: torch.fft.rfft(x.float(), *a, **k))(u_t, L2)
        y = (lambda x, *a, **k: torch.fft.irfft(x, *a, **k).to(torch.bfloat16))(Uf * Kf[None, :, :], L2)[:, :, :L]
        y = (lambda x, *d: x.permute(*d))(y, 0, 2, 1)
        return y + u * D_skip[None, None, :]

    def _B_ref(x, w1, b1, w2, b2):
        y = _layernorm(x, axis=-1)
        h = _gelu(torch.einsum("bsd,df->bsf", y, w1) + b1)
        return torch.einsum("bsf,fd->bsd", h, w2) + b2

    x = A_u
    xn = _layernorm(x, axis=-1)
    s = _A_ref(xn, A_log_A_real, A_A_imag, A_C_real, A_C_imag, A_log_dt, A_D_skip)
    g = _silu(_B_ref(xn, B_w1, B_b1, B_w2, B_b2))
    return x + s * g
```

```python
import re

TRANS = ("v_exp_f32", "v_log_f32", "v_rcp_f32", "v_rsq_f32", "v_sqrt_f32", "v_sin_f32", "v_cos_f32")

def _expand(tok):
    tok = tok.strip()
    neg = tok.lstrip("-|").rstrip("|")
    m = re.fullmatch(r"([vsa])(\d+)", neg)
    if m: return [(m.group(1), int(m.group(2)))]
    m = re.fullmatch(r"([vsa])\[(\d+):(\d+)\]", neg)
    if m: return [(m.group(1), i) for i in range(int(m.group(2)), int(m.group(3)) + 1)]
    if neg == "vcc": return [("s", 106), ("s", 107)]
    if neg == "vcc_lo": return [("s", 106)]
    if neg == "vcc_hi": return [("s", 107)]
    if neg == "exec": return [("x", 0), ("x", 1)]
    if neg == "exec_lo": return [("x", 0)]
    if neg == "exec_hi": return [("x", 1)]
    if neg == "m0": return [("m", 0)]
    if neg == "scc": return [("c", 0)]
    return []

class Ins:
    __slots__ = ("text", "op", "dst", "src", "srcC", "kind", "passes", "dpp", "label", "target", "nops", "stdata", "ldsdma", "comment")
    def __init__(self, text):
        self.text = text; self.op = None; self.dst = set(); self.src = set(); self.srcC = set()
        self.kind = None; self.passes = 0; self.dpp = False; self.label = None; self.target = None
        self.nops = 0; self.stdata = set(); self.ldsdma = False

def parse(text):
    I = Ins(text)
    t = text.split(";")[0].strip()
    if not t: I.kind = "none"; return I
    if t.endswith(":"):
        I.kind = "label"; I.label = t[:-1]; return I
    if t.startswith("."):
        I.kind = "none"; return I
    parts = t.split(None, 1)
    op = parts[0]; I.op = op
    rest = parts[1] if len(parts) > 1 else ""
    ops = []; depth = 0; cur = ""
    for ch in rest:
        if ch == "[": depth += 1
        if ch == "]": depth -= 1
        if ch == "," and depth == 0: ops.append(cur.strip()); cur = ""
        else: cur += ch
    if cur.strip(): ops.append(cur.strip())
    mods = ""
    if ops:
        last = ops[-1].split(None, 1)
        ops[-1] = last[0]
        mods = last[1] if len(last) > 1 else ""
    regs = [_expand(o) for o in ops]
    base = op.replace("_e32", "").replace("_e64", "").replace("_dpp", "").replace("_sdwa", "")
    if op.startswith("v_mfma"):
        I.kind = "mfma"; I.passes = 8 if "32x32" in op else 4
        I.dst = set(regs[0]); I.src = set(regs[1]) | set(regs[2]); I.srcC = set(regs[3])
    elif op.startswith("v_"):
        I.kind = "valu"
        I.dpp = ("quad_perm" in mods or "row_" in mods or "_dpp" in op or "wave_" in mods)
        if base.startswith("v_cmpx"):
            I.dst = {("x", 0), ("x", 1)}
            for r in regs[(1 if len(regs) == 3 else 0):]: I.src |= set(r)
        elif base.startswith("v_cmp"):
            I.dst = set(regs[0])
            for r in regs[1:]: I.src |= set(r)
        elif base in ("v_add_co_u32", "v_sub_co_u32", "v_addc_co_u32", "v_subb_co_u32", "v_subrev_co_u32"):
            I.dst = set(regs[0]) | set(regs[1])
            for r in regs[2:]: I.src |= set(r)
        elif base.startswith("v_permlane") and "swap" in base:
            I.dst = set(regs[0]) | set(regs[1]); I.src = set(regs[0]) | set(regs[1])
        elif base in ("v_nop",):
            pass
        else:
            I.dst = set(regs[0])
            for r in regs[1:]: I.src |= set(r)
            if base in ("v_fmac_f32", "v_pk_fmac_f16") or base.startswith("v_dot2c") or base.startswith("v_dot4c"):
                I.src |= set(regs[0])
            if base == "v_cndmask_b32" and len(regs) == 3: I.src |= {("s", 106), ("s", 107)}
            if I.dpp: I.src |= set(regs[0])
            if base == "v_writelane_b32": I.src |= set(regs[0])
    elif op.startswith("ds_"):
        I.kind = "ds"
        if "read" in op or "permute" in op or "swizzle" in op or "_rtn" in op:
            I.dst = set(regs[0])
            for r in regs[1:]: I.src |= set(r)
            if "d16" in op: I.src |= set(regs[0])
        else:
            for r in regs: I.src |= set(r)
    elif op.startswith("buffer_") or op.startswith("global_"):
        I.kind = "vmem"
        allm = mods + " " + rest
        if re.search(r"\blds\b", allm) and "load" in op:
            I.ldsdma = True
            for r in regs: I.src |= set(r)
            I.src |= {("m", 0)}
        elif "load" in op:
            I.dst = set(regs[0])
            for r in regs[1:]: I.src |= set(r)
            if "d16" in op: I.src |= set(regs[0])
        elif "store" in op:
            for r in regs: I.src |= set(r)
            if op.endswith("x4") or op.endswith("x3"):
                I.stdata = set(regs[0]) if op.startswith("buffer_") else set(regs[1])
        elif "atomic" in op:
            for r in regs: I.src |= set(r)
            if re.search(r"\bsc0\b", allm): I.dst = set(regs[0])
        else:
            pass
    elif op.startswith("s_"):
        if op in ("s_branch",) or op.startswith("s_cbranch"):
            I.kind = "branch"; I.target = ops[0]
        elif op in ("s_endpgm",):
            I.kind = "end"
        elif op == "s_nop":
            I.kind = "nop"; I.nops = int(ops[0], 0) + 1
        elif op in ("s_waitcnt", "s_barrier", "s_sleep", "s_setprio"):
            I.kind = "sopp"
        elif op.startswith("s_load") or op.startswith("s_memtime") or op.startswith("s_memrealtime") or op.startswith("s_buffer_load"):
            I.kind = "smem"; I.dst = set(regs[0])
            for r in regs[1:]: I.src |= set(r)
        elif op.startswith("s_cmp") or op.startswith("s_bitcmp"):
            I.kind = "salu"
            for r in regs: I.src |= set(r)
        else:
            I.kind = "salu"; I.dst = set(regs[0])
            for r in regs[1:]: I.src |= set(r)
            if "saveexec" in op: I.dst |= {("x", 0), ("x", 1)}
    else:
        raise ValueError("unknown instruction: " + text)
    return I

def is_dot(I): return I.kind == "valu" and I.op.startswith("v_dot")
def is_trans(I): return I.kind == "valu" and any(I.op.startswith(t) for t in TRANS)
def vset(s): return {r for r in s if r[0] in "va"}
def sset(s): return {r for r in s if r[0] == "s"}

def need(P, C):
    n = 0
    if P.kind == "valu":
        pv = vset(P.dst); ps = sset(P.dst); px = any(r[0] == "x" for r in P.dst)
        if C.kind == "mfma":
            if pv & (vset(C.src) | vset(C.srcC)): n = max(n, 2)
            if px: n = max(n, 4)
        if C.kind == "valu":
            if C.dpp and pv & vset(C.src): n = max(n, 2)
            if C.dpp and px: n = max(n, 5)
            if ps & sset(C.src):
                n = max(n, 2)
                if C.op.startswith("v_readlane") or C.op.startswith("v_writelane"): n = max(n, 4)
            if C.op.startswith("v_read") and "lane" in C.op and pv & vset(C.src): n = max(n, 1)
            if C.op.startswith("v_read") and "lane" in C.op and px: n = max(n, 4)
            if C.op.startswith("v_permlane"):
                if pv & vset(C.src): n = max(n, 2)
                if px: n = max(n, 4)
            if is_trans(P) and not is_trans(C) and pv & (vset(C.src)): n = max(n, 1)
            if is_trans(P) and is_trans(C) and pv & (vset(C.src)): n = max(n, 1)
            if px and any(r[0] == "x" for r in C.src): n = max(n, 2)
            if is_dot(P):
                if pv & (vset(C.src) | vset(C.dst)):
                    same = (C.op == P.op)
                    others = set()
                    if same:
                        t = C.text.split(";")[0]
                        opsx = t.split(None, 1)[1].split(",")
                        for o in opsx[1:]: others |= set(_expand(o.split()[0] if o.split() else ""))
                        if pv & vset(others): n = max(n, 3)
                    else: n = max(n, 3)
            if "op_sel" in P.text and not P.op.startswith("v_pk_") and pv & vset(C.src): n = max(n, 1)
            if "sdwa" in P.text and pv & vset(C.src): n = max(n, 1)
        if C.kind == "vmem" and ps & sset(C.src): n = max(n, 5)
        if is_dot(P) and C.kind in ("vmem", "ds", "mfma") and pv & (vset(C.src) | vset(C.srcC)): n = max(n, 3)
    if P.kind == "salu":
        if ("m", 0) in P.dst and (C.ldsdma): n = max(n, 1)
    if P.kind == "vmem" and P.stdata:
        if C.kind == "valu" and P.stdata & vset(C.dst): n = max(n, 2)
        elif P.stdata & vset(C.dst): n = max(n, 1)
    if P.kind == "mfma":
        d = vset(P.dst)
        big = 12 if P.passes == 8 else 8
        if C.kind == "mfma":
            if d & vset(C.src): n = max(n, big)
            cc = vset(C.srcC)
            if d & cc:
                if not (cc == d and C.passes == P.passes): n = max(n, 10 if P.passes == 8 else 6)
            elif d & vset(C.dst):
                n = max(n, big)
        elif C.kind == "valu":
            if d & (vset(C.src) | vset(C.dst)): n = max(n, big)
            if vset(P.srcC) & vset(C.dst): n = max(n, 7 if P.passes == 8 else 3)
        elif C.kind in ("vmem", "ds"):
            if d & (vset(C.src) | vset(C.dst)): n = max(n, big)
            if vset(P.srcC) & vset(C.dst): n = max(n, 7 if P.passes == 8 else 3)
    return n

MAXW = 12

class Asm:
    def __init__(self):
        self.lines = []
        self.uid = 0
    def __call__(self, text):
        for l in text.split("\n"):
            l = l.strip()
            if l: self.lines.append(l)
    def label(self, name): self.lines.append(name + ":")
    def newlabel(self, p="L"):
        self.uid += 1
        return f"{p}_{self.uid}"
    def finish(self):
        ins = [parse(l) for l in self.lines]
        changed = True
        it = 0
        while changed:
            changed = False; it += 1
            labels = {I.label: i for i, I in enumerate(ins) if I.kind == "label"}
            preds_branch = {}
            for i, I in enumerate(ins):
                if I.kind == "branch": preds_branch.setdefault(I.target, []).append(i)
            out = []
            for i, C in enumerate(ins):
                if C.kind in ("valu", "mfma", "vmem", "ds"):
                    deficit = 0
                    stack = [(i - 1, 0)]; seen = {}
                    while stack:
                        j, w = stack.pop()
                        while j >= 0 and w < MAXW:
                            if seen.get(j, 99) <= w: break
                            seen[j] = w
                            P = ins[j]
                            if P.kind == "label":
                                for b in preds_branch.get(P.label, []): stack.append((b, w))
                                j -= 1; continue
                            if P.kind == "none": j -= 1; continue
                            if P.kind == "end": break
                            if P.kind == "branch" and P.op == "s_branch" and j == i - 1 - 0 and False: break
                            if P.kind == "branch" and P.op == "s_branch":
                                if (j + 1 <= i) and seen.get(("via", j)) is None and (j, w) not in getattr(self, "_x", set()):
                                    pass
                            r = need(P, C)
                            if r > w: deficit = max(deficit, r - w)
                            w += P.nops if P.kind == "nop" else 1
                            j -= 1
                    if deficit > 0:
                        k = deficit
                        while k > 0:
                            m = min(k, 16)
                            out.append(parse(f"s_nop {m-1}"))
                            k -= m
                        changed = True
                out.append(C)
            ins = out
            assert it < 50
        return "\n".join(("" if I.kind == "label" else "    ") + I.text for I in ins)

def vr(b, n=1): return f"v{b}" if n == 1 else f"v[{b}:{b+n-1}]"
def sr(b, n=1): return f"s{b}" if n == 1 else f"s[{b}:{b+n-1}]"

class VAlloc:
    def __init__(self, start=0, limit=256, kind="v"):
        self.next = start; self.limit = limit; self.hi = start; self.kind = kind
        self.names = {}
    def get(self, n=1, align=None, name=None):
        if align is None: align = 1 if n == 1 else 2
        b = (self.next + align - 1) // align * align
        self.next = b + n
        assert self.next <= self.limit, f"out of registers ({name})"
        self.hi = max(self.hi, self.next)
        return b
    def mark(self): return self.next
    def release(self, m): self.next = m
```

```python
from asm import Asm, VAlloc, vr, sr
KN = "recurrent_scan__ssm_conv_s4d__mixer_channel_mlp__prompt"
KA = dict(x=0, lar=8, aim=16, cre=24, cim=32, ldt=40, dsk=48, w1=64, b1=72, w2=80, b2=88, out=96, dbg=104, ws=112)
L, D, N, F = 2048, 448, 256, 1792
XNT_PITCH = 4224
WS_XNT = 0
WS_STAT = 0x1D0000
WS_FLAG = 0x1E0000
FL_LN = WS_FLAG
FL_H = WS_FLAG + 0x400
FL_S = WS_FLAG + 0x800
WS_W2F = 0x200000
WS_ST = 0x400000
WS_HF = 0x600000
WS_SIZE = 0xD00000
SRD3 = 0x00020000
X_BYTES = L * D * 2
W_BYTES = D * F * 2

def f32bits(x):
    import struct
    return struct.unpack("<I", struct.pack("<f", x))[0]
def fl(x): return "0x%08x" % f32bits(x)

def srd(a, s, ka, nbytes):
    a(f"s_load_dwordx2 s[{s}:{s+1}], s[0:1], {ka}")
def srd_fin(a, s, nbytes):
    a(f"s_mov_b32 s{s+2}, {nbytes}")
    a(f"s_mov_b32 s{s+3}, 0x{SRD3:08x}")

def bf16r(a, dst, src, tmp=None):
    a(f"v_cvt_pk_bf16_f32 v{dst}, v{src}, v{src}")
    a(f"v_and_b32 v{dst}, 0xffff0000, v{dst}")

def kernel_text(name, body, vgpr=256, sgpr=102):
    return f""".globl {name}
.p2align 8
.type {name},@function
{name}:
{body}
"""
def kernel_desc(name, vgpr=256, sgpr=96):
    acc = min(256, (vgpr + 3) // 4 * 4)
    return f""".amdhsa_kernel {name}
  .amdhsa_next_free_vgpr {vgpr}
  .amdhsa_next_free_sgpr {sgpr}
  .amdhsa_accum_offset {acc}
  .amdhsa_group_segment_fixed_size 0
  .amdhsa_kernarg_size 120
  .amdhsa_user_sgpr_count 2
  .amdhsa_user_sgpr_kernarg_segment_ptr 1
  .amdhsa_system_sgpr_workgroup_id_x 1
.end_amdhsa_kernel
"""
HEADER = open("cdna_kernels/" + KN + ".s.ref").read().split("; Override launch geometry")[0]
```

```python
from common import *
from track import Cnt, both

import os
DBG = os.environ.get('G2DBG', '')
NA = 10
NB = 8
RING = 10
WREG = 20480

def gen_g2(a, S, hooks=None, vbase=1, standalone=False):
    hooks = hooks or {}
    SX, SW2, SWS, SOUT, SB2 = S["X"], S["W2"], S["WS"], S["OUT"], S["B2"]
    sW, sK, sJ7, sJm = S["W"], S["K"], S["J7"], S["JM"]
    sT0, sT1, sT2, sT3 = S["T0"], S["T1"], S["T2"], S["T3"]
    sWB, sRB, sLB2, sBO = S["G2A"], S["G2B"], S["G2C"], S["G2D"]
    V = VAlloc(vbase)
    vm = Cnt(a, "vmcnt", 63); lg = Cnt(a, "lgkmcnt", 15)
    vlane = V.get(); vt = V.get(); vt2 = V.get(); vt3 = V.get()
    a(f"v_and_b32 v{vlane}, 63, v0")
    a(f"s_lshl_b32 s{sLB2}, s{sK}, 2")
    a(f"s_add_u32 s{sLB2}, s{sLB2}, s{sJ7}")
    vwo = V.get()
    a(f"v_lshrrev_b32 v{vt}, 3, v{vlane}")
    a(f"v_mul_u32_u24 v{vwo}, 896, v{vt}")
    a(f"v_and_b32 v{vt2}, 7, v{vlane}")
    a(f"v_bfe_u32 v{vt3}, v{vlane}, 4, 1")
    a(f"v_lshlrev_b32 v{vt3}, 2, v{vt3}")
    a(f"v_xor_b32 v{vt2}, v{vt2}, v{vt3}")
    a(f"v_lshl_add_u32 v{vwo}, v{vt2}, 4, v{vwo}")
    a(f"s_mul_i32 s{sWB}, s{sW}, {448*896}")
    a(f"s_lshl_b32 s{sT0}, s{sJm}, 7")
    a(f"s_add_u32 s{sWB}, s{sWB}, s{sT0}")
    a(f"s_mul_i32 s{sRB}, s{sW}, {WREG}")
    def dma(k):
        slot = k % RING
        for half in range(2):
            a(f"s_add_u32 m0, s{sRB}, {slot*2048 + half*1024}")
            a(f"s_add_u32 s{sT0}, s{sWB}, {(16*k + 8*half)*896}")
            vm.issue(f"buffer_load_dwordx4 v{vwo}, s[{SW2}:{SW2+3}], s{sT0} offen lds", ("D", k))
    if "pre_dma" in hooks: hooks["pre_dma"](a, V, vm, lg)
    for k in range(RING): dma(k)
    vg = V.get(); vc = V.get(); vi = V.get()
    a(f"v_lshrrev_b32 v{vg}, 4, v{vlane}")
    a(f"v_bfe_u32 v{vc}, v{vlane}, 2, 2")
    a(f"v_and_b32 v{vi}, 3, v{vlane}")
    vxo = V.get()
    a(f"v_lshl_add_u32 v{vt}, v{vg}, 2, v{vi}")
    a(f"v_mul_u32_u24 v{vxo}, 896, v{vt}")
    a(f"v_lshl_add_u32 v{vxo}, v{vc}, 4, v{vxo}")
    sXO = sT3
    a(f"s_lshl_b32 s{sXO}, s{sLB2}, 2")
    a(f"s_add_u32 s{sXO}, s{sXO}, s{sW}")
    a(f"s_mul_i32 s{sXO}, s{sXO}, {16*896}")
    a(f"s_lshl_b32 s{sT0}, s{sJm}, 7")
    a(f"s_add_u32 s{sXO}, s{sXO}, s{sT0}")
    XR = V.get(8, 4); BR = V.get(8, 4)
    vb2 = V.get()
    a(f"v_lshlrev_b32 v{vb2}, 4, v{vc}")
    vm.issue(f"buffer_load_dwordx4 v[{XR}:{XR+3}], v{vxo}, s[{SX}:{SX+3}], s{sXO} offen", "X")
    vm.issue(f"buffer_load_dwordx4 v[{XR+4}:{XR+7}], v{vxo}, s[{SX}:{SX+3}], s{sXO} offen offset:64", "X")
    vm.issue(f"buffer_load_dwordx4 v[{BR}:{BR+3}], v{vb2}, s[{SB2}:{SB2+3}], s{sT0} offen", "X")
    vm.issue(f"buffer_load_dwordx4 v[{BR+4}:{BR+7}], v{vb2}, s[{SB2}:{SB2+3}], s{sT0} offen offset:64", "X")
    vA = [V.get(), V.get()]
    vhh = V.get(); vr = V.get()
    a(f"v_lshrrev_b32 v{vhh}, 5, v{vlane}")
    a(f"v_lshl_add_u32 v{vt}, v{vhh}, 2, v{vc}")
    a(f"v_lshlrev_b32 v{vt}, 7, v{vt}")
    a(f"v_bfe_u32 v{vt2}, v{vlane}, 3, 1")
    a(f"v_lshl_add_u32 v{vt}, v{vt2}, 6, v{vt}")
    a(f"v_bfe_u32 v{vt2}, v{vlane}, 4, 1")
    a(f"v_lshl_add_u32 v{vt}, v{vt2}, 5, v{vt}")
    a(f"v_lshl_add_u32 v{vt}, v{vi}, 3, v{vt}")
    a(f"v_add_u32 v{vA[0]}, s{sRB}, v{vt}")
    a(f"v_xor_b32 v{vA[1]}, 64, v{vA[0]}")
    acc = [[V.get(16, 4) for lt in range(2)] for dt in range(2)]
    AF = [V.get(8, 4) for _ in range(NA)]
    BF = [V.get(8, 4) for _ in range(NB)]
    def trread(k):
        slot = k % RING; b = AF[k % NA]
        for dt in range(2):
            lg.issue(f"ds_read_b64_tr_b16 v[{b+4*dt}:{b+4*dt+1}], v{vA[dt]} offset:{slot*2048}", ("A", k))
            lg.issue(f"ds_read_b64_tr_b16 v[{b+4*dt+2}:{b+4*dt+3}], v{vA[dt]} offset:{slot*2048+1024}", ("A", k))
    for dt in range(2):
        for lt in range(2):
            for i in range(16): a(f"v_mov_b32 v{acc[dt][lt]+i}, 0")
    for k in range(NA):
        vm.wait(("D", k))
        trread(k)
    lg.waitall()
    for k in range(RING, 2*RING): dma(k)
    vB = [V.get(), V.get()]
    a(f"v_lshlrev_b32 v{vt}, 4, v{vlane}")
    a(f"s_lshl_b32 s{sT0}, s{sLB2}, 1")
    a(f"s_mul_i32 s{sT0}, s{sT0}, {112*1024}")
    a(f"s_mul_i32 s{sT1}, s{sW}, {28*1024}")
    a(f"s_add_u32 s{sT0}, s{sT0}, s{sT1}")
    a(f"s_add_u32 s{sT0}, s{sT0}, {WS_HF}")
    a(f"v_add_u32 v{vB[0]}, s{sT0}, v{vt}")
    a(f"v_add_u32 v{vB[1]}, {112*1024}, v{vB[0]}")
    if "wait_h" in hooks: hooks["wait_h"](a, V, vm, lg)
    cur_bo = [None]
    def bload(k):
        blk = k // 4
        if cur_bo[0] != blk:
            a(f"s_mov_b32 s{sBO}, {blk*4096}"); cur_bo[0] = blk
        b = BF[k % NB]
        for lt in range(2):
            vm.issue(f"buffer_load_dwordx4 v[{b+4*lt}:{b+4*lt+3}], v{vB[lt]}, s[{SWS}:{SWS+3}], s{sBO} offen offset:{(k%4)*1024} sc1", ("B", k))
    for k in range(NB): bload(k)
    for k in range(28):
        both(a, vm, lg, [("B", k)], [("A", k)])
        A = AF[k % NA]; B = BF[k % NB]
        mm = []
        for dt in range(2):
            for lt in range(2):
                C = acc[dt][lt]
                mm.append(f"v_mfma_f32_32x32x16_bf16 v[{C}:{C+15}], v[{A+4*dt}:{A+4*dt+3}], v[{B+4*lt}:{B+4*lt+3}], v[{C}:{C+15}]")
        for m in mm: a(m)
        if k + NB < 28: bload(k + NB)
        if k + NA < 28:
            vm.wait(("D", k + NA))
            trread(k + NA)
        kd = k - 1 + 2*RING
        if k >= 1 and kd < 28 and kd >= 2*RING:
            lg.wait(("A", kd - RING))
            dma(kd)
        if "step" in hooks: hooks["step"](a, V, vm, lg, k)
    if "wait_s" in hooks: hooks["wait_s"](a, V, vm, lg)
    vso = V.get(); vso2 = V.get()
    a(f"v_lshrrev_b32 v{vt}, 3, v{vlane}")
    a(f"v_lshlrev_b32 v{vso}, 12, v{vt}")
    a(f"s_and_b32 s{sT0}, s{sW}, 1")
    a(f"s_lshl_b32 s{sT0}, s{sT0}, 2")
    a(f"v_bfe_u32 v{vt2}, v{vlane}, 4, 1")
    a(f"v_or_b32 v{vt2}, s{sT0}, v{vt2}")
    a(f"v_and_b32 v{vt3}, 7, v{vlane}")
    a(f"v_xor_b32 v{vt2}, v{vt2}, v{vt3}")
    a(f"v_lshl_add_u32 v{vso}, v{vt2}, 4, v{vso}")
    a(f"v_xor_b32 v{vso2}, 32, v{vso}")
    a(f"s_lshl_b32 s{sT0}, s{sJm}, 2")
    a(f"s_add_u32 s{sT0}, s{sT0}, s{sW}")
    a(f"s_lshl_b32 s{sT0}, s{sT0}, 16")
    a(f"s_lshl_b32 s{sT1}, s{sLB2}, 7")
    a(f"s_add_u32 s{sT0}, s{sT0}, s{sT1}")
    a(f"s_add_u32 s{sT0}, s{sT0}, {WS_ST}")
    a(f"s_add_u32 s{sT1}, s{sT0}, {8*4096}")
    lg.waitall()
    a(f"s_add_u32 m0, s{sRB}, 16384")
    vm.issue(f"buffer_load_dwordx4 v{vso}, s[{SWS}:{SWS+3}], s{sT0} offen sc1 lds", "S")
    a(f"s_add_u32 m0, s{sRB}, {16384+1024}")
    vm.issue(f"buffer_load_dwordx4 v{vso2}, s[{SWS}:{SWS+3}], s{sT1} offen sc1 lds", "S")
    vn = AF[0]; vm_ = AF[0] + 1; vpw = AF[0] + 2
    a(f"v_and_b32 v{vn}, 31, v{vlane}")
    def mfun(dst, src, tmp):
        a(f"v_and_b32 v{dst}, 1, v{src}")
        a(f"v_and_b32 v{tmp}, 2, v{src}")
        a(f"v_lshl_or_b32 v{dst}, v{tmp}, 2, v{dst}")
        a(f"v_bfe_u32 v{tmp}, v{src}, 2, 2")
        a(f"v_lshl_or_b32 v{dst}, v{tmp}, 1, v{dst}")
    mfun(vm_, vn, vt)
    a(f"v_xor_b32 v{vm_}, v{vm_}, v{vhh}")
    a(f"v_lshlrev_b32 v{vm_}, 4, v{vm_}")
    a(f"v_lshl_add_u32 v{vpw}, v{vn}, 8, v{vm_}")
    a(f"v_add_u32 v{vpw}, s{sRB}, v{vpw}")
    PA = [AF[1] + i for i in range(8)]
    for c in range(8):
        a(f"v_xor_b32 v{PA[c]}, {32*c}, v{vpw}")
    for dt in range(2):
        for q in range(4):
            for lt in range(2):
                C = acc[dt][lt] + 4*q
                lg.issue(f"ds_write_b128 v{PA[4*dt+q]}, v[{C}:{C+3}] offset:{8192*lt}", "P")
    vl = AF[2]; vmr = AF[2] + 1; vpr = AF[2] + 2
    a(f"v_lshl_add_u32 v{vl}, v{vg}, 2, v{vi}")
    mfun(vmr, vl, vt)
    a(f"v_lshlrev_b32 v{vt}, 1, v{vc}")
    a(f"v_xor_b32 v{vmr}, v{vmr}, v{vt}")
    a(f"v_lshlrev_b32 v{vmr}, 4, v{vmr}")
    a(f"s_lshl_b32 s{sT0}, s{sW}, 12")
    a(f"v_lshl_add_u32 v{vpr}, v{vl}, 8, s{sT0}")
    a(f"v_add_u32 v{vpr}, v{vpr}, v{vmr}")
    PR = [AF[3] + i for i in range(4)]
    for t in range(4):
        tc = (t & 1) + 8 * (t >> 1)
        a(f"v_xor_b32 v{PR[t]}, {16*tc}, v{vpr}")
    vsr = AF[4]
    a(f"v_lshrrev_b32 v{vt}, 1, v{vi}")
    a(f"v_mul_u32_u24 v{vsr}, {WREG}, v{vt}")
    a(f"v_and_b32 v{vt}, 1, v{vi}")
    a(f"v_lshl_add_u32 v{vt}, v{vt}, 3, v{vc}")
    a(f"v_lshl_add_u32 v{vsr}, v{vt}, 7, v{vsr}")
    a(f"v_lshrrev_b32 v{vt}, 1, v{vg}")
    a(f"s_lshl_b32 s{sT0}, s{sW}, 1")
    a(f"v_add_u32 v{vt}, s{sT0}, v{vt}")
    a(f"v_lshrrev_b32 v{vt2}, 1, v{vc}")
    a(f"v_lshl_add_u32 v{vt2}, v{vi}, 1, v{vt2}")
    a(f"v_xor_b32 v{vt}, v{vt}, v{vt2}")
    a(f"v_and_b32 v{vt}, 7, v{vt}")
    a(f"v_lshl_add_u32 v{vsr}, v{vt}, 4, v{vsr}")
    a(f"v_and_b32 v{vt}, 1, v{vg}")
    a(f"v_lshl_add_u32 v{vsr}, v{vt}, 3, v{vsr}")
    a(f"v_add_u32 v{vsr}, 16384, v{vsr}")
    a("s_waitcnt vmcnt(0) lgkmcnt(0)"); vm.cleared(); lg.cleared()
    a("s_barrier")
    P = [[acc[src >> 1][src & 1] + 4*t for t in range(4)] for src in range(4)]
    SR = BF[0]
    for t in range(4):
        lg.issue(f"ds_read_b64_tr_b16 v[{SR+2*t}:{SR+2*t+1}], v{vsr} offset:{(t&1)*512 + (t>>1)*2*WREG}", "SR")
    for t in range(4):
        for src in range(4):
            lg.issue(f"ds_read_b128 v[{P[src][t]}:{P[src][t]+3}], v{PR[t]} offset:{src*WREG}", ("P", t))
    BU = AF[5]
    XU = AF[7]
    SU = BF[1]
    assert AF[6] == AF[5] + 8 and AF[8] == AF[7] + 8 and BF[2] == BF[1] + 8
    for i in range(8):
        a(f"v_lshlrev_b32 v{BU+2*i}, 16, v{BR+i}")
        a(f"v_and_b32 v{BU+2*i+1}, 0xffff0000, v{BR+i}")
    for i in range(8):
        a(f"v_lshlrev_b32 v{XU+2*i}, 16, v{XR+i}")
        a(f"v_and_b32 v{XU+2*i+1}, 0xffff0000, v{XR+i}")
    lg.wait("SR")
    for i in range(8):
        a(f"v_lshlrev_b32 v{SU+2*i}, 16, v{SR+i}")
        a(f"v_and_b32 v{SU+2*i+1}, 0xffff0000, v{SR+i}")
    CN = BF[3]
    a(f"v_mov_b32 v{CN}, {fl(-1.4426950408889634)}")
    a(f"v_mov_b32 v{CN+1}, 1.0")
    O = BF[4]; E = BF[5]
    OUT = BF[6]
    for t in range(4):
        lg.wait(("P", t))
        p = [P[s][t] for s in range(4)]
        for h in range(2):
            a(f"v_pk_add_f32 v[{p[0]+2*h}:{p[0]+2*h+1}], v[{p[0]+2*h}:{p[0]+2*h+1}], v[{p[1]+2*h}:{p[1]+2*h+1}]")
            a(f"v_pk_add_f32 v[{p[2]+2*h}:{p[2]+2*h+1}], v[{p[2]+2*h}:{p[2]+2*h+1}], v[{p[3]+2*h}:{p[3]+2*h+1}]")
        for h in range(2):
            a(f"v_pk_add_f32 v[{p[0]+2*h}:{p[0]+2*h+1}], v[{p[0]+2*h}:{p[0]+2*h+1}], v[{BU+4*t+2*h}:{BU+4*t+2*h+1}]")
        for h in range(2):
            a(f"v_pk_add_f32 v[{p[0]+2*h}:{p[0]+2*h+1}], v[{p[0]+2*h}:{p[0]+2*h+1}], v[{p[2]+2*h}:{p[2]+2*h+1}]")
        if DBG == "o":
            for h in range(2):
                a(f"v_cvt_pk_bf16_f32 v{OUT+2*t+h}, v{p[0]+2*h}, v{p[0]+2*h+1}")
            continue
        if DBG == "s":
            for h in range(2):
                a(f"v_cvt_pk_bf16_f32 v{OUT+2*t+h}, v{SU+4*t+2*h}, v{SU+4*t+2*h+1}")
            continue
        for h in range(2):
            a(f"v_pk_mul_f32 v[{p[1]+2*h}:{p[1]+2*h+1}], v[{p[0]+2*h}:{p[0]+2*h+1}], v[{CN}:{CN+1}] op_sel:[0,0] op_sel_hi:[1,0]")
        for i in range(4): a(f"v_exp_f32 v{p[1]+i}, v{p[1]+i}")
        for h in range(2):
            a(f"v_pk_add_f32 v[{p[1]+2*h}:{p[1]+2*h+1}], v[{p[1]+2*h}:{p[1]+2*h+1}], v[{CN}:{CN+1}] op_sel:[0,1] op_sel_hi:[1,1]")
        for i in range(4): a(f"v_rcp_f32 v{p[1]+i}, v{p[1]+i}")
        for h in range(2):
            a(f"v_pk_mul_f32 v[{p[0]+2*h}:{p[0]+2*h+1}], v[{p[0]+2*h}:{p[0]+2*h+1}], v[{p[1]+2*h}:{p[1]+2*h+1}]")
        for h in range(2):
            a(f"v_pk_fma_f32 v[{p[0]+2*h}:{p[0]+2*h+1}], v[{p[0]+2*h}:{p[0]+2*h+1}], v[{SU+4*t+2*h}:{SU+4*t+2*h+1}], v[{XU+4*t+2*h}:{XU+4*t+2*h+1}]")
        for h in range(2):
            a(f"v_cvt_pk_bf16_f32 v{OUT+2*t+h}, v{p[0]+2*h}, v{p[0]+2*h+1}")
    a(f"buffer_store_dwordx4 v[{OUT}:{OUT+3}], v{vxo}, s[{SOUT}:{SOUT+3}], s{sXO} offen")
    a(f"buffer_store_dwordx4 v[{OUT+4}:{OUT+7}], v{vxo}, s[{SOUT}:{SOUT+3}], s{sXO} offen offset:64")
    return V
```

```python
from common import *

def interleave(main, fill, a, first=0):
    n = len(main); k = 0
    per = [(len(fill) * (i + 1)) // n - (len(fill) * i) // n for i in range(n)]
    for i, m in enumerate(main):
        a(m)
        for _ in range(per[i]):
            a(fill[k]); k += 1

def mlp_ids(a, sI, sLB, sFB, sK, sJ7, sJm):
    a(f"s_and_b32 s{sK}, s{sI}, 7")
    a(f"s_lshr_b32 s{sJm}, s{sI}, 3")
    a(f"s_mul_i32 s{sJ7}, s{sJm}, 37")
    a(f"s_lshr_b32 s{sJ7}, s{sJ7}, 8")
    a(f"s_mul_i32 s{sLB}, s{sJ7}, 7")
    a(f"s_sub_u32 s{sJm}, s{sJm}, s{sLB}")
    a(f"s_lshr_b32 s{sLB}, s{sK}, 1")
    a(f"s_lshl_b32 s{sLB}, s{sLB}, 2")
    a(f"s_add_u32 s{sLB}, s{sLB}, s{sJ7}")
    a(f"s_and_b32 s{sFB}, s{sK}, 1")
    a(f"s_mul_i32 s{sFB}, s{sFB}, 7")
    a(f"s_add_u32 s{sFB}, s{sFB}, s{sJm}")

SX, SW1, SWS, SB1 = 4, 8, 12, 16
SOUT, SB2 = 24, 28
sW, sLB, sFB, sK, sJ7, sJm = 32, 33, 34, 35, 36, 37
sC, sRD, sWR, sXO, sWO, sT0, sT1, sT2 = 40, 41, 42, 43, 44, 45, 46, 47
sM = 48
sWF, sWL = 50, 51

def gen_g1(a, sI, hooks=None):
    V = VAlloc(1)
    a(f"s_load_dwordx2 s[{SX}:{SX+1}], s[0:1], {KA['x']}")
    a(f"s_load_dwordx2 s[{SW1}:{SW1+1}], s[0:1], {KA['w1']}")
    a(f"s_load_dwordx2 s[{SWS}:{SWS+1}], s[0:1], {KA['ws']}")
    a(f"s_load_dwordx2 s[{SB1}:{SB1+1}], s[0:1], {KA['b1']}")
    mlp_ids(a, sI, sLB, sFB, sK, sJ7, sJm)
    vlane = V.get(); vt = V.get(); vt2 = V.get(); vt3 = V.get()
    a(f"v_and_b32 v{vlane}, 63, v0")
    a(f"v_lshrrev_b32 v{vt}, 6, v0")
    a(f"v_readfirstlane_b32 s{sW}, v{vt}")
    a(f"s_and_b32 s{sWF}, s{sW}, 1")
    a(f"s_lshr_b32 s{sWL}, s{sW}, 1")
    vxo = V.get(); vwo = V.get()
    a(f"v_lshrrev_b32 v{vt}, 2, v{vlane}")
    a(f"v_mul_u32_u24 v{vxo}, 896, v{vt}")
    a(f"v_lshrrev_b32 v{vt}, 4, v{vlane}")
    a(f"v_and_b32 v{vt2}, 3, v{vlane}")
    a(f"v_xor_b32 v{vt2}, v{vt}, v{vt2}")
    a(f"v_lshl_add_u32 v{vxo}, v{vt2}, 4, v{vxo}")
    a(f"s_lshl_b32 s{sT0}, s{sLB}, 7")
    a(f"s_lshl_b32 s{sT1}, s{sW}, 5")
    a(f"s_add_u32 s{sT0}, s{sT0}, s{sT1}")
    a(f"s_mul_i32 s{sXO}, s{sT0}, 896")
    a(f"v_mul_u32_u24 v{vwo}, 3584, v{vt}")
    a(f"v_lshlrev_b32 v{vt3}, 2, v{vt}")
    a(f"v_and_b32 v{vt2}, 15, v{vlane}")
    a(f"v_xor_b32 v{vt2}, v{vt3}, v{vt2}")
    a(f"v_lshl_add_u32 v{vwo}, v{vt2}, 4, v{vwo}")
    a(f"s_mul_i32 s{sWO}, s{sW}, {8*3584}")
    a(f"s_lshl_b32 s{sT0}, s{sFB}, 8")
    a(f"s_add_u32 s{sWO}, s{sWO}, s{sT0}")
    a(f"s_lshl_b32 s{sWR}, s{sW}, 11")
    a("s_waitcnt lgkmcnt(0)")
    srd_fin(a, SX, X_BYTES); srd_fin(a, SW1, W_BYTES); srd_fin(a, SWS, WS_SIZE); srd_fin(a, SB1, F*2)
    def dma_list():
        l = []
        l.append(f"s_mov_b32 m0, s{sWR}")
        l.append(f"buffer_load_dwordx4 v{vxo}, s[{SX}:{SX+3}], s{sXO} offen lds")
        l.append(f"s_add_u32 m0, s{sWR}, 1024")
        l.append(f"s_add_u32 s{sT0}, s{sXO}, 14336")
        l.append(f"buffer_load_dwordx4 v{vxo}, s[{SX}:{SX+3}], s{sT0} offen lds")
        l.append(f"s_add_u32 m0, s{sWR}, 8192")
        l.append(f"s_add_u32 s{sT0}, s{sWO}, 14336")
        l.append(f"buffer_load_dwordx4 v{vwo}, s[{SW1}:{SW1+3}], s{sWO} offen lds")
        l.append(f"s_add_u32 m0, s{sWR}, 9216")
        l.append(f"s_add_u32 s{sXO}, s{sXO}, 64")
        l.append(f"buffer_load_dwordx4 v{vwo}, s[{SW1}:{SW1+3}], s{sT0} offen lds")
        l.append(f"s_add_u32 s{sWO}, s{sWO}, {32*3584}")
        l.append(f"s_add_u32 s{sWR}, s{sWR}, 16384")
        l.append(f"s_cmp_ge_u32 s{sWR}, 81920")
        l.append(f"s_cselect_b32 s{sT0}, 81920, 0")
        l.append(f"s_sub_u32 s{sWR}, s{sWR}, s{sT0}")
        return l
    vb1 = V.get(2)
    a(f"v_and_b32 v{vt}, 31, v{vlane}")
    a(f"v_lshlrev_b32 v{vt}, 1, v{vt}")
    a(f"s_lshl_b32 s{sT0}, s{sFB}, 8")
    a(f"s_lshl_b32 s{sT1}, s{sWF}, 7")
    a(f"s_add_u32 s{sT0}, s{sT0}, s{sT1}")
    a(f"buffer_load_ushort v{vb1}, v{vt}, s[{SB1}:{SB1+3}], s{sT0} offen")
    a(f"buffer_load_ushort v{vb1+1}, v{vt}, s[{SB1}:{SB1+3}], s{sT0} offen offset:64")
    for c in range(4):
        for l in dma_list(): a(l)
    vB = [V.get(), V.get()]; vA = [V.get(), V.get()]
    cB = [V.get(), V.get()]; cA = [V.get(), V.get()]
    vn = V.get(); vhh = V.get()
    a(f"v_and_b32 v{vn}, 31, v{vlane}")
    a(f"v_lshrrev_b32 v{vhh}, 5, v{vlane}")
    a(f"v_bfe_u32 v{vt}, v{vn}, 2, 2")
    a(f"v_xor_b32 v{vt}, v{vt}, v{vhh}")
    a(f"s_lshl_b32 s{sT0}, s{sWL}, 12")
    a(f"v_lshl_add_u32 v{vt2}, v{vn}, 6, s{sT0}")
    a(f"v_lshl_add_u32 v{vB[0]}, v{vt}, 4, v{vt2}")
    a(f"v_xor_b32 v{vB[1]}, 32, v{vB[0]}")
    vr_ = V.get()
    a(f"v_bfe_u32 v{vr_}, v{vlane}, 2, 2")
    a(f"v_lshl_add_u32 v{vt}, v{vhh}, 3, v{vr_}")
    a(f"v_lshlrev_b32 v{vt}, 8, v{vt}")
    a(f"v_bfe_u32 v{vt2}, v{vlane}, 4, 1")
    a(f"v_lshl_add_u32 v{vt}, v{vt2}, 5, v{vt}")
    a(f"v_and_b32 v{vt2}, 3, v{vlane}")
    a(f"v_lshl_add_u32 v{vt}, v{vt2}, 3, v{vt}")
    a(f"v_add_u32 v{vt}, 8192, v{vt}")
    a(f"s_lshl_b32 s{sT0}, s{sWF}, 1")
    a(f"v_xor_b32 v{vt2}, s{sT0}, v{vr_}")
    a(f"v_lshl_add_u32 v{vA[0]}, v{vt2}, 6, v{vt}")
    a(f"v_xor_b32 v{vA[1]}, 64, v{vA[0]}")
    acc = [[V.get(16, 4) for lt in range(2)] for ft in range(2)]
    fa = [[[V.get(4, 4) for s in range(2)] for ft in range(2)] for p in range(2)]
    fb = [[[V.get(4, 4) for s in range(2)] for lt in range(2)] for p in range(2)]
    cs = [V.get(), V.get()]
    ones = V.get()
    ST = [V.get(8, 4), V.get(8, 4)]
    vso = V.get()
    for ft in range(2):
        for lt in range(2):
            for i in range(16): a(f"v_mov_b32 v{acc[ft][lt]+i}, 0")
    a(f"v_mov_b32 v{cs[0]}, 0"); a(f"v_mov_b32 v{cs[1]}, 0")
    a(f"v_mov_b32 v{ones}, 0x3f803f80")
    a(f"v_lshlrev_b32 v{vso}, 5, v{vn}")
    a(f"s_mov_b32 s{sRD}, 0")
    a(f"s_mov_b32 s{sC}, 0")

    def reads(p):
        l = []
        for k in range(2): l.append(f"v_add_u32 v{cB[k]}, s{sRD}, v{vB[k]}")
        for k in range(2): l.append(f"v_add_u32 v{cA[k]}, s{sRD}, v{vA[k]}")
        for s in range(2):
            for lt in range(2):
                l.append(f"ds_read_b128 v[{fb[p][lt][s]}:{fb[p][lt][s]+3}], v{cB[s]} offset:{2048*lt}")
            for ft in range(2):
                b = fa[p][ft][s]
                l.append(f"ds_read_b64_tr_b16 v[{b}:{b+1}], v{cA[ft]} offset:{4096*s}")
                l.append(f"ds_read_b64_tr_b16 v[{b+2}:{b+3}], v{cA[ft]} offset:{4096*s+1024}")
        l.append(f"s_add_u32 s{sRD}, s{sRD}, 16384")
        l.append(f"s_cmp_ge_u32 s{sRD}, 81920")
        l.append(f"s_cselect_b32 s{sT2}, 81920, 0")
        l.append(f"s_sub_u32 s{sRD}, s{sRD}, s{sT2}")
        return l
    def mfmas(p):
        l = []
        for s in range(2):
            for ft in range(2):
                for lt in range(2):
                    A = fa[p][ft][s]; B = fb[p][lt][s]; C = acc[ft][lt]
                    l.append(f"v_mfma_f32_32x32x16_bf16 v[{C}:{C+15}], v[{A}:{A+3}], v[{B}:{B+3}], v[{C}:{C+15}]")
        return l
    def dots(p):
        l = []
        for s in range(2):
            for i in range(4):
                for ft in range(2):
                    l.append(f"v_dot2c_f32_bf16 v{cs[ft]}, v{fa[p][ft][s]+i}, v{ones}")
        return l
    def stat_loads():
        l = []
        l.append(f"s_lshl_b32 s{sT0}, s{sLB}, 12")
        l.append(f"s_lshl_b32 s{sT1}, s{sWL}, 11")
        l.append(f"s_add_u32 s{sT0}, s{sT0}, s{sT1}")
        l.append(f"s_add_u32 s{sT0}, s{sT0}, {WS_STAT}")
        for lt in range(2):
            l.append(f"buffer_load_dwordx4 v[{ST[lt]}:{ST[lt]+3}], v{vso}, s[{SWS}:{SWS+3}], s{sT0} offen offset:{1024*lt} sc1")
            l.append(f"buffer_load_dwordx4 v[{ST[lt]+4}:{ST[lt]+7}], v{vso}, s[{SWS}:{SWS+3}], s{sT0} offen offset:{1024*lt+16} sc1")
        return l
    a("s_waitcnt vmcnt(12)")
    a("s_barrier")
    for l in dma_list(): a(l)
    for l in reads(0): a(l)
    a(f"s_mov_b32 s{sC}, 1")
    lp = a.newlabel("G1_LOOP")
    a.label(lp)
    a("s_waitcnt vmcnt(12) lgkmcnt(0)")
    a("s_barrier")
    l1 = a.newlabel("G1_ND")
    rd = reads(1); mm = mfmas(0); dd = dots(0)
    a(mm[0])
    for l in rd[:10]: a(l)
    a(mm[1])
    for l in rd[10:]: a(l)
    a(f"s_cmp_gt_u32 s{sC}, 9")
    a(f"s_cbranch_scc1 {l1}")
    for l in dma_list(): a(l)
    a.label(l1)
    interleave(mm[2:], dd, a)
    l2 = a.newlabel("G1_W8"); l3 = a.newlabel("G1_W12"); l4 = a.newlabel("G1_ST"); l5 = a.newlabel("G1_ND")
    a(f"s_cmp_eq_u32 s{sC}, 11")
    a(f"s_cbranch_scc0 {l3}")
    a("s_waitcnt vmcnt(8)")
    a.label(l3)
    a("s_waitcnt vmcnt(12) lgkmcnt(0)")
    a("s_barrier")
    rd = reads(0); mm = mfmas(1); dd = dots(1)
    a(mm[0])
    for l in rd[:10]: a(l)
    a(mm[1])
    for l in rd[10:]: a(l)
    a(f"s_cmp_gt_u32 s{sC}, 9")
    a(f"s_cbranch_scc1 {l5}")
    a(f"s_cmp_eq_u32 s{sC}, 9")
    a(f"s_cbranch_scc1 {l4}")
    for l in dma_list(): a(l)
    a(f"s_branch {l5}")
    a.label(l4)
    if hooks and "before_stats" in hooks: hooks["before_stats"](a, V)
    for l in stat_loads(): a(l)
    a.label(l5)
    interleave(mm[2:], dd, a)
    a(f"s_add_u32 s{sC}, s{sC}, 2")
    a(f"s_cmp_lt_u32 s{sC}, 13")
    a(f"s_cbranch_scc1 {lp}")
    a("s_waitcnt vmcnt(4) lgkmcnt(0)")
    a("s_barrier")
    rd = reads(1); mm = mfmas(0); dd = dots(0)
    a(mm[0])
    for l in rd[:10]: a(l)
    a(mm[1])
    for l in rd[10:]: a(l)
    interleave(mm[2:], dd, a)
    a("s_waitcnt lgkmcnt(0)")
    interleave(mfmas(1), dots(1), a)
    FA = [fa[0][0][0], fa[0][0][1]]
    t0 = fb[0][0][0]; t1 = t0 + 1
    a(f"s_mov_b32 s{sM}, -1"); a(f"s_mov_b32 s{sM+1}, 0")
    a("s_waitcnt vmcnt(0)")
    for ft in range(2):
        c = cs[ft]; d = FA[ft]
        a(f"v_mov_b32 v{t0}, v{c}")
        a(f"v_permlane32_swap_b32 v{c}, v{t0}")
        a(f"v_add_f32 v{c}, v{c}, v{t0}")
        a(f"v_cvt_pk_bf16_f32 v{d}, v{c}, v{c}")
        a(f"v_and_b32 v{t1}, 0xffff0000, v{d}")
        a(f"v_sub_f32 v{t1}, v{c}, v{t1}")
        a(f"v_and_b32 v{d+1}, 0xffff, v{d}")
        a(f"v_cvt_pk_bf16_f32 v{d}, v{c}, v{t1}")
        a(f"v_lshl_or_b32 v{d+1}, v{vb1+ft}, 16, v{d+1}")
        a(f"v_mov_b32 v{d+2}, v{vb1+ft}")
        a(f"v_mov_b32 v{d+3}, 0")
        for k in range(3):
            a(f"v_cndmask_b32 v{d+k}, 0, v{d+k}, s[{sM}:{sM+1}]")
    for ft in range(2):
        for lt in range(2):
            C = acc[ft][lt]
            a(f"v_mfma_f32_32x32x16_bf16 v[{C}:{C+15}], v[{FA[ft]}:{FA[ft]+3}], v[{ST[lt]}:{ST[lt]+3}], v[{C}:{C+15}]")
    vho = V.get()
    a(f"v_lshlrev_b32 v{vho}, 4, v{vlane}")
    a(f"s_lshl_b32 s{sT0}, s{sLB}, 2")
    a(f"s_lshl_b32 s{sT1}, s{sWL}, 1")
    a(f"s_add_u32 s{sT0}, s{sT0}, s{sT1}")
    a(f"s_mul_i32 s{sT0}, s{sT0}, 112")
    a(f"s_lshl_b32 s{sT1}, s{sFB}, 3")
    a(f"s_add_u32 s{sT0}, s{sT0}, s{sT1}")
    a(f"s_lshl_b32 s{sT1}, s{sWF}, 2")
    a(f"s_add_u32 s{sT0}, s{sT0}, s{sT1}")
    a(f"s_lshl_b32 s{sT0}, s{sT0}, 10")
    a(f"s_add_u32 s{sT0}, s{sT0}, {WS_HF}")
    a(f"s_add_u32 s{sT1}, s{sT0}, {112*1024}")
    TA = [fa[1][0][0], fb[1][0][0]]
    TB = [fb[0][0][0], fb[0][1][0]]
    blk = 0
    for lt in range(2):
        K = ST[lt] + 4
        for ft in range(2):
            for kp in range(2):
                A0 = acc[ft][lt] + 8*kp
                T = TA[blk % 2]; O = TB[blk % 2]
                for k in range(4):
                    a(f"v_pk_mul_f32 v[{T+2*k}:{T+2*k+1}], v[{A0+2*k}:{A0+2*k+1}], v[{A0+2*k}:{A0+2*k+1}]")
                for k in range(4):
                    a(f"v_pk_fma_f32 v[{T+2*k}:{T+2*k+1}], v[{T+2*k}:{T+2*k+1}], v[{K}:{K+1}], v[{K}:{K+1}] op_sel:[0,1,0] op_sel_hi:[1,1,0]")
                for k in range(4):
                    a(f"v_pk_mul_f32 v[{T+2*k}:{T+2*k+1}], v[{T+2*k}:{T+2*k+1}], v[{A0+2*k}:{A0+2*k+1}]")
                for k in range(8):
                    a(f"v_exp_f32 v{T+k}, v{T+k}")
                for k in range(4):
                    a(f"v_pk_fma_f32 v[{T+2*k}:{T+2*k+1}], v[{T+2*k}:{T+2*k+1}], v[{K+2}:{K+3}], v[{K+2}:{K+3}] op_sel:[0,0,0] op_sel_hi:[1,0,0]")
                for k in range(8):
                    a(f"v_rcp_f32 v{T+k}, v{T+k}")
                for k in range(4):
                    a(f"v_pk_mul_f32 v[{T+2*k}:{T+2*k+1}], v[{T+2*k}:{T+2*k+1}], v[{A0+2*k}:{A0+2*k+1}]")
                for k in range(4):
                    a(f"v_cvt_pk_bf16_f32 v{O+k}, v{T+2*k}, v{T+2*k+1}")
                so = sT0 if lt == 0 else sT1
                a(f"buffer_store_dwordx4 v[{O}:{O+3}], v{vho}, s[{SWS}:{SWS+3}], s{so} offen offset:{(2*ft+kp)*1024} sc1")
                blk += 1
    return V
```

```python
from common import *

def gen_prep(a, sP, flags=None):
    V = VAlloc(1)
    SX, SW2, SWS = 4, 8, 12
    sW, sT0, sT1, sT2 = 20, 21, 22, 23
    a(f"s_load_dwordx2 s[{SX}:{SX+1}], s[0:1], {KA['x']}")
    a(f"s_load_dwordx2 s[{SW2}:{SW2+1}], s[0:1], {KA['w2']}")
    a(f"s_load_dwordx2 s[{SWS}:{SWS+1}], s[0:1], {KA['ws']}")
    vtid = 0
    vlane = V.get(); vt = V.get(); vt2 = V.get(); vxo = V.get(); vl16 = V.get()
    a(f"v_and_b32 v{vlane}, 63, v{vtid}")
    a(f"v_lshrrev_b32 v{vt}, 6, v{vtid}")
    a(f"v_readfirstlane_b32 s{sW}, v{vt}")
    a(f"v_lshrrev_b32 v{vt}, 3, v{vtid}")
    a(f"v_mul_u32_u24 v{vxo}, 896, v{vt}")
    a(f"v_and_b32 v{vt2}, 7, v{vtid}")
    a(f"v_lshl_add_u32 v{vxo}, v{vt2}, 4, v{vxo}")
    a(f"v_lshlrev_b32 v{vl16}, 4, v{vlane}")
    a(f"s_mul_i32 s{sT0}, s{sP}, {32*896}")
    a("s_waitcnt lgkmcnt(0)")
    srd_fin(a, SX, X_BYTES); srd_fin(a, SW2, W_BYTES); srd_fin(a, SWS, WS_SIZE)
    X = V.get(28, 4)
    for i in range(7):
        a(f"buffer_load_dwordx4 v[{X+4*i}:{X+4*i+3}], v{vxo}, s[{SX}:{SX+3}], s{sT0} offen offset:{128*i}")
    LDS_W2 = 0; LDS_XN = 32768; XP = 912
    a(f"s_lshl_b32 s{sT1}, s{sW}, 10")
    a(f"s_mul_i32 s{sT2}, s{sP}, 14336")
    a(f"s_add_u32 s{sT2}, s{sT2}, s{sT1}")
    for u in range(2):
        for j in range(4):
            a(f"s_add_u32 m0, s{sT1}, {LDS_W2 + u*16384 + j*4096}")
            a(f"s_add_u32 s{sT0}, s{sT2}, {u*64*14336 + j*4096}")
            a(f"buffer_load_dwordx4 v{vl16}, s[{SW2}:{SW2+3}], s{sT0} offen lds")
    s1 = V.get(); s2 = V.get(); s1b = V.get(); s2b = V.get()
    ones = V.get()
    a(f"v_mov_b32 v{ones}, 0x3f803f80")
    for r in (s1, s2, s1b, s2b): a(f"v_mov_b32 v{r}, 0")
    a("s_waitcnt vmcnt(8)")
    def sums(src):
        for i in range(0, 28, 2):
            a(f"v_dot2c_f32_bf16 v{s1}, v{src+i}, v{ones}")
            a(f"v_dot2c_f32_bf16 v{s2}, v{src+i}, v{src+i}")
            a(f"v_dot2c_f32_bf16 v{s1b}, v{src+i+1}, v{ones}")
            a(f"v_dot2c_f32_bf16 v{s2b}, v{src+i+1}, v{src+i+1}")
        a(f"v_add_f32 v{s1}, v{s1}, v{s1b}")
        a(f"v_add_f32 v{s2}, v{s2}, v{s2b}")
        for m in ("quad_perm:[1,0,3,2]", "quad_perm:[2,3,0,1]", "row_half_mirror"):
            a(f"v_add_f32_dpp v{s1}, v{s1}, v{s1} {m} row_mask:0xf bank_mask:0xf")
            a(f"v_add_f32_dpp v{s2}, v{s2}, v{s2} {m} row_mask:0xf bank_mask:0xf")
    def stats(m, sd):
        a(f"v_mul_f32 v{s1}, {fl(1.0/448)}, v{s1}")
        a(f"v_mul_f32 v{s2}, {fl(1.0/448)}, v{s2}")
        a(f"v_fma_f32 v{s2}, -v{s1}, v{s1}, v{s2}")
        a(f"v_max_f32 v{s2}, 0, v{s2}")
        bf16r(a, m, s1)
        bf16r(a, s2, s2)
        a(f"v_add_f32 v{s2}, {fl(1e-5)}, v{s2}")
        bf16r(a, s2, s2)
        a(f"v_sqrt_f32 v{s2}, v{s2}")
        bf16r(a, sd, s2)
    sums(X)
    m1 = V.get(); sd1 = V.get(); m2 = V.get(); sd2 = V.get()
    stats(m1, sd1)
    rs = V.get(2, 2)
    a(f"v_rcp_f32 v{rs}, v{sd1}")
    a(f"v_mul_f32 v{rs+1}, v{m1}, v{rs}")
    a(f"v_sub_f32 v{rs+1}, 0, v{rs+1}")
    T = V.get(8, 2)
    for i in range(0, 28, 4):
        for k in range(4):
            a(f"v_lshlrev_b32 v{T+2*k}, 16, v{X+i+k}")
            a(f"v_and_b32 v{T+2*k+1}, 0xffff0000, v{X+i+k}")
        for k in range(4):
            a(f"v_pk_fma_f32 v[{T+2*k}:{T+2*k+1}], v[{T+2*k}:{T+2*k+1}], v[{rs}:{rs+1}], v[{rs}:{rs+1}] op_sel:[0,0,1] op_sel_hi:[1,0,1]")
        for k in range(4):
            a(f"v_cvt_pk_bf16_f32 v{X+i+k}, v{T+2*k}, v{T+2*k+1}")
    vla = V.get()
    a(f"v_lshrrev_b32 v{vt}, 3, v{vtid}")
    a(f"v_mul_u32_u24 v{vla}, {XP}, v{vt}")
    a(f"v_lshl_add_u32 v{vla}, v{vt2}, 4, v{vla}")
    for i in range(7):
        a(f"ds_write_b128 v{vla}, v[{X+4*i}:{X+4*i+3}] offset:{LDS_XN + 128*i}")
    for r in (s1, s2, s1b, s2b): a(f"v_mov_b32 v{r}, 0")
    sums(X)
    stats(m2, sd2)
    R = V.get(8, 4)
    ia = V.get(); al = V.get(); mu = V.get(); tq = V.get()
    a(f"v_mul_f32 v{ia}, v{sd1}, v{sd2}")
    a(f"v_rcp_f32 v{al}, v{ia}")
    a(f"v_fma_f32 v{mu}, v{m2}, v{sd1}, v{m1}")
    a(f"v_sub_f32 v{mu}, 0, v{mu}")
    a(f"v_cvt_pk_bf16_f32 v{R}, v{mu}, v{mu}")
    a(f"v_and_b32 v{tq}, 0xffff0000, v{R}")
    a(f"v_sub_f32 v{tq}, v{mu}, v{tq}")
    a(f"v_cvt_pk_bf16_f32 v{R+1}, v{tq}, v{ia}")
    a(f"v_and_b32 v{tq}, 0xffff0000, v{R+1}")
    a(f"v_sub_f32 v{tq}, v{ia}, v{tq}")
    a(f"v_mov_b32 v{R+3}, 0")
    a(f"v_cvt_pk_bf16_f32 v{R+2}, v{tq}, v{R+3}")
    C1 = 2 * 0.7978845608028654 * 1.4426950408889634
    C2 = C1 * 0.044715
    a(f"v_mul_f32 v{R+4}, {fl(-C1)}, v{al}")
    a(f"v_mul_f32 v{tq}, v{al}, v{al}")
    a(f"v_mul_f32 v{tq}, v{tq}, v{al}")
    a(f"v_mul_f32 v{R+5}, {fl(-C2)}, v{tq}")
    a(f"v_mov_b32 v{R+6}, v{ia}")
    a(f"v_mov_b32 v{R+7}, 0")
    a(f"v_cmp_eq_u32 vcc, 1, v{vt2}")
    for k in range(4):
        a(f"v_cndmask_b32 v{R+k}, v{R+k}, v{R+4+k}, vcc")
    vso = V.get()
    a(f"v_lshlrev_b32 v{vso}, 5, v{vt}")
    a(f"v_lshl_add_u32 v{vso}, v{vt2}, 4, v{vso}")
    a(f"s_lshl_b32 s{sT0}, s{sP}, 10")
    a(f"s_add_u32 s{sT0}, s{sT0}, {WS_STAT}")
    a(f"v_cmp_gt_u32 vcc, 2, v{vt2}")
    a(f"s_and_saveexec_b64 s[24:25], vcc")
    a(f"buffer_store_dwordx4 v[{R}:{R+3}], v{vso}, s[{SWS}:{SWS+3}], s{sT0} offen sc1")
    a(f"s_mov_b64 exec, s[24:25]")
    Z = V.get(4, 4)
    for k in range(4): a(f"v_mov_b32 v{Z+k}, 0")
    vzo = V.get()
    a(f"v_lshrrev_b32 v{vzo}, 1, v{vtid}")
    a(f"v_mul_u32_u24 v{vzo}, {XNT_PITCH}, v{vzo}")
    a(f"v_and_b32 v{tq}, 1, v{vtid}")
    a(f"v_lshl_add_u32 v{vzo}, v{tq}, 4, v{vzo}")
    a(f"s_mul_i32 s{sT0}, s{sP}, {7*XNT_PITCH}")
    a(f"s_add_u32 s{sT0}, s{sT0}, {WS_XNT + 96}")
    a(f"v_cmp_gt_u32 vcc, 14, v{vtid}")
    a(f"s_and_saveexec_b64 s[24:25], vcc")
    a(f"buffer_store_dwordx4 v[{Z}:{Z+3}], v{vzo}, s[{SWS}:{SWS+3}], s{sT0} offen sc1")
    a(f"s_mov_b64 exec, s[24:25]")
    a("s_waitcnt vmcnt(2) lgkmcnt(0)")
    a("s_barrier")
    vg = V.get(); vrr = V.get(); vc4 = V.get(); vpa = V.get(); voo = V.get()
    a(f"v_lshrrev_b32 v{vg}, 4, v{vlane}")
    a(f"v_bfe_u32 v{vrr}, v{vlane}, 2, 2")
    a(f"v_and_b32 v{vc4}, 3, v{vlane}")
    a(f"v_lshl_add_u32 v{vpa}, v{vc4}, 3, v{vrr}")
    a(f"v_mul_u32_u24 v{vpa}, {XP}, v{vpa}")
    a(f"v_lshl_add_u32 v{vpa}, v{vg}, 3, v{vpa}")
    a(f"s_lshl_b32 s{sT0}, s{sW}, 5")
    a(f"v_add_u32 v{vpa}, s{sT0}, v{vpa}")
    a(f"v_lshl_add_u32 v{voo}, v{vg}, 2, v{vc4}")
    a(f"v_mul_u32_u24 v{voo}, {XNT_PITCH}, v{voo}")
    a(f"v_lshl_add_u32 v{voo}, v{vrr}, 4, v{voo}")
    a(f"s_mul_i32 s{sT0}, s{sW}, {16*XNT_PITCH}")
    a(f"s_lshl_b32 s{sT1}, s{sP}, 6")
    a(f"s_add_u32 s{sT0}, s{sT0}, s{sT1}")
    a(f"s_add_u32 s{sT0}, s{sT0}, {WS_XNT + 128}")
    TT = V.get(28, 4)
    for k in range(7):
        a(f"ds_read_b64_tr_b16 v[{TT+4*k}:{TT+4*k+1}], v{vpa} offset:{LDS_XN + 128*k}")
        a(f"ds_read_b64_tr_b16 v[{TT+4*k+2}:{TT+4*k+3}], v{vpa} offset:{LDS_XN + 128*k + 4*XP}")
    vwa = V.get()
    a(f"v_lshrrev_b32 v{tq}, 1, v{vg}")
    a(f"v_lshl_add_u32 v{vwa}, v{tq}, 2, v{vrr}")
    a(f"v_mul_u32_u24 v{vwa}, 896, v{vwa}")
    a(f"v_and_b32 v{tq}, 1, v{vg}")
    a(f"v_lshl_add_u32 v{vwa}, v{tq}, 5, v{vwa}")
    a(f"v_lshl_add_u32 v{vwa}, v{vc4}, 3, v{vwa}")
    a(f"s_lshl_b32 s{sT1}, s{sW}, 6")
    a(f"v_add_u32 v{vwa}, s{sT1}, v{vwa}")
    WF = V.get(32, 4)
    for u in range(2):
        for j in range(4):
            b = WF + 16*u + 4*j
            if j == 3:
                pass
            a(f"ds_read_b64_tr_b16 v[{b}:{b+1}], v{vwa} offset:{LDS_W2 + u*16384 + j*256}")
            a(f"ds_read_b64_tr_b16 v[{b+2}:{b+3}], v{vwa} offset:{LDS_W2 + u*16384 + j*256 + 8*896}")
    for k in range(7):
        a(f"s_waitcnt lgkmcnt({min(15, 2*(6-k) + 16)})")
        a(f"buffer_store_dwordx4 v[{TT+4*k}:{TT+4*k+3}], v{voo}, s[{SWS}:{SWS+3}], s{sT0} offen sc1")
        a(f"s_add_u32 s{sT0}, s{sT0}, {64*XNT_PITCH}")
    a("s_waitcnt lgkmcnt(0)")
    a(f"s_mul_i32 s{sT0}, s{sW}, {112*1024}")
    a(f"s_lshl_b32 s{sT1}, s{sP}, 10")
    a(f"s_add_u32 s{sT0}, s{sT0}, s{sT1}")
    a(f"s_add_u32 s{sT0}, s{sT0}, {WS_W2F}")
    lskip = a.newlabel("PREP_SKIP")
    lskip2 = a.newlabel("PREP_SKIP")
    for u in range(2):
        if u == 1:
            a(f"s_cmp_ge_u32 s{sP}, 48")
            a(f"s_cbranch_scc1 {lskip2}")
        for j in range(4):
            b = WF + 16*u + 4*j
            if j == 3:
                lk = a.newlabel("PREP_SK")
                a(f"s_cmp_ge_u32 s{sW}, 2")
                a(f"s_cbranch_scc1 {lk}")
            a(f"s_add_u32 s{sT1}, s{sT0}, {(4*j*112 + 64*u)*1024}")
            a(f"buffer_store_dwordx4 v[{b}:{b+3}], v{vl16}, s[{SWS}:{SWS+3}], s{sT1} offen sc1")
            if j == 3: a.label(lk)
    a.label(lskip2)
    if flags is not None:
        flags(a, V, SWS)
    return V.hi
```

```python
from common import *
from track import Cnt, both
import math

U_SZ = 17408
L_U = 0
L_KR = 2 * U_SZ
KR_SZ = 4608
L_T32 = L_KR + 2 * KR_SZ
T32_SZ = 3072
L_FR = L_T32 + 2 * T32_SZ
FR_SZ = 4352
L_END = L_FR + 4 * FR_SZ
assert L_END <= 81920
LOG2E = 1.4426950408889634

def cmul(a, d, z, w, conjw=False):
    a(f"v_pk_mul_f32 v[{d}:{d+1}], v[{z}:{z+1}], v[{w}:{w+1}] op_sel:[0,0] op_sel_hi:[1,0]")
    a(f"v_pk_fma_f32 v[{d}:{d+1}], v[{z}:{z+1}], v[{w}:{w+1}], v[{d}:{d+1}] op_sel:[1,1,0] op_sel_hi:[0,1,1] neg_lo:[0,1,0]")

def cmul2(a, items):
    for d, z, w in items:
        assert d != z and d != w
        a(f"v_pk_mul_f32 v[{d}:{d+1}], v[{z}:{z+1}], v[{w}:{w+1}] op_sel:[0,0] op_sel_hi:[1,0]")
    for d, z, w in items:
        a(f"v_pk_fma_f32 v[{d}:{d+1}], v[{z}:{z+1}], v[{w}:{w+1}], v[{d}:{d+1}] op_sel:[1,1,0] op_sel_hi:[0,1,1] neg_lo:[0,1,0]")

def gen_ssm(a, sP, hooks=None, S=None):
    hooks = hooks or {}
    V = VAlloc(1)
    vm = Cnt(a, "vmcnt", 63); lg = Cnt(a, "lgkmcnt", 15)
    SLAR, SAIM, SCRE, SCIM, SWS = 4, 8, 12, 16, 20
    sLDT, sDSK = 24, 26
    sW, sCH, sHW, sD, sT0, sT1, sT2, sDT, sDS, sUB = 32, 33, 34, 35, 36, 37, 38, 39, 40, 41
    for s, k in ((SLAR, 'lar'), (SAIM, 'aim'), (SCRE, 'cre'), (SCIM, 'cim'), (SWS, 'ws'), (sLDT, 'ldt'), (sDSK, 'dsk')):
        a(f"s_load_dwordx2 s[{s}:{s+1}], s[0:1], {KA[k]}")
    vlane = V.get(); vt = V.get(); vt2 = V.get(); vt3 = V.get()
    a(f"v_and_b32 v{vlane}, 63, v0")
    a(f"v_lshrrev_b32 v{vt}, 6, v0")
    a(f"v_readfirstlane_b32 s{sW}, v{vt}")
    a(f"s_lshr_b32 s{sCH}, s{sW}, 1")
    a(f"s_and_b32 s{sHW}, s{sW}, 1")
    a(f"s_lshl_b32 s{sD}, s{sP}, 1")
    a(f"s_add_u32 s{sD}, s{sD}, s{sCH}")
    vpo = V.get()
    a(f"v_lshlrev_b32 v{vpo}, 2, v{vlane}")
    a(f"s_lshl_b32 s{sT0}, s{sD}, 9")
    a(f"s_lshl_b32 s{sT1}, s{sHW}, 8")
    a(f"s_add_u32 s{sT0}, s{sT0}, s{sT1}")
    a(f"s_lshl_b32 s{sT2}, s{sP}, 2")
    a("s_waitcnt lgkmcnt(0)")
    for s in (SLAR, SAIM, SCRE, SCIM): srd_fin(a, s, D * N * 2)
    srd_fin(a, SWS, WS_SIZE)
    PR = V.get(4)
    for i, s in enumerate((SLAR, SAIM, SCRE, SCIM)):
        vm.issue(f"buffer_load_dword v{PR+i}, v{vpo}, s[{s}:{s+3}], s{sT0} offen", "P")
    a(f"s_load_dword s{sDT}, s[{sLDT}:{sLDT+1}], s{sT2}")
    a(f"s_load_dword s{sDS}, s[{sDSK}:{sDSK+1}], s{sT2}")
    Z = V.get(2, 2)
    a(f"v_mov_b32 v{Z}, 0"); a(f"v_mov_b32 v{Z+1}, 0")
    a(f"v_lshlrev_b32 v{vt}, 3, v0")
    for k in range(3):
        a(f"ds_write_b64 v{vt}, v[{Z}:{Z+1}] offset:{L_T32 + 2048*k}")
    a(f"v_lshlrev_b32 v{vt2}, 3, v{vlane}")
    a(f"s_mul_i32 s{sT0}, s{sCH}, {KR_SZ}")
    a(f"v_add_u32 v{vt2}, s{sT0}, v{vt2}")
    a(f"ds_write_b64 v{vt2}, v[{Z}:{Z+1}] offset:{L_KR + 4096}")
    GI = V.get(16)
    vtau = V.get(); vf = V.get(2, 2)
    a(f"s_lshl_b32 s{sT0}, s{sHW}, 6")
    a(f"v_add_u32 v{vtau}, s{sT0}, v{vlane}")
    a(f"v_lshlrev_b32 v{vt}, 1, v{vtau}")
    a(f"v_sub_u32 v{vt}, 2047, v{vt}")
    a(f"v_cvt_f32_u32 v{vf}, v{vt}")
    a(f"v_add_f32 v{vf+1}, -1.0, v{vf}")
    a(f"s_mul_i32 s{sT0}, s{sCH}, {T32_SZ}")
    a(f"s_add_u32 s{sT0}, s{sT0}, {L_T32}")
    a(f"s_sub_u32 s{sT1}, s{sT0}, {(0x4300 - 128) * 4}")
    C256 = V.get(2, 2)
    a(f"v_mov_b32 v{C256}, {fl(-256.0)}"); a(f"v_mov_b32 v{C256+1}, {fl(-256.0)}")
    for k in range(7):
        a(f"v_cvt_pk_bf16_f32 v{vt2}, v{vf}, v{vf+1}")
        a(f"v_and_b32 v{vt3}, 0xffff, v{vt2}")
        a(f"v_lshl_add_u32 v{GI+2*k}, v{vt3}, 2, s{sT1}")
        a(f"v_lshrrev_b32 v{vt3}, 16, v{vt2}")
        a(f"v_lshl_add_u32 v{GI+2*k+1}, v{vt3}, 2, s{sT1}")
        if k < 6: a(f"v_pk_add_f32 v[{vf}:{vf+1}], v[{vf}:{vf+1}], v[{C256}:{C256+1}]")
    a(f"v_subrev_u32 v{vt}, {7*256}, v{vt}")
    a(f"v_lshl_add_u32 v{GI+14}, v{vt}, 2, s{sT0}")
    a(f"v_add_u32 v{GI+15}, -4, v{GI+14}")
    vfw = V.get(); vfr = V.get()
    a(f"s_mul_i32 s{sT0}, s{sW}, {FR_SZ}")
    a(f"s_add_u32 s{sT0}, s{sT0}, {L_FR}")
    a(f"v_lshrrev_b32 v{vt}, 4, v{vlane}")
    a(f"v_mul_u32_u24 v{vfw}, 1088, v{vt}")
    a(f"v_bfe_u32 v{vt2}, v{vlane}, 2, 2")
    a(f"v_mul_u32_u24 v{vt2}, 272, v{vt2}")
    a(f"v_add_u32 v{vfw}, v{vfw}, v{vt2}")
    a(f"v_and_b32 v{vt2}, 3, v{vlane}")
    a(f"v_lshl_add_u32 v{vfw}, v{vt2}, 2, v{vfw}")
    a(f"v_add_u32 v{vfw}, s{sT0}, v{vfw}")
    a(f"v_mul_u32_u24 v{vfr}, 272, v{vt}")
    a(f"v_and_b32 v{vt2}, 15, v{vlane}")
    a(f"v_lshl_add_u32 v{vfr}, v{vt2}, 4, v{vfr}")
    a(f"v_add_u32 v{vfr}, s{sT0}, v{vfr}")
    vsa = V.get(); vsb0 = V.get(); vsb1 = V.get(); vsc = V.get()
    a(f"s_mul_i32 s{sT0}, s{sCH}, {T32_SZ}")
    a(f"s_add_u32 s{sT0}, s{sT0}, {L_T32}")
    a(f"v_lshrrev_b32 v{vt3}, 1, v{vt}")
    a(f"v_lshlrev_b32 v{vsa}, 7, v{vt3}")
    a(f"v_lshl_add_u32 v{vsa}, v{vt2}, 3, v{vsa}")
    a(f"v_and_b32 v{vsb0}, 1, v{vt}")
    a(f"v_lshl_add_u32 v{vsa}, v{vsb0}, 2, v{vsa}")
    a(f"v_lshl_add_u32 v{vsa}, v{vsa}, 2, s{sT0}")
    a(f"v_lshlrev_b32 v{vsb0}, 1, v{vt2}")
    a(f"v_lshlrev_b32 v{vsb1}, 2, v{vt2}")
    a(f"v_cmp_gt_u32 vcc, 2, v{vt}")
    a(f"v_cndmask_b32 v{vsb0}, v{vsb0}, v{vsb1}, vcc")
    a(f"v_lshl_add_u32 v{vsb0}, v{vt}, 6, v{vsb0}")
    a(f"v_add_u32 v{vsb0}, 256, v{vsb0}")
    a(f"v_mov_b32 v{vsb1}, 32")
    a(f"v_cndmask_b32 v{vsb1}, v{vsb1}, 2, vcc")
    a(f"v_add_u32 v{vsb1}, v{vsb1}, v{vsb0}")
    a(f"v_lshl_add_u32 v{vsb0}, v{vsb0}, 2, s{sT0}")
    a(f"v_lshl_add_u32 v{vsb1}, v{vsb1}, 2, s{sT0}")
    a(f"v_lshl_add_u32 v{vsc}, v{vt}, 6, v{vt2}")
    a(f"v_add_u32 v{vsc}, 512, v{vsc}")
    a(f"v_lshl_add_u32 v{vsc}, v{vsc}, 2, s{sT0}")
    vdt = V.get(); vds = V.get()
    a("s_waitcnt lgkmcnt(0)")
    a(f"s_lshl_b32 s{sT0}, s{sCH}, 4")
    a(f"s_lshr_b32 s{sDT}, s{sDT}, s{sT0}")
    a(f"s_lshl_b32 s{sDT}, s{sDT}, 16")
    a(f"s_lshr_b32 s{sDS}, s{sDS}, s{sT0}")
    a(f"s_lshl_b32 s{sDS}, s{sDS}, 16")
    a(f"v_mov_b32 v{vdt}, {fl(LOG2E)}")
    a(f"v_mul_f32 v{vdt}, s{sDT}, v{vdt}")
    a(f"v_exp_f32 v{vdt}, v{vdt}")
    bf16r(a, vdt, vdt)
    a(f"s_cmp_eq_u32 s{sHW}, 0")
    a(f"s_cselect_b32 s{sDS}, s{sDS}, 0")
    a(f"v_mov_b32 v{vds}, s{sDS}")
    a(f"v_cmp_eq_u32 vcc, 0, v{vlane}")
    a(f"v_cndmask_b32 v{vds}, 0, v{vds}, vcc")
    mark = V.mark()
    ACC = [V.get(4, 4) for _ in range(3)]
    for t in range(3):
        for i in range(4): a(f"v_mov_b32 v{ACC[t]+i}, 0")
    LF = V.get(16, 4); HF = [V.get(16, 4), V.get(16, 4)]
    E1, E2, E4, E8, E16, E128, E256 = [V.get(2, 2) for _ in range(7)]
    P = [V.get(2, 2) for _ in range(17)]
    W = [V.get(2, 2) for _ in range(8)]
    CV = V.get(16)
    x0 = V.get(); x1 = V.get(); x2 = V.get(); x3 = V.get(); xr = V.get(); xi = V.get()
    vm.wait("P")
    def expk(dst, k, conj):
        if k == 1:
            a(f"v_exp_f32 v{x0}, v{xr}")
            a(f"v_fract_f32 v{x1}, v{xi}")
        else:
            a(f"v_mul_f32 v{x0}, {fl(float(k))}, v{xr}")
            a(f"v_mul_f32 v{x1}, {fl(float(k))}, v{xi}")
            a(f"v_exp_f32 v{x0}, v{x0}")
            a(f"v_fract_f32 v{x1}, v{x1}")
        a(f"v_cos_f32 v{dst}, v{x1}")
        a(f"v_sin_f32 v{dst+1}, v{x1}")
        a(f"v_mul_f32 v{dst}, v{x0}, v{dst}")
        if conj: a(f"v_mul_f32 v{dst+1}, -v{x0}, v{dst+1}")
        else: a(f"v_mul_f32 v{dst+1}, v{x0}, v{dst+1}")
    def wr_rows(vals, n):
        i = 0
        while i < n:
            if i + 1 < n:
                lg.issue(f"ds_write2_b32 v{vfw}, v{vals[i]}, v{vals[i+1]} offset0:{4*i} offset1:{4*i+4}", "W"); i += 2
            else:
                lg.issue(f"ds_write_b32 v{vfw}, v{vals[i]} offset:{16*i}", "W"); i += 1
    def rd_frags(dst, tag):
        for s in range(4):
            lg.issue(f"ds_read_b128 v[{dst+4*s}:{dst+4*s+3}], v{vfr} offset:{1088*s}", tag)
    def mf(t, H):
        for s in range(4):
            a(f"v_mfma_f32_16x16x32_bf16 v[{ACC[t]}:{ACC[t]+3}], v[{H+4*s}:{H+4*s+3}], v[{LF+4*s}:{LF+4*s+3}], v[{ACC[t]}:{ACC[t]+3}]")
    def cv(dst, z): a(f"v_cvt_pk_bf16_f32 v{dst}, v{z}, v{z+1}")
    pend = None
    for ps in range(2):
        def unp(dst, src):
            if ps == 0: a(f"v_lshlrev_b32 v{dst}, 16, v{src}")
            else: a(f"v_and_b32 v{dst}, 0xffff0000, v{src}")
        unp(x0, PR + 0)
        a(f"v_mul_f32 v{x0}, {fl(LOG2E)}, v{x0}")
        a(f"v_exp_f32 v{x0}, v{x0}")
        unp(x1, PR + 1)
        unp(x2, PR + 2)
        unp(x3, PR + 3)
        bf16r(a, x0, x0)
        a(f"v_mul_f32 v{xr}, v{x0}, v{vdt}")
        a(f"v_mul_f32 v{xi}, v{x1}, v{vdt}")
        a(f"v_mul_f32 v{xr}, {fl(-LOG2E)}, v{xr}")
        a(f"v_mul_f32 v{xi}, {fl(1.0/(2*math.pi))}, v{xi}")
        a(f"v_mul_f32 v{x2}, v{x2}, v{vdt}")
        a(f"v_mul_f32 v{x3}, v{x3}, v{vdt}")
        a(f"v_add_f32 v{P[0]}, v{x2}, v{x2}")
        a(f"v_add_f32 v{P[0]+1}, v{x3}, v{x3}")
        expk(E8, 8, True)
        expk(E128, 128, False)
        expk(E1, 1, False)
        if pend is not None:
            lg.wait(pend[2]); mf(pend[0], pend[1]); pend = None
        cmul2(a, [(E16, E8, E8), (E256, E128, E128), (E2, E1, E1), (P[1], P[0], E128)])
        a(f"v_mov_b32 v{CV}, 0x3f80")
        cv(CV + 1, E8); cv(CV + 2, E16)
        ev, od = E16, E8
        wi = 0
        cur_e, cur_o = E16, E8
        first = True
        for k in range(1, 8):
            no = W[wi % 4]; ne = W[(wi + 1) % 4]; wi += 2
            items = [(no, cur_o, E16)]
            if 2*k + 2 <= 14: items.append((ne, cur_e, E16))
            if k == 1: items.append((E4, E2, E2))
            items.append((P[2*k], P[2*k-2], E256)); items.append((P[2*k+1], P[2*k-1], E256))
            cmul2(a, items)
            cv(CV + 2*k + 1, no)
            if 2*k + 2 <= 14: cv(CV + 2*k + 2, ne)
            cur_o, cur_e = no, ne
        cmul2(a, [(P[16], P[14], E256)])
        wr_rows([CV + i for i in range(16)], 16)
        rd_frags(LF, "L")
        cv(CV + 0, P[0]); cv(CV + 8, P[1])
        c0, c1 = P[0], P[1]
        for b in range(1, 8):
            n0 = W[(2*b) % 4]; n1 = W[(2*b + 1) % 4]
            cmul2(a, [(n0, c0, E1), (n1, c1, E1)])
            cv(CV + b, n0); cv(CV + 8 + b, n1)
            c0, c1 = n0, n1
        wr_rows([CV + i for i in range(16)], 16)
        rd_frags(HF[0], "A")
        cv(CV + 0, P[2]); cv(CV + 4, P[3])
        c0, c1 = P[2], P[3]
        for b in range(1, 4):
            n0 = W[(2*b) % 4]; n1 = W[(2*b + 1) % 4]
            cmul2(a, [(n0, c0, E2), (n1, c1, E2)])
            cv(CV + b, n0); cv(CV + 4 + b, n1)
            c0, c1 = n0, n1
        cmul2(a, [(W[4+i], P[4+i], E4) for i in range(4)])
        for i in range(4):
            cv(CV + 8 + 2*i, P[4+i]); cv(CV + 9 + 2*i, W[4+i])
        wr_rows([CV + i for i in range(16)], 16)
        lg.wait("A"); mf(0, HF[0])
        rd_frags(HF[1], "B")
        for i in range(9): cv(CV + i, P[8+i])
        wr_rows([CV + i for i in range(9)], 9)
        lg.wait("B"); mf(1, HF[1])
        rd_frags(HF[0], "C")
        pend = (2, HF[0], "C")
        if ps == 0 and "mid_kgen" in hooks: hooks["mid_kgen"](a, V, vm, lg)
    lg.wait(pend[2]); mf(pend[0], pend[1])
    a(f"v_add_f32 v{ACC[0]}, v{ACC[0]}, v{vds}")
    lg.waitall()
    a("s_barrier")
    for r in range(4): lg.issue(f"ds_add_f32 v{vsa}, v{ACC[0]+r} offset:{4*r}")
    for r in range(4): lg.issue(f"ds_add_f32 v{(vsb0, vsb1)[r>>1]}, v{ACC[1]+r} offset:{4*(r&1)}")
    for r in range(4): lg.issue(f"ds_add_f32 v{vsc}, v{ACC[2]+r} offset:{64*r}")
    if "wait_ln" in hooks: hooks["wait_ln"](a, V, vm, lg)
    vuo = V.get()
    a(f"v_lshrrev_b32 v{vt}, 2, v{vlane}")
    a(f"v_lshlrev_b32 v{vuo}, 4, v{vt}")
    a(f"v_and_b32 v{vt}, 3, v{vlane}")
    a(f"v_lshl_add_u32 v{vuo}, v{vt}, 1, v{vuo}")
    a(f"s_mul_i32 s{sUB}, s{sCH}, {U_SZ}")
    a(f"s_mul_i32 s{sT0}, s{sD}, {XNT_PITCH}")
    a(f"s_mul_i32 s{sT1}, s{sHW}, {9*256}")
    a(f"s_add_u32 s{sT0}, s{sT0}, s{sT1}")
    a(f"s_add_u32 s{sT0}, s{sT0}, {WS_XNT + 98}")
    a(f"s_mul_i32 s{sT1}, s{sHW}, {9*1024}")
    a(f"s_add_u32 s{sT1}, s{sT1}, s{sUB}")
    for k in range(9):
        if k == 8:
            lsk = a.newlabel("SSM_SK")
            a(f"s_cmp_eq_u32 s{sHW}, 1")
            a(f"s_cbranch_scc1 {lsk}")
        a(f"s_add_u32 m0, s{sT1}, {1024*k}")
        a(f"s_add_u32 s{sT2}, s{sT0}, {256*k}")
        a(f"buffer_load_dwordx4 v{vuo}, s[{SWS}:{SWS+3}], s{sT2} offen sc1 lds")
        if k == 8: a.label(lsk)
    lg.waitall()
    a("s_barrier")
    G = V.get(16)
    for i in range(16): lg.issue(f"ds_read_b32 v{G+i}, v{GI+i}", ("G", i // 2))
    vkw = V.get()
    a(f"s_mul_i32 s{sT0}, s{sCH}, {KR_SZ}")
    a(f"s_add_u32 s{sT0}, s{sT0}, {L_KR}")
    a(f"v_lshl_add_u32 v{vkw}, v{vtau}, 2, s{sT0}")
    for k in range(8):
        lg.wait(("G", k))
        a(f"v_cvt_pk_bf16_f32 v{G+2*k}, v{G+2*k}, v{G+2*k+1}")
        if k % 2 == 1:
            lg.issue(f"ds_write2st64_b32 v{vkw}, v{G+2*k-2}, v{G+2*k} offset0:{2*(k-1)} offset1:{2*k}", "KW")
    V.release(mark)
    vA1 = V.get(); vA2 = V.get(); vB = V.get()
    a(f"v_and_b32 v{vt}, 15, v{vlane}")
    a(f"v_lshrrev_b32 v{vt2}, 4, v{vlane}")
    a(f"v_lshl_add_u32 v{vt3}, v{vt2}, 3, v{vt}")
    a(f"v_lshrrev_b32 v{vA1}, 3, v{vt3}")
    a(f"v_lshlrev_b32 v{vA1}, 6, v{vA1}")
    a(f"v_and_b32 v{vA2}, 3, v{vt3}")
    a(f"v_lshl_add_u32 v{vA1}, v{vA2}, 4, v{vA1}")
    a(f"s_lshl_b32 s{sT0}, s{sHW}, 10")
    a(f"s_add_u32 s{sT0}, s{sT0}, s{sUB}")
    a(f"v_add_u32 v{vA1}, s{sT0}, v{vA1}")
    a(f"v_bfe_u32 v{vt3}, v{vt3}, 2, 1")
    a(f"v_mul_u32_u24 v{vA2}, 56, v{vt3}")
    a(f"v_lshl_add_u32 v{vA1}, v{vt3}, 3, v{vA1}")
    a(f"v_mul_u32_u24 v{vA2}, 48, v{vt3}")
    a(f"v_add3_u32 v{vA2}, v{vA2}, v{vA1}, 8")
    a(f"s_mul_i32 s{sT0}, s{sCH}, {KR_SZ}")
    a(f"s_lshl_b32 s{sT1}, s{sHW}, 8")
    a(f"s_add_u32 s{sT0}, s{sT0}, s{sT1}")
    a(f"s_add_u32 s{sT0}, s{sT0}, {L_KR + 480}")
    a(f"v_lshlrev_b32 v{vt}, 5, v{vt}")
    a(f"v_sub_u32 v{vB}, s{sT0}, v{vt}")
    a(f"v_lshl_add_u32 v{vB}, v{vt2}, 4, v{vB}")
    YA = [V.get(4, 4) for _ in range(8)]
    AF = [[V.get(4, 4) for _ in range(8)] for _ in range(2)]
    BFr = [[V.get(4, 4) for _ in range(8)] for _ in range(2)]
    for c in range(8):
        for i in range(4): a(f"v_mov_b32 v{YA[c]+i}, 0")
    a("s_waitcnt vmcnt(0) lgkmcnt(0)"); vm.cleared(); lg.cleared()
    a("s_barrier")
    def reads(ph):
        st = ph % 2; l = []
        for T in range(8):
            b = BFr[st][T]
            l.append(f"ds_read_b128 v[{b}:{b+3}], v{vB} offset:{512*T + 64*ph}")
            f = AF[st][T]
            l.append(f"ds_read_b64 v[{f}:{f+1}], v{vA1} offset:{2048*T + 256*ph}")
            l.append(f"ds_read_b64 v[{f+2}:{f+3}], v{vA2} offset:{2048*T + 256*ph}")
        return l
    def mfmas(ph):
        st = ph % 2; l = []
        for T in range(8):
            for c in range(T, 8):
                bp = T - c + 7
                l.append(f"v_mfma_f32_16x16x32_bf16 v[{YA[c]}:{YA[c]+3}], v[{AF[st][T]}:{AF[st][T]+3}], v[{BFr[st][bp]}:{BFr[st][bp]+3}], v[{YA[c]}:{YA[c]+3}]")
        return l
    for l in reads(0): a(l)
    for ph in range(4):
        a("s_waitcnt lgkmcnt(0)")
        mm = mfmas(ph)
        rd = reads(ph + 1) if ph < 3 else []
        k = 0
        for i, m in enumerate(mm):
            a(m)
            if k < len(rd) and i < 30:
                a(rd[k]); k += 1
        while k < len(rd): a(rd[k]); k += 1
    vrw = V.get(); vrr = V.get(); vso = V.get()
    a(f"s_mul_i32 s{sT0}, s{sW}, {FR_SZ}")
    a(f"s_add_u32 s{sT0}, s{sT0}, {L_FR}")
    a(f"v_lshl_add_u32 v{vrw}, v{vlane}, 4, s{sT0}")
    a(f"s_xor_b32 s{sT1}, s{sW}, 1")
    a(f"s_mul_i32 s{sT0}, s{sT1}, {FR_SZ}")
    a(f"s_add_u32 s{sT0}, s{sT0}, {L_FR}")
    a(f"v_lshl_add_u32 v{vrr}, v{vlane}, 4, s{sT0}")
    a(f"v_and_b32 v{vt}, 15, v{vlane}")
    a(f"v_lshlrev_b32 v{vso}, 5, v{vt}")
    a(f"v_bfe_u32 v{vt}, v{vlane}, 4, 1")
    a(f"v_lshl_add_u32 v{vso}, v{vt}, 9, v{vso}")
    a(f"v_lshrrev_b32 v{vt}, 5, v{vlane}")
    a(f"v_lshl_add_u32 v{vso}, v{vt}, 4, v{vso}")
    a(f"s_lshl_b32 s{sT0}, s{sD}, 12")
    a(f"s_lshl_b32 s{sT1}, s{sHW}, 11")
    a(f"s_add_u32 s{sT0}, s{sT0}, s{sT1}")
    a(f"s_add_u32 s{sT0}, s{sT0}, {WS_ST}")
    R = AF[0][0]
    O = AF[1][0]
    lh1 = a.newlabel("SSM_H1"); lend = a.newlabel("SSM_RE")
    a(f"s_cmp_eq_u32 s{sHW}, 1")
    a(f"s_cbranch_scc1 {lh1}")
    for hw in range(2):
        if hw == 1: a.label(lh1)
        mine = range(4*hw, 4*hw + 4); other = range(4*(1-hw), 4*(1-hw) + 4)
        for i, c in enumerate(other):
            a(f"ds_write_b128 v{vrw}, v[{YA[c]}:{YA[c]+3}] offset:{1024*i}")
        a("s_waitcnt lgkmcnt(0)")
        a("s_barrier")
        for i in range(4):
            a(f"ds_read_b128 v[{R+4*i}:{R+4*i+3}], v{vrr} offset:{1024*i}")
        for i, c in enumerate(mine):
            a(f"s_waitcnt lgkmcnt({3-i})")
            a(f"v_pk_add_f32 v[{R+4*i}:{R+4*i+1}], v[{R+4*i}:{R+4*i+1}], v[{YA[c]}:{YA[c]+1}]")
            a(f"v_pk_add_f32 v[{R+4*i+2}:{R+4*i+3}], v[{R+4*i+2}:{R+4*i+3}], v[{YA[c]+2}:{YA[c]+3}]")
            a(f"v_cvt_pk_bf16_f32 v{O+2*i}, v{R+4*i}, v{R+4*i+1}")
            a(f"v_cvt_pk_bf16_f32 v{O+2*i+1}, v{R+4*i+2}, v{R+4*i+3}")
        if hw == 0: a(f"s_branch {lend}")
    a.label(lend)
    for p in range(2):
        a(f"v_permlane16_swap_b32 v{O+4*p}, v{O+4*p+2}")
        a(f"v_permlane16_swap_b32 v{O+4*p+1}, v{O+4*p+3}")
    for p in range(2):
        a(f"buffer_store_dwordx4 v[{O+4*p}:{O+4*p+3}], v{vso}, s[{SWS}:{SWS+3}], s{sT0} offen offset:{1024*p} sc1")
    if "done" in hooks: hooks["done"](a, V, SWS)
    return V
```

```python
class Cnt:
    def __init__(self, a, kind, maxc):
        self.a = a; self.kind = kind; self.maxc = maxc
        self.q = []
    def issue(self, text, tag=None):
        self.a(text); self.q.append(tag)
    def note(self, tag=None):
        self.q.append(tag)
    def need(self, tags):
        if not isinstance(tags, (list, set)): tags = [tags]
        last = -1
        for i, t in enumerate(self.q):
            if t in tags: last = i
        if last < 0: return None
        return len(self.q) - 1 - last
    def wait(self, tags):
        n = self.need(tags)
        if n is None: return
        n = min(n, self.maxc)
        self.a(f"s_waitcnt {self.kind}({n})")
        self.q = self.q[len(self.q) - n:] if n > 0 else []
    def waitall(self):
        if self.q:
            self.a(f"s_waitcnt {self.kind}(0)")
        self.q = []
    def cleared(self):
        self.q = []
def both(a, vm, lg, vtags, ltags):
    nv = vm.need(vtags) if vtags is not None else None
    nl = lg.need(ltags) if ltags is not None else None
    parts = []
    if nv is not None:
        nv = min(nv, vm.maxc); parts.append(f"vmcnt({nv})"); vm.q = vm.q[len(vm.q) - nv:] if nv > 0 else []
    if nl is not None:
        nl = min(nl, lg.maxc); parts.append(f"lgkmcnt({nl})"); lg.q = lg.q[len(lg.q) - nl:] if nl > 0 else []
    if parts: a("s_waitcnt " + " ".join(parts))
```

```python
import sys
from common import *
import prep

def build_multi(parts):
    text = []; desc = []; launches = []
    if "prep" in parts:
        a = Asm()
        a("s_cmp_ge_u32 s2, 64")
        a("s_cbranch_scc1 PREP_EXIT")
        a("s_mov_b32 s3, s2")
        hi = prep.gen_prep(a, 3)
        a.label("PREP_EXIT")
        a("s_endpgm")
        text.append(kernel_text("prep_kernel", a.finish())); desc.append(kernel_desc("prep_kernel", 256))
        launches.append("; @launch kernel=prep_kernel grid=(64,1,1) block=(256,1,1) lds=81920")
    if "g1" in parts:
        import mlp
        a = Asm()
        a("s_cmp_ge_u32 s2, 224")
        a("s_cbranch_scc1 G1_EXIT")
        a("s_mov_b32 s3, s2")
        mlp.gen_g1(a, 3)
        a.label("G1_EXIT")
        a("s_endpgm")
        text.append(kernel_text("g1_kernel", a.finish())); desc.append(kernel_desc("g1_kernel", 256))
        launches.append("; @launch kernel=g1_kernel grid=(224,1,1) block=(256,1,1) lds=81920")
    if "ssm" in parts:
        import ssm
        a = Asm()
        a("s_cmp_ge_u32 s2, 224")
        a("s_cbranch_scc1 SSM_EXIT")
        a("s_mov_b32 s3, s2")
        ssm.gen_ssm(a, 3)
        a.label("SSM_EXIT")
        a("s_endpgm")
        text.append(kernel_text("ssm_kernel", a.finish())); desc.append(kernel_desc("ssm_kernel", 256))
        launches.append("; @launch kernel=ssm_kernel grid=(224,1,1) block=(256,1,1) lds=81920")
    if "g2" in parts:
        import mlp
        a = Asm()
        a("s_cmp_ge_u32 s2, 224")
        a("s_cbranch_scc1 G2_EXIT")
        a("s_mov_b32 s3, s2")
        import g2
        S = dict(X=4, W2=8, WS=12, OUT=24, B2=28, W=32, K=35, J7=36, JM=37, T0=45, T1=46, T2=47, T3=48, G2A=40, G2B=41, G2C=42, G2D=43)
        for nm, ka in (("X","x"),("W2","w2"),("WS","ws"),("OUT","out"),("B2","b2")):
            a(f"s_load_dwordx2 s[{S[nm]}:{S[nm]+1}], s[0:1], {KA[ka]}")
        mlp.mlp_ids(a, 3, 33, 34, 35, 36, 37)
        a("v_lshrrev_b32 v1, 6, v0")
        a("v_readfirstlane_b32 s32, v1")
        a("s_waitcnt lgkmcnt(0)")
        srd_fin(a, 4, X_BYTES); srd_fin(a, 8, W_BYTES); srd_fin(a, 12, WS_SIZE); srd_fin(a, 24, X_BYTES); srd_fin(a, 28, D*2)
        g2.gen_g2(a, S, standalone=True)
        a.label("G2_EXIT")
        a("s_endpgm")
        text.append(kernel_text("g2_kernel", a.finish())); desc.append(kernel_desc("g2_kernel", 256))
        launches.append("; @launch kernel=g2_kernel grid=(224,1,1) block=(256,1,1) lds=81920")
    out = HEADER + "\n".join(launches) + "\n" + '.amdgcn_target "amdgcn-amd-amdhsa--gfx950"\n.text\n' + "\n".join(text)
    out += '.section .rodata,"a"\n.p2align 6\n' + "\n".join(desc)
    return out

if __name__ == "__main__":
    mode = sys.argv[1]; outp = sys.argv[2]
    if mode.startswith("multi:"):
        s = build_multi(mode[6:].split(","))
    open(outp, "w").write(s)
    print("wrote", outp, len(s))
```

```python
from asm import Asm, VAlloc, vr, sr
KN = "recurrent_scan__ssm_conv_s4d__mixer_channel_mlp__prompt"
KA = dict(x=0, lar=8, aim=16, cre=24, cim=32, ldt=40, dsk=48, w1=64, b1=72, w2=80, b2=88, out=96, dbg=104, ws=112)
L, D, N, F = 2048, 448, 256, 1792
XNT_PITCH = 4224
WS_XNT = 0
WS_STAT = 0x1D0000
WS_FLAG = 0x1E0000
FL_LN = WS_FLAG
FL_H = WS_FLAG + 0x1000
FL_S = WS_FLAG + 0x2000
WS_TS = 0xD00000
TS0 = 64
import os
PROF = os.environ.get("PROF", "") != ""
POLL_MAX = 4000
WS_W2F = 0x200000
WS_ST = 0x400000
WS_HF = 0x600000
WS_SIZE = 0xE00000
SRD3 = 0x00020000
X_BYTES = L * D * 2
W_BYTES = D * F * 2

def f32bits(x):
    import struct
    return struct.unpack("<I", struct.pack("<f", x))[0]
def fl(x): return "0x%08x" % f32bits(x)

def srd(a, s, ka, nbytes):
    a(f"s_load_dwordx2 s[{s}:{s+1}], s[0:1], {ka}")
def srd_fin(a, s, nbytes):
    a(f"s_mov_b32 s{s+2}, {nbytes}")
    a(f"s_mov_b32 s{s+3}, 0x{SRD3:08x}")

def bf16r(a, dst, src, tmp=None):
    a(f"v_cvt_pk_bf16_f32 v{dst}, v{src}, v{src}")
    a(f"v_and_b32 v{dst}, 0xffff0000, v{dst}")

def kernel_text(name, body, vgpr=256, sgpr=102):
    return f""".globl {name}
.p2align 8
.type {name},@function
{name}:
{body}
"""
def kernel_desc(name, vgpr=256, sgpr=96):
    acc = min(256, (vgpr + 3) // 4 * 4)
    return f""".amdhsa_kernel {name}
  .amdhsa_next_free_vgpr {vgpr}
  .amdhsa_next_free_sgpr {sgpr}
  .amdhsa_accum_offset {acc}
  .amdhsa_group_segment_fixed_size 0
  .amdhsa_kernarg_size 120
  .amdhsa_user_sgpr_count 2
  .amdhsa_user_sgpr_kernarg_segment_ptr 1
  .amdhsa_system_sgpr_workgroup_id_x 1
.end_amdhsa_kernel
"""
HEADER = open("cdna_kernels/" + KN + ".s.ref").read().split("; Override launch geometry")[0]

class Stamps:
    def __init__(self, a): self.a = a; self.n = 0
    def __call__(self, name=None):
        if not PROF: return
        assert self.n < 16
        self.a(f"s_memrealtime s[{TS0+2*self.n}:{TS0+2*self.n+1}]")
        self.n += 1
    def at(self, idx):
        if not PROF: return
        self.a(f"s_memrealtime s[{TS0+2*idx}:{TS0+2*idx+1}]")
        self.n = max(self.n, idx + 1)
    def flush(self, SWS, vtmp, vtmp2, n=16):
        if not PROF: return
        a = self.a
        a("s_waitcnt lgkmcnt(0)")
        a(f"v_lshrrev_b32 v{vtmp}, 6, v0")
        a(f"v_lshlrev_b32 v{vtmp}, 6, v{vtmp}")
        a(f"s_lshl_b32 s96, s2, 8")
        a(f"s_add_u32 s96, s96, {WS_TS}")
        for i in range(n):
            a(f"v_mov_b32 v{vtmp2}, s{TS0+2*i}")
            a(f"buffer_store_dword v{vtmp2}, v{vtmp}, s[{SWS}:{SWS+3}], s96 offen offset:{4*i}")


def poll_eq(a, nlanes, vaddr, srd_, soff, vtmp, sExp, sCnt, sSave=None, sleep=0):
    lp = a.newlabel("POLL"); dn = a.newlabel("POLLD")
    mask = (1 << nlanes) - 1
    if nlanes == 64: a("s_mov_b64 exec, -1")
    elif nlanes <= 6: a(f"s_mov_b64 exec, {mask}")
    else:
        a(f"s_mov_b32 exec_lo, 0x{mask & 0xffffffff:x}")
        a(f"s_mov_b32 exec_hi, 0x{mask >> 32:x}")
    a(f"s_mov_b32 s{sCnt}, {POLL_MAX}")
    a.label(lp)
    a(f"buffer_load_dword v{vtmp}, v{vaddr}, s[{srd_}:{srd_+3}], s{soff} offen sc1")
    a(f"s_sub_u32 s{sCnt}, s{sCnt}, 1")
    a(f"s_cbranch_scc1 {dn}")
    a("s_waitcnt vmcnt(0)")
    a(f"v_cmp_ne_u32 vcc, s{sExp}, v{vtmp}")
    a("s_cmp_eq_u64 vcc, 0")
    a(f"s_cbranch_scc0 {lp}")
    a.label(dn)
    a("s_waitcnt vmcnt(0)")
    a("s_mov_b64 exec, -1")
```

```python
from common import *
from track import Cnt, both

import os
DBG = os.environ.get('G2DBG', '')
NA = 10
NB = 8
RING = 10
WREG = 20480

PV = 250

def g2_early(a, S, vm, vlane, vt, vt2, vt3):
    SW2 = S["W2"]; sW, sK, sJ7, sJm = S["W"], S["K"], S["J7"], S["JM"]
    sT0 = S["T0"]; sWB, sRB, sLB2 = S["G2A"], S["G2B"], S["G2C"]
    vwo = PV
    a(f"s_lshl_b32 s{sLB2}, s{sK}, 2")
    a(f"s_add_u32 s{sLB2}, s{sLB2}, s{sJ7}")
    a(f"v_lshrrev_b32 v{vt}, 3, v{vlane}")
    a(f"v_mul_u32_u24 v{vwo}, 896, v{vt}")
    a(f"v_and_b32 v{vt2}, 7, v{vlane}")
    a(f"v_bfe_u32 v{vt3}, v{vlane}, 4, 1")
    a(f"v_lshlrev_b32 v{vt3}, 2, v{vt3}")
    a(f"v_xor_b32 v{vt2}, v{vt2}, v{vt3}")
    a(f"v_lshl_add_u32 v{vwo}, v{vt2}, 4, v{vwo}")
    a(f"s_mul_i32 s{sWB}, s{sW}, {448*896}")
    a(f"s_lshl_b32 s{sT0}, s{sJm}, 7")
    a(f"s_add_u32 s{sWB}, s{sWB}, s{sT0}")
    a(f"s_mul_i32 s{sRB}, s{sW}, {WREG}")
    for k in range(RING): g2_dma(a, S, vm, k)

def g2_dma(a, S, vm, k):
    slot = k % RING
    for half in range(2):
        a(f"s_add_u32 m0, s{S['G2B']}, {slot*2048 + half*1024}")
        a(f"s_add_u32 s{S['T0']}, s{S['G2A']}, {(16*k + 8*half)*896}")
        vm.issue(f"buffer_load_dwordx4 v{PV}, s[{S['W2']}:{S['W2']+3}], s{S['T0']} offen lds", ("D", k))

def gen_g2(a, S, hooks=None, vbase=1, standalone=False, vm=None, ts=None):
    hooks = hooks or {}
    SX, SW2, SWS, SOUT, SB2 = S["X"], S["W2"], S["WS"], S["OUT"], S["B2"]
    sW, sK, sJ7, sJm = S["W"], S["K"], S["J7"], S["JM"]
    sT0, sT1, sT2, sT3 = S["T0"], S["T1"], S["T2"], S["T3"]
    sWB, sRB, sLB2, sBO = S["G2A"], S["G2B"], S["G2C"], S["G2D"]
    V = VAlloc(vbase)
    V.limit = PV
    early_done = vm is not None
    if vm is None: vm = Cnt(a, "vmcnt", 63)
    lg = Cnt(a, "lgkmcnt", 15)
    vlane = V.get(); vt = V.get(); vt2 = V.get(); vt3 = V.get()
    a(f"v_and_b32 v{vlane}, 63, v0")
    if not early_done: g2_early(a, S, vm, vlane, vt, vt2, vt3)
    def dma(k): g2_dma(a, S, vm, k)
    vg = V.get(); vc = V.get(); vi = V.get()
    a(f"v_lshrrev_b32 v{vg}, 4, v{vlane}")
    a(f"v_bfe_u32 v{vc}, v{vlane}, 2, 2")
    a(f"v_and_b32 v{vi}, 3, v{vlane}")
    vxo = V.get()
    a(f"v_lshl_add_u32 v{vt}, v{vg}, 2, v{vi}")
    a(f"v_mul_u32_u24 v{vxo}, 896, v{vt}")
    a(f"v_lshl_add_u32 v{vxo}, v{vc}, 4, v{vxo}")
    sXO = sT3
    a(f"s_lshl_b32 s{sXO}, s{sLB2}, 2")
    a(f"s_add_u32 s{sXO}, s{sXO}, s{sW}")
    a(f"s_mul_i32 s{sXO}, s{sXO}, {16*896}")
    a(f"s_lshl_b32 s{sT0}, s{sJm}, 7")
    a(f"s_add_u32 s{sXO}, s{sXO}, s{sT0}")
    XR = V.get(8, 4); BR = V.get(8, 4)
    vb2 = V.get()
    a(f"v_lshlrev_b32 v{vb2}, 4, v{vc}")
    vm.issue(f"buffer_load_dwordx4 v[{XR}:{XR+3}], v{vxo}, s[{SX}:{SX+3}], s{sXO} offen", "X")
    vm.issue(f"buffer_load_dwordx4 v[{XR+4}:{XR+7}], v{vxo}, s[{SX}:{SX+3}], s{sXO} offen offset:64", "X")
    vm.issue(f"buffer_load_dwordx4 v[{BR}:{BR+3}], v{vb2}, s[{SB2}:{SB2+3}], s{sT0} offen", "X")
    vm.issue(f"buffer_load_dwordx4 v[{BR+4}:{BR+7}], v{vb2}, s[{SB2}:{SB2+3}], s{sT0} offen offset:64", "X")
    vA = [V.get(), V.get()]
    vhh = V.get(); vr = V.get()
    a(f"v_lshrrev_b32 v{vhh}, 5, v{vlane}")
    a(f"v_lshl_add_u32 v{vt}, v{vhh}, 2, v{vc}")
    a(f"v_lshlrev_b32 v{vt}, 7, v{vt}")
    a(f"v_bfe_u32 v{vt2}, v{vlane}, 3, 1")
    a(f"v_lshl_add_u32 v{vt}, v{vt2}, 6, v{vt}")
    a(f"v_bfe_u32 v{vt2}, v{vlane}, 4, 1")
    a(f"v_lshl_add_u32 v{vt}, v{vt2}, 5, v{vt}")
    a(f"v_lshl_add_u32 v{vt}, v{vi}, 3, v{vt}")
    a(f"v_add_u32 v{vA[0]}, s{sRB}, v{vt}")
    a(f"v_xor_b32 v{vA[1]}, 64, v{vA[0]}")
    acc = [[V.get(16, 4) for lt in range(2)] for dt in range(2)]
    AF = [V.get(8, 4) for _ in range(NA)]
    BF = [V.get(8, 4) for _ in range(NB)]
    def trread(k):
        slot = k % RING; b = AF[k % NA]
        for dt in range(2):
            lg.issue(f"ds_read_b64_tr_b16 v[{b+4*dt}:{b+4*dt+1}], v{vA[dt]} offset:{slot*2048}", ("A", k))
            lg.issue(f"ds_read_b64_tr_b16 v[{b+4*dt+2}:{b+4*dt+3}], v{vA[dt]} offset:{slot*2048+1024}", ("A", k))
    for k in range(NA):
        vm.wait(("D", k))
        trread(k)
    lg.waitall()
    for k in range(RING, 2*RING): dma(k)
    for dt in range(2):
        for lt in range(2):
            for i in range(16): a(f"v_mov_b32 v{acc[dt][lt]+i}, 0")
    if "publish_h" in hooks: hooks["publish_h"](a, V, vm, lg)
    vB = [V.get(), V.get()]
    a(f"v_lshlrev_b32 v{vt}, 4, v{vlane}")
    a(f"s_lshl_b32 s{sT0}, s{sLB2}, 1")
    a(f"s_mul_i32 s{sT0}, s{sT0}, {112*1024}")
    a(f"s_mul_i32 s{sT1}, s{sW}, {28*1024}")
    a(f"s_add_u32 s{sT0}, s{sT0}, s{sT1}")
    a(f"s_add_u32 s{sT0}, s{sT0}, {WS_HF}")
    a(f"v_add_u32 v{vB[0]}, s{sT0}, v{vt}")
    a(f"v_add_u32 v{vB[1]}, {112*1024}, v{vB[0]}")
    if "wait_h" in hooks: hooks["wait_h"](a, V, vm, lg)
    cur_bo = [None]
    def bload(k):
        blk = k // 4
        if cur_bo[0] != blk:
            a(f"s_mov_b32 s{sBO}, {blk*4096}"); cur_bo[0] = blk
        b = BF[k % NB]
        for lt in range(2):
            vm.issue(f"buffer_load_dwordx4 v[{b+4*lt}:{b+4*lt+3}], v{vB[lt]}, s[{SWS}:{SWS+3}], s{sBO} offen offset:{(k%4)*1024} sc1", ("B", k))
    for k in range(NB): bload(k)
    for k in range(28):
        both(a, vm, lg, [("B", k)], [("A", k)])
        A = AF[k % NA]; B = BF[k % NB]
        mm = []
        for dt in range(2):
            for lt in range(2):
                C = acc[dt][lt]
                mm.append(f"v_mfma_f32_32x32x16_bf16 v[{C}:{C+15}], v[{A+4*dt}:{A+4*dt+3}], v[{B+4*lt}:{B+4*lt+3}], v[{C}:{C+15}]")
        for m in mm: a(m)
        if k + NB < 28: bload(k + NB)
        if k + NA < 28:
            vm.wait(("D", k + NA))
            trread(k + NA)
        kd = k - 1 + 2*RING
        if k >= 1 and kd < 28 and kd >= 2*RING:
            lg.wait(("A", kd - RING))
            dma(kd)
        if "step" in hooks: hooks["step"](a, V, vm, lg, k)
    if ts: ts.at(9)
    if "wait_s" in hooks: hooks["wait_s"](a, V, vm, lg)
    if ts: ts.at(10)
    vso = V.get(); vso2 = V.get()
    a(f"v_lshrrev_b32 v{vt}, 3, v{vlane}")
    a(f"v_lshlrev_b32 v{vso}, 12, v{vt}")
    a(f"s_and_b32 s{sT0}, s{sW}, 1")
    a(f"s_lshl_b32 s{sT0}, s{sT0}, 2")
    a(f"v_bfe_u32 v{vt2}, v{vlane}, 4, 1")
    a(f"v_or_b32 v{vt2}, s{sT0}, v{vt2}")
    a(f"v_and_b32 v{vt3}, 7, v{vlane}")
    a(f"v_xor_b32 v{vt2}, v{vt2}, v{vt3}")
    a(f"v_lshl_add_u32 v{vso}, v{vt2}, 4, v{vso}")
    a(f"v_xor_b32 v{vso2}, 32, v{vso}")
    a(f"s_lshl_b32 s{sT0}, s{sJm}, 2")
    a(f"s_add_u32 s{sT0}, s{sT0}, s{sW}")
    a(f"s_lshl_b32 s{sT0}, s{sT0}, 16")
    a(f"s_lshl_b32 s{sT1}, s{sLB2}, 7")
    a(f"s_add_u32 s{sT0}, s{sT0}, s{sT1}")
    a(f"s_add_u32 s{sT0}, s{sT0}, {WS_ST}")
    a(f"s_add_u32 s{sT1}, s{sT0}, {8*4096}")
    lg.waitall()
    a(f"s_add_u32 m0, s{sRB}, 16384")
    vm.issue(f"buffer_load_dwordx4 v{vso}, s[{SWS}:{SWS+3}], s{sT0} offen sc1 lds", "S")
    a(f"s_add_u32 m0, s{sRB}, {16384+1024}")
    vm.issue(f"buffer_load_dwordx4 v{vso2}, s[{SWS}:{SWS+3}], s{sT1} offen sc1 lds", "S")
    vn = AF[0]; vm_ = AF[0] + 1; vpw = AF[0] + 2
    a(f"v_and_b32 v{vn}, 31, v{vlane}")
    def mfun(dst, src, tmp):
        a(f"v_and_b32 v{dst}, 1, v{src}")
        a(f"v_and_b32 v{tmp}, 2, v{src}")
        a(f"v_lshl_or_b32 v{dst}, v{tmp}, 2, v{dst}")
        a(f"v_bfe_u32 v{tmp}, v{src}, 2, 2")
        a(f"v_lshl_or_b32 v{dst}, v{tmp}, 1, v{dst}")
    mfun(vm_, vn, vt)
    a(f"v_xor_b32 v{vm_}, v{vm_}, v{vhh}")
    a(f"v_lshlrev_b32 v{vm_}, 4, v{vm_}")
    a(f"v_lshl_add_u32 v{vpw}, v{vn}, 8, v{vm_}")
    a(f"v_add_u32 v{vpw}, s{sRB}, v{vpw}")
    PA = [AF[1] + i for i in range(8)]
    for c in range(8):
        a(f"v_xor_b32 v{PA[c]}, {32*c}, v{vpw}")
    for dt in range(2):
        for q in range(4):
            for lt in range(2):
                C = acc[dt][lt] + 4*q
                lg.issue(f"ds_write_b128 v{PA[4*dt+q]}, v[{C}:{C+3}] offset:{8192*lt}", "P")
    vl = AF[2]; vmr = AF[2] + 1; vpr = AF[2] + 2
    a(f"v_lshl_add_u32 v{vl}, v{vg}, 2, v{vi}")
    mfun(vmr, vl, vt)
    a(f"v_lshlrev_b32 v{vt}, 1, v{vc}")
    a(f"v_xor_b32 v{vmr}, v{vmr}, v{vt}")
    a(f"v_lshlrev_b32 v{vmr}, 4, v{vmr}")
    a(f"s_lshl_b32 s{sT0}, s{sW}, 12")
    a(f"v_lshl_add_u32 v{vpr}, v{vl}, 8, s{sT0}")
    a(f"v_add_u32 v{vpr}, v{vpr}, v{vmr}")
    PR = [AF[3] + i for i in range(4)]
    for t in range(4):
        tc = (t & 1) + 8 * (t >> 1)
        a(f"v_xor_b32 v{PR[t]}, {16*tc}, v{vpr}")
    vsr = AF[4]
    a(f"v_lshrrev_b32 v{vt}, 1, v{vi}")
    a(f"v_mul_u32_u24 v{vsr}, {WREG}, v{vt}")
    a(f"v_and_b32 v{vt}, 1, v{vi}")
    a(f"v_lshl_add_u32 v{vt}, v{vt}, 3, v{vc}")
    a(f"v_lshl_add_u32 v{vsr}, v{vt}, 7, v{vsr}")
    a(f"v_lshrrev_b32 v{vt}, 1, v{vg}")
    a(f"s_lshl_b32 s{sT0}, s{sW}, 1")
    a(f"v_add_u32 v{vt}, s{sT0}, v{vt}")
    a(f"v_lshrrev_b32 v{vt2}, 1, v{vc}")
    a(f"v_lshl_add_u32 v{vt2}, v{vi}, 1, v{vt2}")
    a(f"v_xor_b32 v{vt}, v{vt}, v{vt2}")
    a(f"v_and_b32 v{vt}, 7, v{vt}")
    a(f"v_lshl_add_u32 v{vsr}, v{vt}, 4, v{vsr}")
    a(f"v_and_b32 v{vt}, 1, v{vg}")
    a(f"v_lshl_add_u32 v{vsr}, v{vt}, 3, v{vsr}")
    a(f"v_add_u32 v{vsr}, 16384, v{vsr}")
    a("s_waitcnt vmcnt(0) lgkmcnt(0)"); vm.cleared(); lg.cleared()
    if ts: ts.at(11)
    a("s_barrier")
    P = [[acc[src >> 1][src & 1] + 4*t for t in range(4)] for src in range(4)]
    SR = BF[0]
    for t in range(4):
        lg.issue(f"ds_read_b64_tr_b16 v[{SR+2*t}:{SR+2*t+1}], v{vsr} offset:{(t&1)*512 + (t>>1)*2*WREG}", "SR")
    for t in range(4):
        for src in range(4):
            lg.issue(f"ds_read_b128 v[{P[src][t]}:{P[src][t]+3}], v{PR[t]} offset:{src*WREG}", ("P", t))
    BU = AF[5]
    XU = AF[7]
    SU = BF[1]
    assert AF[6] == AF[5] + 8 and AF[8] == AF[7] + 8 and BF[2] == BF[1] + 8
    for i in range(8):
        a(f"v_lshlrev_b32 v{BU+2*i}, 16, v{BR+i}")
        a(f"v_and_b32 v{BU+2*i+1}, 0xffff0000, v{BR+i}")
    for i in range(8):
        a(f"v_lshlrev_b32 v{XU+2*i}, 16, v{XR+i}")
        a(f"v_and_b32 v{XU+2*i+1}, 0xffff0000, v{XR+i}")
    lg.wait("SR")
    for i in range(8):
        a(f"v_lshlrev_b32 v{SU+2*i}, 16, v{SR+i}")
        a(f"v_and_b32 v{SU+2*i+1}, 0xffff0000, v{SR+i}")
    CN = BF[3]
    a(f"v_mov_b32 v{CN}, {fl(-1.4426950408889634)}")
    a(f"v_mov_b32 v{CN+2}, 1.0")
    O = BF[4]; E = BF[5]
    OUT = BF[6]
    for t in range(4):
        lg.wait(("P", t))
        p = [P[s][t] for s in range(4)]
        for h in range(2):
            a(f"v_pk_add_f32 v[{p[0]+2*h}:{p[0]+2*h+1}], v[{p[0]+2*h}:{p[0]+2*h+1}], v[{p[1]+2*h}:{p[1]+2*h+1}]")
            a(f"v_pk_add_f32 v[{p[2]+2*h}:{p[2]+2*h+1}], v[{p[2]+2*h}:{p[2]+2*h+1}], v[{p[3]+2*h}:{p[3]+2*h+1}]")
        for h in range(2):
            a(f"v_pk_add_f32 v[{p[0]+2*h}:{p[0]+2*h+1}], v[{p[0]+2*h}:{p[0]+2*h+1}], v[{BU+4*t+2*h}:{BU+4*t+2*h+1}]")
        for h in range(2):
            a(f"v_pk_add_f32 v[{p[0]+2*h}:{p[0]+2*h+1}], v[{p[0]+2*h}:{p[0]+2*h+1}], v[{p[2]+2*h}:{p[2]+2*h+1}]")
        if DBG == "o":
            for h in range(2):
                a(f"v_cvt_pk_bf16_f32 v{OUT+2*t+h}, v{p[0]+2*h}, v{p[0]+2*h+1}")
            continue
        if DBG == "s":
            for h in range(2):
                a(f"v_cvt_pk_bf16_f32 v{OUT+2*t+h}, v{SU+4*t+2*h}, v{SU+4*t+2*h+1}")
            continue
        for h in range(2):
            a(f"v_pk_mul_f32 v[{p[1]+2*h}:{p[1]+2*h+1}], v[{p[0]+2*h}:{p[0]+2*h+1}], v[{CN}:{CN+1}] op_sel:[0,0] op_sel_hi:[1,0]")
        for i in range(4): a(f"v_exp_f32 v{p[1]+i}, v{p[1]+i}")
        for h in range(2):
            a(f"v_pk_add_f32 v[{p[1]+2*h}:{p[1]+2*h+1}], v[{p[1]+2*h}:{p[1]+2*h+1}], v[{CN+2}:{CN+3}] op_sel_hi:[1,0]")
        for i in range(4): a(f"v_rcp_f32 v{p[1]+i}, v{p[1]+i}")
        for h in range(2):
            a(f"v_pk_mul_f32 v[{p[0]+2*h}:{p[0]+2*h+1}], v[{p[0]+2*h}:{p[0]+2*h+1}], v[{p[1]+2*h}:{p[1]+2*h+1}]")
        for h in range(2):
            a(f"v_pk_fma_f32 v[{p[0]+2*h}:{p[0]+2*h+1}], v[{p[0]+2*h}:{p[0]+2*h+1}], v[{SU+4*t+2*h}:{SU+4*t+2*h+1}], v[{XU+4*t+2*h}:{XU+4*t+2*h+1}]")
        for h in range(2):
            a(f"v_cvt_pk_bf16_f32 v{OUT+2*t+h}, v{p[0]+2*h}, v{p[0]+2*h+1}")
    a(f"buffer_store_dwordx4 v[{OUT}:{OUT+3}], v{vxo}, s[{SOUT}:{SOUT+3}], s{sXO} offen")
    a(f"buffer_store_dwordx4 v[{OUT+4}:{OUT+7}], v{vxo}, s[{SOUT}:{SOUT+3}], s{sXO} offen offset:64")
    if ts: ts.at(12)
    return V
```

```python
from common import *

def interleave(main, fill, a, first=0):
    n = len(main); k = 0
    per = [(len(fill) * (i + 1)) // n - (len(fill) * i) // n for i in range(n)]
    for i, m in enumerate(main):
        a(m)
        for _ in range(per[i]):
            a(fill[k]); k += 1

def mlp_ids(a, sI, sLB, sFB, sK, sJ7, sJm):
    a(f"s_and_b32 s{sK}, s{sI}, 7")
    a(f"s_lshr_b32 s{sJm}, s{sI}, 3")
    a(f"s_mul_i32 s{sJ7}, s{sJm}, 37")
    a(f"s_lshr_b32 s{sJ7}, s{sJ7}, 8")
    a(f"s_mul_i32 s{sLB}, s{sJ7}, 7")
    a(f"s_sub_u32 s{sJm}, s{sJm}, s{sLB}")
    a(f"s_lshr_b32 s{sLB}, s{sK}, 1")
    a(f"s_lshl_b32 s{sLB}, s{sLB}, 2")
    a(f"s_add_u32 s{sLB}, s{sLB}, s{sJ7}")
    a(f"s_and_b32 s{sFB}, s{sK}, 1")
    a(f"s_mul_i32 s{sFB}, s{sFB}, 7")
    a(f"s_add_u32 s{sFB}, s{sFB}, s{sJm}")

SX, SW1, SWS, SB1 = 4, 8, 12, 16
SOUT, SB2 = 24, 28
sW, sLB, sFB, sK, sJ7, sJm = 32, 33, 34, 35, 36, 37
sC, sRD, sWR, sXO, sWO, sT0, sT1, sT2 = 40, 41, 42, 43, 44, 45, 46, 47
sM = 48
sWF, sWL = 50, 51

SW2 = 20
SDBG, sNONCE, sTG0, sTG1, sCNT, sT3 = 52, 56, 57, 58, 59, 60
G2S = dict(X=SX, W2=SW2, WS=SWS, OUT=SOUT, B2=SB2, W=sW, K=sK, J7=sJ7, JM=sJm, T0=sT0, T1=sT1, T2=sT2, T3=sT3,
           G2A=38, G2B=39, G2C=61, G2D=62)

def gen_g1(a, sI, hooks=None, fused=False, ts=None):
    V = VAlloc(1)
    V.limit = 250
    vm = None
    a(f"s_load_dwordx2 s[{SX}:{SX+1}], s[0:1], {KA['x']}")
    a(f"s_load_dwordx2 s[{SW1}:{SW1+1}], s[0:1], {KA['w1']}")
    a(f"s_load_dwordx2 s[{SWS}:{SWS+1}], s[0:1], {KA['ws']}")
    a(f"s_load_dwordx2 s[{SB1}:{SB1+1}], s[0:1], {KA['b1']}")
    if fused:
        for s_, k_ in ((SW2, 'w2'), (SOUT, 'out'), (SB2, 'b2'), (SDBG, 'dbg')):
            a(f"s_load_dwordx2 s[{s_}:{s_+1}], s[0:1], {KA[k_]}")
    mlp_ids(a, sI, sLB, sFB, sK, sJ7, sJm)
    vlane = V.get(); vt = V.get(); vt2 = V.get(); vt3 = V.get()
    a(f"v_and_b32 v{vlane}, 63, v0")
    a(f"v_lshrrev_b32 v{vt}, 6, v0")
    a(f"v_readfirstlane_b32 s{sW}, v{vt}")
    a(f"s_and_b32 s{sWF}, s{sW}, 1")
    a(f"s_lshr_b32 s{sWL}, s{sW}, 1")
    vxo = V.get(); vwo = V.get()
    a(f"v_lshrrev_b32 v{vt}, 2, v{vlane}")
    a(f"v_mul_u32_u24 v{vxo}, 896, v{vt}")
    a(f"v_lshrrev_b32 v{vt}, 4, v{vlane}")
    a(f"v_and_b32 v{vt2}, 3, v{vlane}")
    a(f"v_xor_b32 v{vt2}, v{vt}, v{vt2}")
    a(f"v_lshl_add_u32 v{vxo}, v{vt2}, 4, v{vxo}")
    a(f"s_lshl_b32 s{sT0}, s{sLB}, 7")
    a(f"s_lshl_b32 s{sT1}, s{sW}, 5")
    a(f"s_add_u32 s{sT0}, s{sT0}, s{sT1}")
    a(f"s_mul_i32 s{sXO}, s{sT0}, 896")
    a(f"v_mul_u32_u24 v{vwo}, 3584, v{vt}")
    a(f"v_lshlrev_b32 v{vt3}, 2, v{vt}")
    a(f"v_and_b32 v{vt2}, 15, v{vlane}")
    a(f"v_xor_b32 v{vt2}, v{vt3}, v{vt2}")
    a(f"v_lshl_add_u32 v{vwo}, v{vt2}, 4, v{vwo}")
    a(f"s_mul_i32 s{sWO}, s{sW}, {8*3584}")
    a(f"s_lshl_b32 s{sT0}, s{sFB}, 8")
    a(f"s_add_u32 s{sWO}, s{sWO}, s{sT0}")
    a(f"s_lshl_b32 s{sWR}, s{sW}, 11")
    a("s_waitcnt lgkmcnt(0)")
    srd_fin(a, SX, X_BYTES); srd_fin(a, SW1, W_BYTES); srd_fin(a, SWS, WS_SIZE); srd_fin(a, SB1, F*2)
    if fused:
        srd_fin(a, SW2, W_BYTES); srd_fin(a, SOUT, X_BYTES); srd_fin(a, SB2, D*2); srd_fin(a, SDBG, 256)
    def dma_list():
        l = []
        l.append(f"s_mov_b32 m0, s{sWR}")
        l.append(f"buffer_load_dwordx4 v{vxo}, s[{SX}:{SX+3}], s{sXO} offen lds")
        l.append(f"s_add_u32 m0, s{sWR}, 1024")
        l.append(f"s_add_u32 s{sT0}, s{sXO}, 14336")
        l.append(f"buffer_load_dwordx4 v{vxo}, s[{SX}:{SX+3}], s{sT0} offen lds")
        l.append(f"s_add_u32 m0, s{sWR}, 8192")
        l.append(f"s_add_u32 s{sT0}, s{sWO}, 14336")
        l.append(f"buffer_load_dwordx4 v{vwo}, s[{SW1}:{SW1+3}], s{sWO} offen lds")
        l.append(f"s_add_u32 m0, s{sWR}, 9216")
        l.append(f"s_add_u32 s{sXO}, s{sXO}, 64")
        l.append(f"buffer_load_dwordx4 v{vwo}, s[{SW1}:{SW1+3}], s{sT0} offen lds")
        l.append(f"s_add_u32 s{sWO}, s{sWO}, {32*3584}")
        l.append(f"s_add_u32 s{sWR}, s{sWR}, 16384")
        l.append(f"s_cmp_ge_u32 s{sWR}, 81920")
        l.append(f"s_cselect_b32 s{sT0}, 81920, 0")
        l.append(f"s_sub_u32 s{sWR}, s{sWR}, s{sT0}")
        return l
    vb1 = V.get(2)
    a(f"v_and_b32 v{vt}, 31, v{vlane}")
    a(f"v_lshlrev_b32 v{vt}, 1, v{vt}")
    a(f"s_lshl_b32 s{sT0}, s{sFB}, 8")
    a(f"s_lshl_b32 s{sT1}, s{sWF}, 7")
    a(f"s_add_u32 s{sT0}, s{sT0}, s{sT1}")
    a(f"buffer_load_ushort v{vb1}, v{vt}, s[{SB1}:{SB1+3}], s{sT0} offen")
    a(f"buffer_load_ushort v{vb1+1}, v{vt}, s[{SB1}:{SB1+3}], s{sT0} offen offset:64")
    for c in range(4):
        for l in dma_list(): a(l)
    vB = [V.get(), V.get()]; vA = [V.get(), V.get()]
    cB = [V.get(), V.get()]; cA = [V.get(), V.get()]
    vn = V.get(); vhh = V.get()
    a(f"v_and_b32 v{vn}, 31, v{vlane}")
    a(f"v_lshrrev_b32 v{vhh}, 5, v{vlane}")
    a(f"v_bfe_u32 v{vt}, v{vn}, 2, 2")
    a(f"v_xor_b32 v{vt}, v{vt}, v{vhh}")
    a(f"s_lshl_b32 s{sT0}, s{sWL}, 12")
    a(f"v_lshl_add_u32 v{vt2}, v{vn}, 6, s{sT0}")
    a(f"v_lshl_add_u32 v{vB[0]}, v{vt}, 4, v{vt2}")
    a(f"v_xor_b32 v{vB[1]}, 32, v{vB[0]}")
    vr_ = V.get()
    a(f"v_bfe_u32 v{vr_}, v{vlane}, 2, 2")
    a(f"v_lshl_add_u32 v{vt}, v{vhh}, 3, v{vr_}")
    a(f"v_lshlrev_b32 v{vt}, 8, v{vt}")
    a(f"v_bfe_u32 v{vt2}, v{vlane}, 4, 1")
    a(f"v_lshl_add_u32 v{vt}, v{vt2}, 5, v{vt}")
    a(f"v_and_b32 v{vt2}, 3, v{vlane}")
    a(f"v_lshl_add_u32 v{vt}, v{vt2}, 3, v{vt}")
    a(f"v_add_u32 v{vt}, 8192, v{vt}")
    a(f"s_lshl_b32 s{sT0}, s{sWF}, 1")
    a(f"v_xor_b32 v{vt2}, s{sT0}, v{vr_}")
    a(f"v_lshl_add_u32 v{vA[0]}, v{vt2}, 6, v{vt}")
    a(f"v_xor_b32 v{vA[1]}, 64, v{vA[0]}")
    acc = [[V.get(16, 4) for lt in range(2)] for ft in range(2)]
    fa = [[[V.get(4, 4) for s in range(2)] for ft in range(2)] for p in range(2)]
    fb = [[[V.get(4, 4) for s in range(2)] for lt in range(2)] for p in range(2)]
    cs = [V.get(), V.get()]
    ones = V.get()
    ST = [V.get(8, 4), V.get(8, 4)]
    vso = V.get()
    vD = V.get(); vl4 = V.get()
    a(f"v_lshlrev_b32 v{vl4}, 2, v{vlane}")
    for ft in range(2):
        for lt in range(2):
            for i in range(16): a(f"v_mov_b32 v{acc[ft][lt]+i}, 0")
    a(f"v_mov_b32 v{cs[0]}, 0"); a(f"v_mov_b32 v{cs[1]}, 0")
    a(f"v_mov_b32 v{ones}, 0x3f803f80")
    a(f"v_lshlrev_b32 v{vso}, 5, v{vn}")
    a(f"s_mov_b32 s{sRD}, 0")
    a(f"s_mov_b32 s{sC}, 0")

    def reads(p):
        l = []
        for k in range(2): l.append(f"v_add_u32 v{cB[k]}, s{sRD}, v{vB[k]}")
        for k in range(2): l.append(f"v_add_u32 v{cA[k]}, s{sRD}, v{vA[k]}")
        for s in range(2):
            for lt in range(2):
                l.append(f"ds_read_b128 v[{fb[p][lt][s]}:{fb[p][lt][s]+3}], v{cB[s]} offset:{2048*lt}")
            for ft in range(2):
                b = fa[p][ft][s]
                l.append(f"ds_read_b64_tr_b16 v[{b}:{b+1}], v{cA[ft]} offset:{4096*s}")
                l.append(f"ds_read_b64_tr_b16 v[{b+2}:{b+3}], v{cA[ft]} offset:{4096*s+1024}")
        l.append(f"s_add_u32 s{sRD}, s{sRD}, 16384")
        l.append(f"s_cmp_ge_u32 s{sRD}, 81920")
        l.append(f"s_cselect_b32 s{sT2}, 81920, 0")
        l.append(f"s_sub_u32 s{sRD}, s{sRD}, s{sT2}")
        return l
    def mfmas(p):
        l = []
        for s in range(2):
            for ft in range(2):
                for lt in range(2):
                    A = fa[p][ft][s]; B = fb[p][lt][s]; C = acc[ft][lt]
                    l.append(f"v_mfma_f32_32x32x16_bf16 v[{C}:{C+15}], v[{A}:{A+3}], v[{B}:{B+3}], v[{C}:{C+15}]")
        return l
    def dots(p):
        l = []
        for s in range(2):
            for i in range(4):
                for ft in range(2):
                    l.append(f"v_dot2c_f32_bf16 v{cs[ft]}, v{fa[p][ft][s]+i}, v{ones}")
        return l
    def stat_loads():
        l = []
        l.append(f"s_lshl_b32 s{sT0}, s{sLB}, 12")
        l.append(f"s_lshl_b32 s{sT1}, s{sWL}, 11")
        l.append(f"s_add_u32 s{sT0}, s{sT0}, s{sT1}")
        l.append(f"s_add_u32 s{sT0}, s{sT0}, {WS_STAT}")
        for lt in range(2):
            l.append(f"buffer_load_dwordx4 v[{ST[lt]}:{ST[lt]+3}], v{vso}, s[{SWS}:{SWS+3}], s{sT0} offen offset:{1024*lt} sc1")
            l.append(f"buffer_load_dwordx4 v[{ST[lt]+4}:{ST[lt]+7}], v{vso}, s[{SWS}:{SWS+3}], s{sT0} offen offset:{1024*lt+16} sc1")
        if fused:
            l.append(f"buffer_load_dword v{vD}, v{vl4}, s[{SDBG}:{SDBG+3}], 0 offen sc1")
        return l
    NS = 5 if fused else 4
    a("s_waitcnt vmcnt(12)")
    a("s_barrier")
    for l in dma_list(): a(l)
    for l in reads(0): a(l)
    a(f"s_mov_b32 s{sC}, 1")
    lp = a.newlabel("G1_LOOP")
    a.label(lp)
    a("s_waitcnt vmcnt(12) lgkmcnt(0)")
    a("s_barrier")
    l1 = a.newlabel("G1_ND")
    rd = reads(1); mm = mfmas(0); dd = dots(0)
    a(mm[0])
    for l in rd[:10]: a(l)
    a(mm[1])
    for l in rd[10:]: a(l)
    a(f"s_cmp_gt_u32 s{sC}, 9")
    a(f"s_cbranch_scc1 {l1}")
    for l in dma_list(): a(l)
    a.label(l1)
    interleave(mm[2:], dd, a)
    l2 = a.newlabel("G1_W8"); l3 = a.newlabel("G1_W12"); l4 = a.newlabel("G1_ST"); l5 = a.newlabel("G1_ND")
    a(f"s_cmp_eq_u32 s{sC}, 11")
    a(f"s_cbranch_scc0 {l3}")
    a(f"s_waitcnt vmcnt({4+NS})")
    a.label(l3)
    a("s_waitcnt vmcnt(12) lgkmcnt(0)")
    a("s_barrier")
    rd = reads(0); mm = mfmas(1); dd = dots(1)
    a(mm[0])
    for l in rd[:10]: a(l)
    a(mm[1])
    for l in rd[10:]: a(l)
    a(f"s_cmp_gt_u32 s{sC}, 9")
    a(f"s_cbranch_scc1 {l5}")
    a(f"s_cmp_eq_u32 s{sC}, 9")
    a(f"s_cbranch_scc1 {l4}")
    for l in dma_list(): a(l)
    a(f"s_branch {l5}")
    a.label(l4)
    if hooks and "before_stats" in hooks: hooks["before_stats"](a, V)
    for l in stat_loads(): a(l)
    a.label(l5)
    interleave(mm[2:], dd, a)
    a(f"s_add_u32 s{sC}, s{sC}, 2")
    a(f"s_cmp_lt_u32 s{sC}, 13")
    a(f"s_cbranch_scc1 {lp}")
    a(f"s_waitcnt vmcnt({NS}) lgkmcnt(0)")
    a("s_barrier")
    rd = reads(1); mm = mfmas(0); dd = dots(0)
    a(mm[0])
    for l in rd[:10]: a(l)
    a(mm[1])
    for l in rd[10:]: a(l)
    interleave(mm[2:], dd, a)
    a("s_waitcnt lgkmcnt(0)")
    if fused:
        from track import Cnt
        import g2
        vm = Cnt(a, "vmcnt", 63)
        for _ in range(NS): vm.note("ST")
        a("s_barrier")
        g2.g2_early(a, G2S, vm, vlane, vt, vt2, vt3)
    interleave(mfmas(1), dots(1), a)
    if ts: ts.at(2)
    FA = [fa[0][0][0], fa[0][0][1]]
    t0 = fb[0][0][0]; t1 = t0 + 1
    a(f"s_mov_b32 s{sM}, -1"); a(f"s_mov_b32 s{sM+1}, 0")
    if fused:
        vm.wait("ST")
        lck = a.newlabel("G1_CK"); lok = a.newlabel("G1_OK")
        a(f"s_mov_b32 s{sCNT}, {POLL_MAX}")
        a.label(lck)
        a(f"s_lshl_b32 s{sT0}, s{sLB}, 2")
        a(f"s_lshl_b32 s{sT1}, s{sWL}, 1")
        a(f"s_add_u32 s{sT0}, s{sT0}, s{sT1}")
        a(f"s_add_u32 s{sT1}, s{sT0}, 1")
        a(f"v_readlane_b32 s{sNONCE}, v{vD}, 0")
        a(f"v_readlane_b32 s{sTG0}, v{vD}, s{sT0}")
        a(f"v_readlane_b32 s{sTG1}, v{vD}, s{sT1}")
        a(f"v_xor_b32 v{t0}, s{sTG0}, v{ST[0]+3}")
        a(f"v_xor_b32 v{t1}, s{sTG0}, v{ST[0]+7}")
        a(f"v_or_b32 v{t0}, v{t0}, v{t1}")
        a(f"v_xor_b32 v{t1}, s{sTG1}, v{ST[1]+3}")
        a(f"v_or_b32 v{t0}, v{t0}, v{t1}")
        a(f"v_xor_b32 v{t1}, s{sTG1}, v{ST[1]+7}")
        a(f"v_or_b32 v{t0}, v{t0}, v{t1}")
        a(f"v_cmp_ne_u32 vcc, 0, v{t0}")
        a(f"s_and_b32 s{sT0}, s{sTG0}, s{sTG1}")
        a(f"s_and_b32 s{sT0}, s{sT0}, s{sNONCE}")
        a(f"s_and_b32 s{sT0}, s{sT0}, 1")
        a(f"s_xor_b32 s{sT0}, s{sT0}, 1")
        a(f"s_or_b32 s{sT0}, s{sT0}, vcc_lo")
        a(f"s_or_b32 s{sT0}, s{sT0}, vcc_hi")
        a(f"s_cmp_eq_u32 s{sT0}, 0")
        a(f"s_cbranch_scc1 {lok}")
        a(f"s_sub_u32 s{sCNT}, s{sCNT}, 1")
        a(f"s_cbranch_scc1 {lok}")
        for l in stat_loads(): a(l)
        a("s_waitcnt vmcnt(0)")
        a(f"s_branch {lck}")
        a.label(lok)
        a(f"v_mov_b32 v{ST[0]+3}, 0"); a(f"v_mov_b32 v{ST[1]+3}, 0")
    else:
        a("s_waitcnt vmcnt(0)")
    if ts: ts.at(3)
    for ft in range(2):
        c = cs[ft]; d = FA[ft]
        a(f"v_mov_b32 v{t0}, v{c}")
        a(f"v_permlane32_swap_b32 v{c}, v{t0}")
        a(f"v_add_f32 v{c}, v{c}, v{t0}")
        a(f"v_cvt_pk_bf16_f32 v{d}, v{c}, v{c}")
        a(f"v_and_b32 v{t1}, 0xffff0000, v{d}")
        a(f"v_sub_f32 v{t1}, v{c}, v{t1}")
        a(f"v_and_b32 v{d+1}, 0xffff, v{d}")
        a(f"v_cvt_pk_bf16_f32 v{d}, v{c}, v{t1}")
        a(f"v_lshl_or_b32 v{d+1}, v{vb1+ft}, 16, v{d+1}")
        a(f"v_mov_b32 v{d+2}, v{vb1+ft}")
        a(f"v_mov_b32 v{d+3}, 0")
        for k in range(3):
            a(f"v_cndmask_b32 v{d+k}, 0, v{d+k}, s[{sM}:{sM+1}]")
    for ft in range(2):
        for lt in range(2):
            C = acc[ft][lt]
            a(f"v_mfma_f32_32x32x16_bf16 v[{C}:{C+15}], v[{FA[ft]}:{FA[ft]+3}], v[{ST[lt]}:{ST[lt]+3}], v[{C}:{C+15}]")
    vho = V.get()
    a(f"v_lshlrev_b32 v{vho}, 4, v{vlane}")
    a(f"s_lshl_b32 s{sT0}, s{sLB}, 2")
    a(f"s_lshl_b32 s{sT1}, s{sWL}, 1")
    a(f"s_add_u32 s{sT0}, s{sT0}, s{sT1}")
    a(f"s_mul_i32 s{sT0}, s{sT0}, 112")
    a(f"s_lshl_b32 s{sT1}, s{sFB}, 3")
    a(f"s_add_u32 s{sT0}, s{sT0}, s{sT1}")
    a(f"s_lshl_b32 s{sT1}, s{sWF}, 2")
    a(f"s_add_u32 s{sT0}, s{sT0}, s{sT1}")
    a(f"s_lshl_b32 s{sT0}, s{sT0}, 10")
    a(f"s_add_u32 s{sT0}, s{sT0}, {WS_HF}")
    a(f"s_add_u32 s{sT1}, s{sT0}, {112*1024}")
    TA = [fa[1][0][0], fb[1][0][0]]
    TB = [fb[0][0][0], fb[0][1][0]]
    blk = 0
    for lt in range(2):
        K = ST[lt] + 4
        for ft in range(2):
            for kp in range(2):
                A0 = acc[ft][lt] + 8*kp
                T = TA[blk % 2]; O = TB[blk % 2]
                for k in range(4):
                    a(f"v_pk_mul_f32 v[{T+2*k}:{T+2*k+1}], v[{A0+2*k}:{A0+2*k+1}], v[{A0+2*k}:{A0+2*k+1}]")
                for k in range(4):
                    a(f"v_pk_fma_f32 v[{T+2*k}:{T+2*k+1}], v[{T+2*k}:{T+2*k+1}], v[{K}:{K+1}], v[{K}:{K+1}] op_sel:[0,1,0] op_sel_hi:[1,1,0]")
                for k in range(4):
                    a(f"v_pk_mul_f32 v[{T+2*k}:{T+2*k+1}], v[{T+2*k}:{T+2*k+1}], v[{A0+2*k}:{A0+2*k+1}]")
                for k in range(8):
                    a(f"v_exp_f32 v{T+k}, v{T+k}")
                for k in range(4):
                    a(f"v_pk_fma_f32 v[{T+2*k}:{T+2*k+1}], v[{T+2*k}:{T+2*k+1}], v[{K+2}:{K+3}], v[{K+2}:{K+3}] op_sel:[0,0,0] op_sel_hi:[1,0,0]")
                for k in range(8):
                    a(f"v_rcp_f32 v{T+k}, v{T+k}")
                for k in range(4):
                    a(f"v_pk_mul_f32 v[{T+2*k}:{T+2*k+1}], v[{T+2*k}:{T+2*k+1}], v[{A0+2*k}:{A0+2*k+1}]")
                for k in range(4):
                    a(f"v_cvt_pk_bf16_f32 v{O+k}, v{T+2*k}, v{T+2*k+1}")
                so = sT0 if lt == 0 else sT1
                txt = f"buffer_store_dwordx4 v[{O}:{O+3}], v{vho}, s[{SWS}:{SWS+3}], s{so} offen offset:{(2*ft+kp)*1024} sc1"
                if fused: vm.issue(txt, "H")
                else: a(txt)
                blk += 1
    if ts: ts.at(4)
    if fused: return V, vm
    return V
```

```python
from common import *
from track import Cnt, both

def gen_prep2(a, sP, ts):
    V = VAlloc(1)
    SX, SWS, SDBG = 4, 8, 12
    sW, sT0, sT1, sT2, sTag = 20, 21, 22, 23, 24
    sRT = 26
    a(f"s_load_dwordx2 s[{SX}:{SX+1}], s[0:1], {KA['x']}")
    a(f"s_load_dwordx2 s[{SWS}:{SWS+1}], s[0:1], {KA['ws']}")
    a(f"s_load_dwordx2 s[{SDBG}:{SDBG+1}], s[0:1], {KA['dbg']}")
    a(f"s_memrealtime s[{sRT}:{sRT+1}]")
    vtid = 0
    vlane = V.get(); vt = V.get(); vt2 = V.get(); vxo = V.get()
    a(f"v_and_b32 v{vlane}, 63, v{vtid}")
    a(f"v_lshrrev_b32 v{vt}, 6, v{vtid}")
    a(f"v_readfirstlane_b32 s{sW}, v{vt}")
    a(f"v_lshrrev_b32 v{vt}, 3, v{vtid}")
    a(f"v_mul_u32_u24 v{vxo}, 896, v{vt}")
    a(f"v_and_b32 v{vt2}, 7, v{vtid}")
    a(f"v_lshl_add_u32 v{vxo}, v{vt2}, 4, v{vxo}")
    a(f"s_mul_i32 s{sT0}, s{sP}, {32*896}")
    a("s_waitcnt lgkmcnt(0)")
    srd_fin(a, SX, X_BYTES); srd_fin(a, SWS, WS_SIZE); srd_fin(a, SDBG, 256)
    X = V.get(28, 4)
    for i in range(7):
        a(f"buffer_load_dwordx4 v[{X+4*i}:{X+4*i+3}], v{vxo}, s[{SX}:{SX+3}], s{sT0} offen offset:{128*i}")
    TAGL = 32768
    vtag = V.get(); vz = V.get()
    a(f"s_or_b32 s{sTag}, s{sRT}, 1")
    a(f"v_mov_b32 v{vtag}, s{sTag}")
    a(f"v_mov_b32 v{vz}, 0")
    lnw = a.newlabel("PREP_NW")
    a(f"s_cmp_lg_u32 s{sW}, 0")
    a(f"s_cbranch_scc1 {lnw}")
    a(f"ds_write_b32 v{vz}, v{vtag} offset:{TAGL}")
    a(f"s_lshl_b32 s{sT1}, s{sP}, 2")
    a(f"s_mov_b64 s[28:29], exec")
    a(f"s_mov_b64 exec, 1")
    a(f"buffer_store_dword v{vtag}, v{vz}, s[{SDBG}:{SDBG+3}], s{sT1} offen sc1")
    a(f"s_mov_b64 exec, s[28:29]")
    a("s_waitcnt lgkmcnt(0)")
    a.label(lnw)
    a("s_barrier")
    a(f"ds_read_b32 v{vtag}, v{vz} offset:{TAGL}")
    LDS_XN = 0; XP = 912
    s1 = V.get(); s2 = V.get(); s1b = V.get(); s2b = V.get()
    ones = V.get()
    a(f"v_mov_b32 v{ones}, 0x3f803f80")
    for r in (s1, s2, s1b, s2b): a(f"v_mov_b32 v{r}, 0")
    ts.at(1)
    a("s_waitcnt vmcnt(0)")
    ts.at(2)
    src = X
    for i in range(0, 28, 2):
        a(f"v_dot2c_f32_bf16 v{s1}, v{src+i}, v{ones}")
        a(f"v_dot2c_f32_bf16 v{s2}, v{src+i}, v{src+i}")
        a(f"v_dot2c_f32_bf16 v{s1b}, v{src+i+1}, v{ones}")
        a(f"v_dot2c_f32_bf16 v{s2b}, v{src+i+1}, v{src+i+1}")
    a(f"v_add_f32 v{s1}, v{s1}, v{s1b}")
    a(f"v_add_f32 v{s2}, v{s2}, v{s2b}")
    for m in ("quad_perm:[1,0,3,2]", "quad_perm:[2,3,0,1]", "row_half_mirror"):
        a(f"v_add_f32_dpp v{s1}, v{s1}, v{s1} {m} row_mask:0xf bank_mask:0xf")
        a(f"v_add_f32_dpp v{s2}, v{s2}, v{s2} {m} row_mask:0xf bank_mask:0xf")
    mean = V.get(); var = V.get(); m1 = V.get(); sd1 = V.get(); m2 = V.get(); sd2 = V.get(); tq = V.get()
    a(f"v_mul_f32 v{mean}, {fl(1.0/448)}, v{s1}")
    a(f"v_mul_f32 v{var}, {fl(1.0/448)}, v{s2}")
    a(f"v_fma_f32 v{var}, -v{mean}, v{mean}, v{var}")
    a(f"v_max_f32 v{var}, 0, v{var}")
    bf16r(a, m1, mean)
    bf16r(a, tq, var)
    a(f"v_add_f32 v{tq}, {fl(1e-5)}, v{tq}")
    bf16r(a, tq, tq)
    a(f"v_sqrt_f32 v{tq}, v{tq}")
    bf16r(a, sd1, tq)
    rs = V.get(2, 2)
    a(f"v_rcp_f32 v{rs}, v{sd1}")
    a(f"v_sub_f32 v{m2}, v{mean}, v{m1}")
    a(f"v_mul_f32 v{rs+1}, v{m1}, v{rs}")
    a(f"v_sub_f32 v{rs+1}, 0, v{rs+1}")
    a(f"v_mul_f32 v{m2}, v{m2}, v{rs}")
    a(f"v_mul_f32 v{tq}, v{var}, v{rs}")
    a(f"v_mul_f32 v{tq}, v{tq}, v{rs}")
    bf16r(a, m2, m2)
    bf16r(a, tq, tq)
    a(f"v_add_f32 v{tq}, {fl(1e-5)}, v{tq}")
    bf16r(a, tq, tq)
    a(f"v_sqrt_f32 v{tq}, v{tq}")
    bf16r(a, sd2, tq)
    R = V.get(8, 4)
    ia = V.get(); al = V.get(); mu = V.get()
    a(f"v_mul_f32 v{ia}, v{sd1}, v{sd2}")
    a(f"v_rcp_f32 v{al}, v{ia}")
    a(f"v_fma_f32 v{mu}, v{m2}, v{sd1}, v{m1}")
    a(f"v_sub_f32 v{mu}, 0, v{mu}")
    a(f"v_cvt_pk_bf16_f32 v{R}, v{mu}, v{mu}")
    a(f"v_and_b32 v{tq}, 0xffff0000, v{R}")
    a(f"v_sub_f32 v{tq}, v{mu}, v{tq}")
    a(f"v_cvt_pk_bf16_f32 v{R+1}, v{tq}, v{ia}")
    a(f"v_and_b32 v{tq}, 0xffff0000, v{R+1}")
    a(f"v_sub_f32 v{tq}, v{ia}, v{tq}")
    a(f"v_cvt_pk_bf16_f32 v{R+2}, v{tq}, v{vz}")
    C1 = 2 * 0.7978845608028654 * 1.4426950408889634
    C2 = C1 * 0.044715
    a(f"v_mul_f32 v{R+4}, {fl(-C1)}, v{al}")
    a(f"v_mul_f32 v{tq}, v{al}, v{al}")
    a(f"v_mul_f32 v{tq}, v{tq}, v{al}")
    a(f"v_mul_f32 v{R+5}, {fl(-C2)}, v{tq}")
    a(f"v_mov_b32 v{R+6}, v{ia}")
    a("s_waitcnt lgkmcnt(0)")
    a(f"v_mov_b32 v{R+3}, v{vtag}")
    a(f"v_mov_b32 v{R+7}, v{vtag}")
    a(f"v_cmp_eq_u32 vcc, 1, v{vt2}")
    for k in range(4):
        a(f"v_cndmask_b32 v{R+k}, v{R+k}, v{R+4+k}, vcc")
    vso = V.get()
    a(f"v_lshlrev_b32 v{vso}, 5, v{vt}")
    a(f"v_lshl_add_u32 v{vso}, v{vt2}, 4, v{vso}")
    a(f"s_lshl_b32 s{sT0}, s{sP}, 10")
    a(f"s_add_u32 s{sT0}, s{sT0}, {WS_STAT}")
    a(f"v_cmp_gt_u32 vcc, 2, v{vt2}")
    a(f"s_and_saveexec_b64 s[28:29], vcc")
    a(f"buffer_store_dwordx4 v[{R}:{R+3}], v{vso}, s[{SWS}:{SWS+3}], s{sT0} offen sc1")
    a(f"s_mov_b64 exec, s[28:29]")
    ts.at(3)
    Z = V.get(4, 4)
    lnp = a.newlabel("PREP_NP")
    a(f"s_cmp_ge_u32 s{sP}, 7")
    a(f"s_cbranch_scc1 {lnp}")
    for k in range(4): a(f"v_mov_b32 v{Z+k}, 0")
    vzo = V.get()
    a(f"v_lshrrev_b32 v{vzo}, 1, v{vlane}")
    a(f"v_mul_u32_u24 v{vzo}, {XNT_PITCH}, v{vzo}")
    a(f"v_and_b32 v{tq}, 1, v{vlane}")
    a(f"v_lshl_add_u32 v{vzo}, v{tq}, 4, v{vzo}")
    a(f"s_lshl_b32 s{sT0}, s{sP}, 2")
    a(f"s_add_u32 s{sT0}, s{sT0}, s{sW}")
    a(f"s_mul_i32 s{sT0}, s{sT0}, {16*XNT_PITCH}")
    a(f"s_add_u32 s{sT0}, s{sT0}, {WS_XNT + 96}")
    a(f"v_cmp_gt_u32 vcc, 32, v{vlane}")
    a(f"s_and_saveexec_b64 s[28:29], vcc")
    a(f"buffer_store_dwordx4 v[{Z}:{Z+3}], v{vzo}, s[{SWS}:{SWS+3}], s{sT0} offen sc1")
    a(f"s_mov_b64 exec, s[28:29]")
    a.label(lnp)
    T = V.get(8, 2)
    vla = V.get()
    a(f"v_mul_u32_u24 v{vla}, {XP}, v{vt}")
    a(f"v_lshl_add_u32 v{vla}, v{vt2}, 4, v{vla}")
    for i in range(0, 28, 4):
        for k in range(4):
            a(f"v_lshlrev_b32 v{T+2*k}, 16, v{X+i+k}")
            a(f"v_and_b32 v{T+2*k+1}, 0xffff0000, v{X+i+k}")
        for k in range(4):
            a(f"v_pk_fma_f32 v[{T+2*k}:{T+2*k+1}], v[{T+2*k}:{T+2*k+1}], v[{rs}:{rs+1}], v[{rs}:{rs+1}] op_sel:[0,0,1] op_sel_hi:[1,0,1]")
        for k in range(4):
            a(f"v_cvt_pk_bf16_f32 v{X+i+k}, v{T+2*k}, v{T+2*k+1}")
        a(f"ds_write_b128 v{vla}, v[{X+i}:{X+i+3}] offset:{LDS_XN + 32*i}")
    vg = V.get(); vrr = V.get(); vc4 = V.get(); vpa = V.get(); voo = V.get()
    a(f"v_lshrrev_b32 v{vg}, 4, v{vlane}")
    a(f"v_bfe_u32 v{vrr}, v{vlane}, 2, 2")
    a(f"v_and_b32 v{vc4}, 3, v{vlane}")
    a(f"v_lshl_add_u32 v{vpa}, v{vc4}, 3, v{vrr}")
    a(f"v_mul_u32_u24 v{vpa}, {XP}, v{vpa}")
    a(f"v_lshl_add_u32 v{vpa}, v{vg}, 3, v{vpa}")
    a(f"s_lshl_b32 s{sT0}, s{sW}, 5")
    a(f"v_add_u32 v{vpa}, s{sT0}, v{vpa}")
    a(f"v_lshl_add_u32 v{voo}, v{vg}, 2, v{vc4}")
    a(f"v_mul_u32_u24 v{voo}, {XNT_PITCH}, v{voo}")
    a(f"v_lshl_add_u32 v{voo}, v{vrr}, 4, v{voo}")
    a(f"s_mul_i32 s{sT0}, s{sW}, {16*XNT_PITCH}")
    a(f"s_lshl_b32 s{sT1}, s{sP}, 6")
    a(f"s_add_u32 s{sT0}, s{sT0}, s{sT1}")
    a(f"s_add_u32 s{sT0}, s{sT0}, {WS_XNT + 128}")
    a("s_waitcnt lgkmcnt(0)")
    a("s_barrier")
    ts.at(4)
    TT = V.get(28, 4)
    for k in range(7):
        a(f"ds_read_b64_tr_b16 v[{TT+4*k}:{TT+4*k+1}], v{vpa} offset:{LDS_XN + 128*k}")
        a(f"ds_read_b64_tr_b16 v[{TT+4*k+2}:{TT+4*k+3}], v{vpa} offset:{LDS_XN + 128*k + 4*XP}")
    for k in range(7):
        a(f"s_waitcnt lgkmcnt({2*(6-k)})")
        a(f"buffer_store_dwordx4 v[{TT+4*k}:{TT+4*k+3}], v{voo}, s[{SWS}:{SWS+3}], s{sT0} offen sc1")
        if k < 6: a(f"s_add_u32 s{sT0}, s{sT0}, {64*XNT_PITCH}")
    a(f"s_lshl_b32 s{sT0}, s{sW}, 8")
    a(f"s_lshl_b32 s{sT1}, s{sP}, 2")
    a(f"s_add_u32 s{sT0}, s{sT0}, s{sT1}")
    a(f"s_add_u32 s{sT0}, s{sT0}, {FL_LN}")
    a(f"v_mul_u32_u24 v{vz}, {LN_RS}, v{vlane}")
    ts.at(5)
    a("s_waitcnt vmcnt(0)")
    ts.at(6)
    a(f"s_mov_b64 exec, 0x7f")
    a(f"buffer_store_dword v{vtag}, v{vz}, s[{SWS}:{SWS+3}], s{sT0} offen sc1")
    a(f"s_mov_b64 exec, -1")
    ts.flush(SWS, vt, vt2)
    return V
```

```python
from common import *
from track import Cnt, both
import math

U_SZ = 17408
L_U = 0
L_KR = 2 * U_SZ
KR_SZ = 4608
L_T32 = L_KR + 2 * KR_SZ
T32_SZ = 3072
L_FR = L_T32 + 2 * T32_SZ
FR_SZ = 4352
L_END = L_FR + 4 * FR_SZ
assert L_END <= 81920
LOG2E = 1.4426950408889634

def cmul(a, d, z, w, conjw=False):
    a(f"v_pk_mul_f32 v[{d}:{d+1}], v[{z}:{z+1}], v[{w}:{w+1}] op_sel:[0,0] op_sel_hi:[1,0]")
    a(f"v_pk_fma_f32 v[{d}:{d+1}], v[{z}:{z+1}], v[{w}:{w+1}], v[{d}:{d+1}] op_sel:[1,1,0] op_sel_hi:[0,1,1] neg_lo:[0,1,0]")

def cmul2(a, items):
    for d, z, w in items:
        assert d != z and d != w
        a(f"v_pk_mul_f32 v[{d}:{d+1}], v[{z}:{z+1}], v[{w}:{w+1}] op_sel:[0,0] op_sel_hi:[1,0]")
    for d, z, w in items:
        a(f"v_pk_fma_f32 v[{d}:{d+1}], v[{z}:{z+1}], v[{w}:{w+1}], v[{d}:{d+1}] op_sel:[1,1,0] op_sel_hi:[0,1,1] neg_lo:[0,1,0]")

def gen_ssm(a, sP, hooks=None, S=None, ts=None):
    hooks = hooks or {}
    V = VAlloc(1)
    vm = Cnt(a, "vmcnt", 63); lg = Cnt(a, "lgkmcnt", 15)
    SLAR, SAIM, SCRE, SCIM, SWS = 4, 8, 12, 16, 20
    sLDT, sDSK = 24, 26
    sW, sCH, sHW, sD, sT0, sT1, sT2, sDT, sDS, sUB = 32, 33, 34, 35, 36, 37, 38, 39, 40, 41
    for s, k in ((SLAR, 'lar'), (SAIM, 'aim'), (SCRE, 'cre'), (SCIM, 'cim'), (SWS, 'ws'), (sLDT, 'ldt'), (sDSK, 'dsk')):
        a(f"s_load_dwordx2 s[{s}:{s+1}], s[0:1], {KA[k]}")
    if "pre" in hooks: hooks["pre"](a)
    vlane = V.get(); vt = V.get(); vt2 = V.get(); vt3 = V.get()
    a(f"v_and_b32 v{vlane}, 63, v0")
    a(f"v_lshrrev_b32 v{vt}, 6, v0")
    a(f"v_readfirstlane_b32 s{sW}, v{vt}")
    a(f"s_lshr_b32 s{sCH}, s{sW}, 1")
    a(f"s_and_b32 s{sHW}, s{sW}, 1")
    a(f"s_lshl_b32 s{sD}, s{sP}, 1")
    a(f"s_add_u32 s{sD}, s{sD}, s{sCH}")
    vpo = V.get()
    a(f"v_lshlrev_b32 v{vpo}, 2, v{vlane}")
    a(f"s_lshl_b32 s{sT0}, s{sD}, 9")
    a(f"s_lshl_b32 s{sT1}, s{sHW}, 8")
    a(f"s_add_u32 s{sT0}, s{sT0}, s{sT1}")
    a(f"s_lshl_b32 s{sT2}, s{sP}, 2")
    a("s_waitcnt lgkmcnt(0)")
    for s in (SLAR, SAIM, SCRE, SCIM): srd_fin(a, s, D * N * 2)
    srd_fin(a, SWS, WS_SIZE)
    if "post" in hooks: hooks["post"](a)
    PR = V.get(4)
    for i, s in enumerate((SLAR, SAIM, SCRE, SCIM)):
        vm.issue(f"buffer_load_dword v{PR+i}, v{vpo}, s[{s}:{s+3}], s{sT0} offen", "P")
    a(f"s_load_dword s{sDT}, s[{sLDT}:{sLDT+1}], s{sT2}")
    a(f"s_load_dword s{sDS}, s[{sDSK}:{sDSK+1}], s{sT2}")
    Z = V.get(2, 2)
    a(f"v_mov_b32 v{Z}, 0"); a(f"v_mov_b32 v{Z+1}, 0")
    a(f"v_lshlrev_b32 v{vt}, 3, v0")
    for k in range(3):
        a(f"ds_write_b64 v{vt}, v[{Z}:{Z+1}] offset:{L_T32 + 2048*k}")
    a(f"v_lshlrev_b32 v{vt2}, 3, v{vlane}")
    a(f"s_mul_i32 s{sT0}, s{sCH}, {KR_SZ}")
    a(f"v_add_u32 v{vt2}, s{sT0}, v{vt2}")
    a(f"ds_write_b64 v{vt2}, v[{Z}:{Z+1}] offset:{L_KR + 4096}")
    GI = V.get(16)
    vtau = V.get(); vf = V.get(2, 2)
    a(f"s_lshl_b32 s{sT0}, s{sHW}, 6")
    a(f"v_add_u32 v{vtau}, s{sT0}, v{vlane}")
    a(f"v_lshlrev_b32 v{vt}, 1, v{vtau}")
    a(f"v_sub_u32 v{vt}, 2047, v{vt}")
    a(f"v_cvt_f32_u32 v{vf}, v{vt}")
    a(f"v_add_f32 v{vf+1}, -1.0, v{vf}")
    a(f"s_mul_i32 s{sT0}, s{sCH}, {T32_SZ}")
    a(f"s_add_u32 s{sT0}, s{sT0}, {L_T32}")
    a(f"s_sub_u32 s{sT1}, s{sT0}, {(0x4300 - 128) * 4}")
    C256 = V.get(2, 2)
    a(f"v_mov_b32 v{C256}, {fl(-256.0)}"); a(f"v_mov_b32 v{C256+1}, {fl(-256.0)}")
    for k in range(7):
        a(f"v_cvt_pk_bf16_f32 v{vt2}, v{vf}, v{vf+1}")
        a(f"v_and_b32 v{vt3}, 0xffff, v{vt2}")
        a(f"v_lshl_add_u32 v{GI+2*k}, v{vt3}, 2, s{sT1}")
        a(f"v_lshrrev_b32 v{vt3}, 16, v{vt2}")
        a(f"v_lshl_add_u32 v{GI+2*k+1}, v{vt3}, 2, s{sT1}")
        if k < 6: a(f"v_pk_add_f32 v[{vf}:{vf+1}], v[{vf}:{vf+1}], v[{C256}:{C256+1}]")
    a(f"v_subrev_u32 v{vt}, {7*256}, v{vt}")
    a(f"v_lshl_add_u32 v{GI+14}, v{vt}, 2, s{sT0}")
    a(f"v_add_u32 v{GI+15}, -4, v{GI+14}")
    vfw = V.get(); vfr = V.get()
    a(f"s_mul_i32 s{sT0}, s{sW}, {FR_SZ}")
    a(f"s_add_u32 s{sT0}, s{sT0}, {L_FR}")
    a(f"v_lshrrev_b32 v{vt}, 4, v{vlane}")
    a(f"v_mul_u32_u24 v{vfw}, 1088, v{vt}")
    a(f"v_bfe_u32 v{vt2}, v{vlane}, 2, 2")
    a(f"v_mul_u32_u24 v{vt2}, 272, v{vt2}")
    a(f"v_add_u32 v{vfw}, v{vfw}, v{vt2}")
    a(f"v_and_b32 v{vt2}, 3, v{vlane}")
    a(f"v_lshl_add_u32 v{vfw}, v{vt2}, 2, v{vfw}")
    a(f"v_add_u32 v{vfw}, s{sT0}, v{vfw}")
    a(f"v_mul_u32_u24 v{vfr}, 272, v{vt}")
    a(f"v_and_b32 v{vt2}, 15, v{vlane}")
    a(f"v_lshl_add_u32 v{vfr}, v{vt2}, 4, v{vfr}")
    a(f"v_add_u32 v{vfr}, s{sT0}, v{vfr}")
    vsa = V.get(); vsb0 = V.get(); vsb1 = V.get(); vsc = V.get()
    a(f"s_mul_i32 s{sT0}, s{sCH}, {T32_SZ}")
    a(f"s_add_u32 s{sT0}, s{sT0}, {L_T32}")
    a(f"v_lshrrev_b32 v{vt3}, 1, v{vt}")
    a(f"v_lshlrev_b32 v{vsa}, 7, v{vt3}")
    a(f"v_lshl_add_u32 v{vsa}, v{vt2}, 3, v{vsa}")
    a(f"v_and_b32 v{vsb0}, 1, v{vt}")
    a(f"v_lshl_add_u32 v{vsa}, v{vsb0}, 2, v{vsa}")
    a(f"v_lshl_add_u32 v{vsa}, v{vsa}, 2, s{sT0}")
    a(f"v_lshlrev_b32 v{vsb0}, 1, v{vt2}")
    a(f"v_lshlrev_b32 v{vsb1}, 2, v{vt2}")
    a(f"v_cmp_gt_u32 vcc, 2, v{vt}")
    a(f"v_cndmask_b32 v{vsb0}, v{vsb0}, v{vsb1}, vcc")
    a(f"v_lshl_add_u32 v{vsb0}, v{vt}, 6, v{vsb0}")
    a(f"v_add_u32 v{vsb0}, 256, v{vsb0}")
    a(f"v_mov_b32 v{vsb1}, 32")
    a(f"v_cndmask_b32 v{vsb1}, v{vsb1}, 2, vcc")
    a(f"v_add_u32 v{vsb1}, v{vsb1}, v{vsb0}")
    a(f"v_lshl_add_u32 v{vsb0}, v{vsb0}, 2, s{sT0}")
    a(f"v_lshl_add_u32 v{vsb1}, v{vsb1}, 2, s{sT0}")
    a(f"v_lshl_add_u32 v{vsc}, v{vt}, 6, v{vt2}")
    a(f"v_add_u32 v{vsc}, 512, v{vsc}")
    a(f"v_lshl_add_u32 v{vsc}, v{vsc}, 2, s{sT0}")
    vdt = V.get(); vds = V.get()
    a("s_waitcnt lgkmcnt(0)")
    a(f"s_lshl_b32 s{sT0}, s{sCH}, 4")
    a(f"s_lshr_b32 s{sDT}, s{sDT}, s{sT0}")
    a(f"s_lshl_b32 s{sDT}, s{sDT}, 16")
    a(f"s_lshr_b32 s{sDS}, s{sDS}, s{sT0}")
    a(f"s_lshl_b32 s{sDS}, s{sDS}, 16")
    a(f"v_mov_b32 v{vdt}, {fl(LOG2E)}")
    a(f"v_mul_f32 v{vdt}, s{sDT}, v{vdt}")
    a(f"v_exp_f32 v{vdt}, v{vdt}")
    bf16r(a, vdt, vdt)
    a(f"s_cmp_eq_u32 s{sHW}, 0")
    a(f"s_cselect_b32 s{sDS}, s{sDS}, 0")
    a(f"v_mov_b32 v{vds}, s{sDS}")
    a(f"v_cmp_eq_u32 vcc, 0, v{vlane}")
    a(f"v_cndmask_b32 v{vds}, 0, v{vds}, vcc")
    mark = V.mark()
    ACC = [V.get(4, 4) for _ in range(3)]
    for t in range(3):
        for i in range(4): a(f"v_mov_b32 v{ACC[t]+i}, 0")
    LF = V.get(16, 4); HF = [V.get(16, 4), V.get(16, 4)]
    E1, E2, E4, E8, E16, E128, E256 = [V.get(2, 2) for _ in range(7)]
    P = [V.get(2, 2) for _ in range(17)]
    W = [V.get(2, 2) for _ in range(8)]
    CV = V.get(16)
    x0 = V.get(); x1 = V.get(); x2 = V.get(); x3 = V.get(); xr = V.get(); xi = V.get()
    if ts: ts.at(1)
    vm.wait("P")
    if ts: ts.at(2)
    def expk(dst, k, conj):
        if k == 1:
            a(f"v_exp_f32 v{x0}, v{xr}")
            a(f"v_fract_f32 v{x1}, v{xi}")
        else:
            a(f"v_mul_f32 v{x0}, {fl(float(k))}, v{xr}")
            a(f"v_mul_f32 v{x1}, {fl(float(k))}, v{xi}")
            a(f"v_exp_f32 v{x0}, v{x0}")
            a(f"v_fract_f32 v{x1}, v{x1}")
        a(f"v_cos_f32 v{dst}, v{x1}")
        a(f"v_sin_f32 v{dst+1}, v{x1}")
        a(f"v_mul_f32 v{dst}, v{x0}, v{dst}")
        if conj: a(f"v_mul_f32 v{dst+1}, -v{x0}, v{dst+1}")
        else: a(f"v_mul_f32 v{dst+1}, v{x0}, v{dst+1}")
    def wr_rows(vals, n):
        i = 0
        while i < n:
            if i + 1 < n:
                lg.issue(f"ds_write2_b32 v{vfw}, v{vals[i]}, v{vals[i+1]} offset0:{4*i} offset1:{4*i+4}", "W"); i += 2
            else:
                lg.issue(f"ds_write_b32 v{vfw}, v{vals[i]} offset:{16*i}", "W"); i += 1
    def rd_frags(dst, tag):
        for s in range(4):
            lg.issue(f"ds_read_b128 v[{dst+4*s}:{dst+4*s+3}], v{vfr} offset:{1088*s}", tag)
    def mf(t, H):
        for s in range(4):
            a(f"v_mfma_f32_16x16x32_bf16 v[{ACC[t]}:{ACC[t]+3}], v[{H+4*s}:{H+4*s+3}], v[{LF+4*s}:{LF+4*s+3}], v[{ACC[t]}:{ACC[t]+3}]")
    def cv(dst, z): a(f"v_cvt_pk_bf16_f32 v{dst}, v{z}, v{z+1}")
    pend = None
    for ps in range(2):
        def unp(dst, src):
            if ps == 0: a(f"v_lshlrev_b32 v{dst}, 16, v{src}")
            else: a(f"v_and_b32 v{dst}, 0xffff0000, v{src}")
        unp(x0, PR + 0)
        a(f"v_mul_f32 v{x0}, {fl(LOG2E)}, v{x0}")
        a(f"v_exp_f32 v{x0}, v{x0}")
        unp(x1, PR + 1)
        unp(x2, PR + 2)
        unp(x3, PR + 3)
        bf16r(a, x0, x0)
        a(f"v_mul_f32 v{xr}, v{x0}, v{vdt}")
        a(f"v_mul_f32 v{xi}, v{x1}, v{vdt}")
        a(f"v_mul_f32 v{xr}, {fl(-LOG2E)}, v{xr}")
        a(f"v_mul_f32 v{xi}, {fl(1.0/(2*math.pi))}, v{xi}")
        a(f"v_mul_f32 v{x2}, v{x2}, v{vdt}")
        a(f"v_mul_f32 v{x3}, v{x3}, v{vdt}")
        a(f"v_add_f32 v{P[0]}, v{x2}, v{x2}")
        a(f"v_add_f32 v{P[0]+1}, v{x3}, v{x3}")
        expk(E8, 8, True)
        expk(E128, 128, False)
        expk(E1, 1, False)
        if pend is not None:
            lg.wait(pend[2]); mf(pend[0], pend[1]); pend = None
        cmul2(a, [(E16, E8, E8), (E256, E128, E128), (E2, E1, E1), (P[1], P[0], E128)])
        a(f"v_mov_b32 v{CV}, 0x3f80")
        cv(CV + 1, E8); cv(CV + 2, E16)
        ev, od = E16, E8
        wi = 0
        cur_e, cur_o = E16, E8
        first = True
        for k in range(1, 8):
            no = W[wi % 4]; ne = W[(wi + 1) % 4]; wi += 2
            items = [(no, cur_o, E16)]
            if 2*k + 2 <= 14: items.append((ne, cur_e, E16))
            if k == 1: items.append((E4, E2, E2))
            items.append((P[2*k], P[2*k-2], E256)); items.append((P[2*k+1], P[2*k-1], E256))
            cmul2(a, items)
            cv(CV + 2*k + 1, no)
            if 2*k + 2 <= 14: cv(CV + 2*k + 2, ne)
            cur_o, cur_e = no, ne
        cmul2(a, [(P[16], P[14], E256)])
        wr_rows([CV + i for i in range(16)], 16)
        rd_frags(LF, "L")
        cv(CV + 0, P[0]); cv(CV + 8, P[1])
        c0, c1 = P[0], P[1]
        for b in range(1, 8):
            n0 = W[(2*b) % 4]; n1 = W[(2*b + 1) % 4]
            cmul2(a, [(n0, c0, E1), (n1, c1, E1)])
            cv(CV + b, n0); cv(CV + 8 + b, n1)
            c0, c1 = n0, n1
        wr_rows([CV + i for i in range(16)], 16)
        rd_frags(HF[0], "A")
        cv(CV + 0, P[2]); cv(CV + 4, P[3])
        c0, c1 = P[2], P[3]
        for b in range(1, 4):
            n0 = W[(2*b) % 4]; n1 = W[(2*b + 1) % 4]
            cmul2(a, [(n0, c0, E2), (n1, c1, E2)])
            cv(CV + b, n0); cv(CV + 4 + b, n1)
            c0, c1 = n0, n1
        cmul2(a, [(W[4+i], P[4+i], E4) for i in range(4)])
        for i in range(4):
            cv(CV + 8 + 2*i, P[4+i]); cv(CV + 9 + 2*i, W[4+i])
        wr_rows([CV + i for i in range(16)], 16)
        lg.wait("A"); mf(0, HF[0])
        rd_frags(HF[1], "B")
        for i in range(9): cv(CV + i, P[8+i])
        wr_rows([CV + i for i in range(9)], 9)
        lg.wait("B"); mf(1, HF[1])
        rd_frags(HF[0], "C")
        pend = (2, HF[0], "C")
        if ps == 0 and "mid_kgen" in hooks: hooks["mid_kgen"](a, V, vm, lg)
    lg.wait(pend[2]); mf(pend[0], pend[1])
    a(f"v_add_f32 v{ACC[0]}, v{ACC[0]}, v{vds}")
    lg.waitall()
    a("s_barrier")
    for r in range(4): lg.issue(f"ds_add_f32 v{vsa}, v{ACC[0]+r} offset:{4*r}")
    for r in range(4): lg.issue(f"ds_add_f32 v{(vsb0, vsb1)[r>>1]}, v{ACC[1]+r} offset:{4*(r&1)}")
    for r in range(4): lg.issue(f"ds_add_f32 v{vsc}, v{ACC[2]+r} offset:{64*r}")
    if "wait_ln" in hooks: hooks["wait_ln"](a, V, vm, lg)
    vuo = V.get()
    a(f"v_lshrrev_b32 v{vt}, 2, v{vlane}")
    a(f"v_lshlrev_b32 v{vuo}, 4, v{vt}")
    a(f"v_and_b32 v{vt}, 3, v{vlane}")
    a(f"v_lshl_add_u32 v{vuo}, v{vt}, 1, v{vuo}")
    a(f"s_mul_i32 s{sUB}, s{sCH}, {U_SZ}")
    a(f"s_mul_i32 s{sT0}, s{sD}, {XNT_PITCH}")
    a(f"s_mul_i32 s{sT1}, s{sHW}, {9*256}")
    a(f"s_add_u32 s{sT0}, s{sT0}, s{sT1}")
    a(f"s_add_u32 s{sT0}, s{sT0}, {WS_XNT + 98}")
    a(f"s_mul_i32 s{sT1}, s{sHW}, {9*1024}")
    a(f"s_add_u32 s{sT1}, s{sT1}, s{sUB}")
    for k in range(9):
        if k == 8:
            lsk = a.newlabel("SSM_SK")
            a(f"s_cmp_eq_u32 s{sHW}, 1")
            a(f"s_cbranch_scc1 {lsk}")
        a(f"s_add_u32 m0, s{sT1}, {1024*k}")
        a(f"s_add_u32 s{sT2}, s{sT0}, {256*k}")
        a(f"buffer_load_dwordx4 v{vuo}, s[{SWS}:{SWS+3}], s{sT2} offen sc1 lds")
        if k == 8: a.label(lsk)
    lg.waitall()
    a("s_barrier")
    G = V.get(16)
    for i in range(16): lg.issue(f"ds_read_b32 v{G+i}, v{GI+i}", ("G", i // 2))
    vkw = V.get()
    a(f"s_mul_i32 s{sT0}, s{sCH}, {KR_SZ}")
    a(f"s_add_u32 s{sT0}, s{sT0}, {L_KR}")
    a(f"v_lshl_add_u32 v{vkw}, v{vtau}, 2, s{sT0}")
    for k in range(8):
        lg.wait(("G", k))
        a(f"v_cvt_pk_bf16_f32 v{G+2*k}, v{G+2*k}, v{G+2*k+1}")
        if k % 2 == 1:
            lg.issue(f"ds_write2st64_b32 v{vkw}, v{G+2*k-2}, v{G+2*k} offset0:{2*(k-1)} offset1:{2*k}", "KW")
    V.release(mark)
    vA1 = V.get(); vA2 = V.get(); vB = V.get()
    a(f"v_and_b32 v{vt}, 15, v{vlane}")
    a(f"v_lshrrev_b32 v{vt2}, 4, v{vlane}")
    a(f"v_lshl_add_u32 v{vt3}, v{vt2}, 3, v{vt}")
    a(f"v_lshrrev_b32 v{vA1}, 3, v{vt3}")
    a(f"v_lshlrev_b32 v{vA1}, 6, v{vA1}")
    a(f"v_and_b32 v{vA2}, 3, v{vt3}")
    a(f"v_lshl_add_u32 v{vA1}, v{vA2}, 4, v{vA1}")
    a(f"s_lshl_b32 s{sT0}, s{sHW}, 10")
    a(f"s_add_u32 s{sT0}, s{sT0}, s{sUB}")
    a(f"v_add_u32 v{vA1}, s{sT0}, v{vA1}")
    a(f"v_bfe_u32 v{vt3}, v{vt3}, 2, 1")
    a(f"v_mul_u32_u24 v{vA2}, 56, v{vt3}")
    a(f"v_lshl_add_u32 v{vA1}, v{vt3}, 3, v{vA1}")
    a(f"v_mul_u32_u24 v{vA2}, 48, v{vt3}")
    a(f"v_add3_u32 v{vA2}, v{vA2}, v{vA1}, 8")
    a(f"s_mul_i32 s{sT0}, s{sCH}, {KR_SZ}")
    a(f"s_lshl_b32 s{sT1}, s{sHW}, 8")
    a(f"s_add_u32 s{sT0}, s{sT0}, s{sT1}")
    a(f"s_add_u32 s{sT0}, s{sT0}, {L_KR + 480}")
    a(f"v_lshlrev_b32 v{vt}, 5, v{vt}")
    a(f"v_sub_u32 v{vB}, s{sT0}, v{vt}")
    a(f"v_lshl_add_u32 v{vB}, v{vt2}, 4, v{vB}")
    YA = [V.get(4, 4) for _ in range(8)]
    AF = [[V.get(4, 4) for _ in range(8)] for _ in range(2)]
    BFr = [[V.get(4, 4) for _ in range(8)] for _ in range(2)]
    for c in range(8):
        for i in range(4): a(f"v_mov_b32 v{YA[c]+i}, 0")
    a("s_waitcnt vmcnt(0) lgkmcnt(0)"); vm.cleared(); lg.cleared()
    if ts: ts.at(5)
    a("s_barrier")
    def reads(ph):
        st = ph % 2; l = []
        for T in range(8):
            b = BFr[st][T]
            l.append(f"ds_read_b128 v[{b}:{b+3}], v{vB} offset:{512*T + 64*ph}")
            f = AF[st][T]
            l.append(f"ds_read_b64 v[{f}:{f+1}], v{vA1} offset:{2048*T + 256*ph}")
            l.append(f"ds_read_b64 v[{f+2}:{f+3}], v{vA2} offset:{2048*T + 256*ph}")
        return l
    def mfmas(ph):
        st = ph % 2; l = []
        for T in range(8):
            for c in range(T, 8):
                bp = T - c + 7
                l.append(f"v_mfma_f32_16x16x32_bf16 v[{YA[c]}:{YA[c]+3}], v[{AF[st][T]}:{AF[st][T]+3}], v[{BFr[st][bp]}:{BFr[st][bp]+3}], v[{YA[c]}:{YA[c]+3}]")
        return l
    for l in reads(0): a(l)
    for ph in range(4):
        a("s_waitcnt lgkmcnt(0)")
        mm = mfmas(ph)
        rd = reads(ph + 1) if ph < 3 else []
        k = 0
        for i, m in enumerate(mm):
            a(m)
            if k < len(rd) and i < 30:
                a(rd[k]); k += 1
        while k < len(rd): a(rd[k]); k += 1
    if ts: ts.at(6)
    vrw = V.get(); vrr = V.get(); vso = V.get()
    a(f"s_mul_i32 s{sT0}, s{sW}, {FR_SZ}")
    a(f"s_add_u32 s{sT0}, s{sT0}, {L_FR}")
    a(f"v_lshl_add_u32 v{vrw}, v{vlane}, 4, s{sT0}")
    a(f"s_xor_b32 s{sT1}, s{sW}, 1")
    a(f"s_mul_i32 s{sT0}, s{sT1}, {FR_SZ}")
    a(f"s_add_u32 s{sT0}, s{sT0}, {L_FR}")
    a(f"v_lshl_add_u32 v{vrr}, v{vlane}, 4, s{sT0}")
    a(f"v_and_b32 v{vt}, 15, v{vlane}")
    a(f"v_lshlrev_b32 v{vso}, 5, v{vt}")
    a(f"v_bfe_u32 v{vt}, v{vlane}, 4, 1")
    a(f"v_lshl_add_u32 v{vso}, v{vt}, 9, v{vso}")
    a(f"v_lshrrev_b32 v{vt}, 5, v{vlane}")
    a(f"v_lshl_add_u32 v{vso}, v{vt}, 4, v{vso}")
    a(f"s_lshl_b32 s{sT0}, s{sD}, 12")
    a(f"s_lshl_b32 s{sT1}, s{sHW}, 11")
    a(f"s_add_u32 s{sT0}, s{sT0}, s{sT1}")
    a(f"s_add_u32 s{sT0}, s{sT0}, {WS_ST}")
    R = AF[0][0]
    O = AF[1][0]
    lh1 = a.newlabel("SSM_H1"); lend = a.newlabel("SSM_RE")
    a(f"s_cmp_eq_u32 s{sHW}, 1")
    a(f"s_cbranch_scc1 {lh1}")
    for hw in range(2):
        if hw == 1: a.label(lh1)
        mine = range(4*hw, 4*hw + 4); other = range(4*(1-hw), 4*(1-hw) + 4)
        for i, c in enumerate(other):
            a(f"ds_write_b128 v{vrw}, v[{YA[c]}:{YA[c]+3}] offset:{1024*i}")
        a("s_waitcnt lgkmcnt(0)")
        a("s_barrier")
        for i in range(4):
            a(f"ds_read_b128 v[{R+4*i}:{R+4*i+3}], v{vrr} offset:{1024*i}")
        for i, c in enumerate(mine):
            a(f"s_waitcnt lgkmcnt({3-i})")
            a(f"v_pk_add_f32 v[{R+4*i}:{R+4*i+1}], v[{R+4*i}:{R+4*i+1}], v[{YA[c]}:{YA[c]+1}]")
            a(f"v_pk_add_f32 v[{R+4*i+2}:{R+4*i+3}], v[{R+4*i+2}:{R+4*i+3}], v[{YA[c]+2}:{YA[c]+3}]")
            a(f"v_cvt_pk_bf16_f32 v{O+2*i}, v{R+4*i}, v{R+4*i+1}")
            a(f"v_cvt_pk_bf16_f32 v{O+2*i+1}, v{R+4*i+2}, v{R+4*i+3}")
        if hw == 0: a(f"s_branch {lend}")
    a.label(lend)
    for p in range(2):
        a(f"v_permlane16_swap_b32 v{O+4*p}, v{O+4*p+2}")
        a(f"v_permlane16_swap_b32 v{O+4*p+1}, v{O+4*p+3}")
    for p in range(2):
        a(f"buffer_store_dwordx4 v[{O+4*p}:{O+4*p+3}], v{vso}, s[{SWS}:{SWS+3}], s{sT0} offen offset:{1024*p} sc1")
    if "done" in hooks: hooks["done"](a, V, SWS)
    return V
```

```python
import sys
from common import *
import prep

def build_multi(parts):
    text = []; desc = []; launches = []
    if "prep" in parts:
        a = Asm()
        a("s_cmp_ge_u32 s2, 64")
        a("s_cbranch_scc1 PREP_EXIT")
        a("s_mov_b32 s3, s2")
        hi = prep.gen_prep(a, 3)
        a.label("PREP_EXIT")
        a("s_endpgm")
        text.append(kernel_text("prep_kernel", a.finish())); desc.append(kernel_desc("prep_kernel", 256))
        launches.append("; @launch kernel=prep_kernel grid=(64,1,1) block=(256,1,1) lds=81920")
    if "g1" in parts:
        import mlp
        a = Asm()
        a("s_cmp_ge_u32 s2, 224")
        a("s_cbranch_scc1 G1_EXIT")
        a("s_mov_b32 s3, s2")
        mlp.gen_g1(a, 3)
        a.label("G1_EXIT")
        a("s_endpgm")
        text.append(kernel_text("g1_kernel", a.finish())); desc.append(kernel_desc("g1_kernel", 256))
        launches.append("; @launch kernel=g1_kernel grid=(224,1,1) block=(256,1,1) lds=81920")
    if "ssm" in parts:
        import ssm
        a = Asm()
        a("s_cmp_ge_u32 s2, 224")
        a("s_cbranch_scc1 SSM_EXIT")
        a("s_mov_b32 s3, s2")
        ssm.gen_ssm(a, 3)
        a.label("SSM_EXIT")
        a("s_endpgm")
        text.append(kernel_text("ssm_kernel", a.finish())); desc.append(kernel_desc("ssm_kernel", 256))
        launches.append("; @launch kernel=ssm_kernel grid=(224,1,1) block=(256,1,1) lds=81920")
    if "g2" in parts:
        import mlp
        a = Asm()
        a("s_cmp_ge_u32 s2, 224")
        a("s_cbranch_scc1 G2_EXIT")
        a("s_mov_b32 s3, s2")
        import g2
        S = dict(X=4, W2=8, WS=12, OUT=24, B2=28, W=32, K=35, J7=36, JM=37, T0=45, T1=46, T2=47, T3=48, G2A=40, G2B=41, G2C=42, G2D=43)
        for nm, ka in (("X","x"),("W2","w2"),("WS","ws"),("OUT","out"),("B2","b2")):
            a(f"s_load_dwordx2 s[{S[nm]}:{S[nm]+1}], s[0:1], {KA[ka]}")
        mlp.mlp_ids(a, 3, 33, 34, 35, 36, 37)
        a("v_lshrrev_b32 v1, 6, v0")
        a("v_readfirstlane_b32 s32, v1")
        a("s_waitcnt lgkmcnt(0)")
        srd_fin(a, 4, X_BYTES); srd_fin(a, 8, W_BYTES); srd_fin(a, 12, WS_SIZE); srd_fin(a, 24, X_BYTES); srd_fin(a, 28, D*2)
        g2.gen_g2(a, S, standalone=True)
        a.label("G2_EXIT")
        a("s_endpgm")
        text.append(kernel_text("g2_kernel", a.finish())); desc.append(kernel_desc("g2_kernel", 256))
        launches.append("; @launch kernel=g2_kernel grid=(224,1,1) block=(256,1,1) lds=81920")
    out = HEADER + "\n".join(launches) + "\n" + '.amdgcn_target "amdgcn-amd-amdhsa--gfx950"\n.text\n' + "\n".join(text)
    out += '.section .rodata,"a"\n.p2align 6\n' + "\n".join(desc)
    return out

def build_fused():
    import prep2, ssm, mlp, g2
    a = Asm()
    ts = Stamps(a)
    a("s_cmp_ge_u32 s2, 512")
    a("s_cbranch_scc1 K_EXIT")
    ts.at(0)
    a("s_cmp_ge_u32 s2, 288")
    a("s_cbranch_scc1 K_MLP")
    a("s_cmp_ge_u32 s2, 64")
    a("s_cbranch_scc1 K_SSM")
    a("s_mov_b32 s3, s2")
    prep2.gen_prep2(a, 3, ts)
    a("s_endpgm")
    a.label("K_SSM")
    a("s_sub_u32 s3, s2, 64")
    SDBG = 44
    sW, sCH, sHW, sD = 32, 33, 34, 35
    sNONCE, sCNT, sX0 = 48, 49, 50
    def wait_ln(a, V, vm, lg):
        ts.at(3)
        m = V.mark()
        vF = V.get(); vDd = V.get(); vo = V.get()
        a(f"v_and_b32 v{vo}, 63, v0")
        a(f"v_lshlrev_b32 v{vo}, 2, v{vo}")
        a(f"s_lshr_b32 s{sX0}, s{sD}, 4")
        a(f"s_and_b32 s{sX0}, s{sX0}, 3")
        a(f"s_lshl_b32 s{sX0}, s{sX0}, 8")
        a(f"s_add_u32 s{sX0}, s{sX0}, {FL_LN}")
        lp = a.newlabel("SPOLL"); dn = a.newlabel("SPOLLD")
        a(f"s_mov_b32 s{sCNT}, {POLL_MAX}")
        a.label(lp)
        a(f"buffer_load_dword v{vF}, v{vo}, s[20:23], s{sX0} offen sc1")
        a(f"buffer_load_dword v{vDd}, v{vo}, s[{SDBG}:{SDBG+3}], 0 offen sc1")
        a(f"s_sub_u32 s{sCNT}, s{sCNT}, 1")
        a(f"s_cbranch_scc1 {dn}")
        a("s_waitcnt vmcnt(0)")
        a(f"v_cmp_ne_u32 vcc, v{vF}, v{vDd}")
        a(f"v_cmp_eq_u32 s[{sX0+2}:{sX0+3}], 0, v{vDd}")
        a(f"s_or_b64 vcc, vcc, s[{sX0+2}:{sX0+3}]")
        a("s_cmp_eq_u64 vcc, 0")
        a(f"s_cbranch_scc0 {lp}")
        a.label(dn)
        a("s_waitcnt vmcnt(0)")
        a(f"v_readfirstlane_b32 s{sNONCE}, v{vDd}")
        vm.cleared()
        V.release(m)
        ts.at(4)
    def done(a, V, SWS):
        vz = V.get(); vn = V.get()
        a(f"v_mov_b32 v{vz}, 0")
        a(f"v_mov_b32 v{vn}, s{sNONCE}")
        a(f"s_lshr_b32 s{sX0}, s{sD}, 6")
        a(f"s_lshl_b32 s{sX0}, s{sX0}, 9")
        a(f"s_lshl_b32 s{sX0+1}, s{sHW}, 8")
        a(f"s_add_u32 s{sX0}, s{sX0}, s{sX0+1}")
        a(f"s_and_b32 s{sX0+1}, s{sD}, 63")
        a(f"s_lshl_b32 s{sX0+1}, s{sX0+1}, 2")
        a(f"s_add_u32 s{sX0}, s{sX0}, s{sX0+1}")
        a(f"s_add_u32 s{sX0}, s{sX0}, {FL_S}")
        ts.at(7)
        a("s_waitcnt vmcnt(0)")
        ts.at(8)
        a("s_mov_b64 exec, 1")
        a(f"buffer_store_dword v{vn}, v{vz}, s[{SWS}:{SWS+3}], s{sX0} offen sc1")
        a("s_mov_b64 exec, -1")
        ts.flush(SWS, vz, vn)
    def ssm_pre(a):
        a(f"s_load_dwordx2 s[{SDBG}:{SDBG+1}], s[0:1], {KA['dbg']}")
    def ssm_post(a):
        srd_fin(a, SDBG, 256)
    ssm.gen_ssm(a, 3, hooks=dict(wait_ln=wait_ln, done=done, pre=ssm_pre, post=ssm_post), ts=ts)
    a("s_endpgm")
    a.label("K_MLP")
    a("s_sub_u32 s3, s2, 288")
    V, vm = mlp.gen_g1(a, 3, fused=True, ts=ts)
    S = mlp.G2S
    def publish_h(a, V, vm, lg):
        m = V.mark()
        vz = V.get(); vn = V.get()
        a(f"v_mov_b32 v{vz}, 0")
        a(f"v_mov_b32 v{vn}, s{mlp.sNONCE}")
        a(f"s_lshl_b32 s{mlp.sT0}, s{mlp.sLB}, 1")
        a(f"s_add_u32 s{mlp.sT0}, s{mlp.sT0}, s{mlp.sWL}")
        a(f"s_lshl_b32 s{mlp.sT0}, s{mlp.sT0}, 7")
        a(f"s_lshl_b32 s{mlp.sT1}, s{mlp.sFB}, 1")
        a(f"s_add_u32 s{mlp.sT1}, s{mlp.sT1}, s{mlp.sWF}")
        a(f"s_lshl_b32 s{mlp.sT1}, s{mlp.sT1}, 2")
        a(f"s_add_u32 s{mlp.sT0}, s{mlp.sT0}, s{mlp.sT1}")
        a(f"s_add_u32 s{mlp.sT0}, s{mlp.sT0}, {FL_H}")
        vm.wait("H")
        ts.at(5)
        a("s_mov_b64 exec, 1")
        vm.issue(f"buffer_store_dword v{vn}, v{vz}, s[{mlp.SWS}:{mlp.SWS+3}], s{mlp.sT0} offen sc1", "F")
        a("s_mov_b64 exec, -1")
        V.release(m)
    def wait_h(a, V, vm, lg):
        m = V.mark()
        vo = V.get(); vt = V.get()
        a(f"v_and_b32 v{vo}, 63, v0")
        a(f"v_lshlrev_b32 v{vo}, 2, v{vo}")
        a(f"s_lshl_b32 s{mlp.sT0}, s{S['G2C']}, 7")
        a(f"s_mul_i32 s{mlp.sT1}, s{mlp.sW}, 28")
        a(f"s_add_u32 s{mlp.sT0}, s{mlp.sT0}, s{mlp.sT1}")
        a(f"s_add_u32 s{mlp.sT0}, s{mlp.sT0}, {FL_H}")
        ts.at(6)
        poll_eq(a, 7, vo, mlp.SWS, mlp.sT0, vt, mlp.sNONCE, mlp.sCNT)
        ts.at(7)
        vm.cleared()
        V.release(m)
    def wait_s(a, V, vm, lg):
        m = V.mark()
        vo = V.get(); vt = V.get()
        a(f"v_and_b32 v{vo}, 63, v0")
        a(f"v_lshlrev_b32 v{vo}, 2, v{vo}")
        a(f"s_lshl_b32 s{mlp.sT0}, s{mlp.sJm}, 9")
        a(f"s_lshr_b32 s{mlp.sT1}, s{S['G2C']}, 4")
        a(f"s_lshl_b32 s{mlp.sT1}, s{mlp.sT1}, 8")
        a(f"s_add_u32 s{mlp.sT0}, s{mlp.sT0}, s{mlp.sT1}")
        a(f"s_lshl_b32 s{mlp.sT1}, s{mlp.sW}, 6")
        a(f"s_add_u32 s{mlp.sT0}, s{mlp.sT0}, s{mlp.sT1}")
        a(f"s_add_u32 s{mlp.sT0}, s{mlp.sT0}, {FL_S}")
        poll_eq(a, 16, vo, mlp.SWS, mlp.sT0, vt, mlp.sNONCE, mlp.sCNT)
        vm.cleared()
        V.release(m)
    g2.gen_g2(a, S, hooks=dict(publish_h=publish_h, wait_h=wait_h, wait_s=wait_s), vm=vm, ts=ts)
    ts.at(13)
    ts.flush(mlp.SWS, 1, 2)
    a.label("K_EXIT")
    a("s_endpgm")
    out = HEADER + "; @launch grid=(512,1,1) block=(256,1,1) lds=81920\n" + '.amdgcn_target "amdgcn-amd-amdhsa--gfx950"\n.text\n'
    out += kernel_text(KN + "_kernel", a.finish())
    out += '.section .rodata,"a"\n.p2align 6\n' + kernel_desc(KN + "_kernel", 256, 100)
    return out

if __name__ == "__main__":
    mode = sys.argv[1]; outp = sys.argv[2]
    if mode == "fused": s = build_fused()
    if mode.startswith("multi:"):
        s = build_multi(mode[6:].split(","))
    open(outp, "w").write(s)
    print("wrote", outp, len(s))
```

```python
from asm import Asm, VAlloc, vr, sr
KN = "recurrent_scan__ssm_conv_s4d__mixer_channel_mlp__prompt"
KA = dict(x=0, lar=8, aim=16, cre=24, cim=32, ldt=40, dsk=48, w1=64, b1=72, w2=80, b2=88, out=96, dbg=104, ws=112)
L, D, N, F = 2048, 448, 256, 1792
XNT_PITCH = 4224
WS_XNT = 0
WS_STAT = 0x1D0000
WS_FLAG = 0x1E0000
FL_LN = WS_FLAG
LN_RS = 4352
FL_H = WS_FLAG + 0x8000
H_RS = 1152
FL_S = WS_FLAG + 0x14000
S_RS = 2304
POLL_SLEEP = 4
WS_TS = 0xD00000
TS0 = 64
import os
PROF = os.environ.get("PROF", "") != ""
POLL_MAX = int(os.environ.get('POLL_MAX', '4000'))
WS_W2F = 0x200000
WS_ST = 0x400000
WS_HF = 0x600000
WS_SIZE = 0xE00000
SRD3 = 0x00020000
X_BYTES = L * D * 2
W_BYTES = D * F * 2

def f32bits(x):
    import struct
    return struct.unpack("<I", struct.pack("<f", x))[0]
def fl(x): return "0x%08x" % f32bits(x)

def srd(a, s, ka, nbytes):
    a(f"s_load_dwordx2 s[{s}:{s+1}], s[0:1], {ka}")
def srd_fin(a, s, nbytes):
    a(f"s_mov_b32 s{s+2}, {nbytes}")
    a(f"s_mov_b32 s{s+3}, 0x{SRD3:08x}")

def bf16r(a, dst, src, tmp=None):
    a(f"v_cvt_pk_bf16_f32 v{dst}, v{src}, v{src}")
    a(f"v_and_b32 v{dst}, 0xffff0000, v{dst}")

def kernel_text(name, body, vgpr=256, sgpr=102):
    return f""".globl {name}
.p2align 8
.type {name},@function
{name}:
{body}
"""
def kernel_desc(name, vgpr=256, sgpr=96):
    acc = min(256, (vgpr + 3) // 4 * 4)
    return f""".amdhsa_kernel {name}
  .amdhsa_next_free_vgpr {vgpr}
  .amdhsa_next_free_sgpr {sgpr}
  .amdhsa_accum_offset {acc}
  .amdhsa_group_segment_fixed_size 0
  .amdhsa_kernarg_size 120
  .amdhsa_user_sgpr_count 2
  .amdhsa_user_sgpr_kernarg_segment_ptr 1
  .amdhsa_system_sgpr_workgroup_id_x 1
.end_amdhsa_kernel
"""
HEADER = open("cdna_kernels/" + KN + ".s.ref").read().split("; Override launch geometry")[0]

class Stamps:
    def __init__(self, a): self.a = a; self.n = 0
    def __call__(self, name=None):
        if not PROF: return
        assert self.n < 16
        self.a(f"s_memrealtime s[{TS0+2*self.n}:{TS0+2*self.n+1}]")
        self.n += 1
    def at(self, idx):
        if not PROF: return
        self.a(f"s_memrealtime s[{TS0+2*idx}:{TS0+2*idx+1}]")
        self.n = max(self.n, idx + 1)
    def cyc(self, idx):
        if not PROF: return
        self.a(f"s_memtime s[{TS0+2*idx}:{TS0+2*idx+1}]")
    def flush(self, SWS, vtmp, vtmp2, n=16):
        if not PROF: return
        a = self.a
        self.cyc(15); self.at(14)
        a("s_waitcnt lgkmcnt(0)")
        a(f"s_sub_u32 s{TS0+30}, s{TS0+30}, s98")
        a(f"v_lshrrev_b32 v{vtmp}, 6, v0")
        a(f"v_lshlrev_b32 v{vtmp}, 6, v{vtmp}")
        a(f"s_lshl_b32 s96, s2, 8")
        a(f"s_add_u32 s96, s96, {WS_TS}")
        for i in range(n):
            a(f"v_mov_b32 v{vtmp2}, s{TS0+2*i}")
            a(f"buffer_store_dword v{vtmp2}, v{vtmp}, s[{SWS}:{SWS+3}], s96 offen offset:{4*i}")


def poll_eq(a, nlanes, vaddr, srd_, soff, vtmp, sExp, sCnt, sSave=None, sleep=0):
    lp = a.newlabel("POLL"); dn = a.newlabel("POLLD")
    mask = (1 << nlanes) - 1
    if nlanes == 64: a("s_mov_b64 exec, -1")
    elif nlanes <= 6: a(f"s_mov_b64 exec, {mask}")
    else:
        a(f"s_mov_b32 exec_lo, 0x{mask & 0xffffffff:x}")
        a(f"s_mov_b32 exec_hi, 0x{mask >> 32:x}")
    a(f"s_mov_b32 s{sCnt}, {POLL_MAX}")
    a.label(lp)
    a(f"buffer_load_dword v{vtmp}, v{vaddr}, s[{srd_}:{srd_+3}], s{soff} offen sc1")
    a(f"s_sub_u32 s{sCnt}, s{sCnt}, 1")
    a(f"s_cbranch_scc1 {dn}")
    a("s_waitcnt vmcnt(0)")
    a(f"v_cmp_ne_u32 vcc, s{sExp}, v{vtmp}")
    a("s_cmp_eq_u64 vcc, 0")
    a(f"s_cbranch_scc1 {dn}")
    a(f"s_sleep {POLL_SLEEP}")
    a(f"s_branch {lp}")
    a.label(dn)
    a("s_waitcnt vmcnt(0)")
    a("s_mov_b64 exec, -1")
```

```python
from common import *

def interleave(main, fill, a, first=0):
    n = len(main); k = 0
    per = [(len(fill) * (i + 1)) // n - (len(fill) * i) // n for i in range(n)]
    for i, m in enumerate(main):
        a(m)
        for _ in range(per[i]):
            a(fill[k]); k += 1

def mlp_ids(a, sI, sLB, sFB, sK, sJ7, sJm):
    a(f"s_and_b32 s{sK}, s{sI}, 7")
    a(f"s_lshr_b32 s{sJm}, s{sI}, 3")
    a(f"s_mul_i32 s{sJ7}, s{sJm}, 37")
    a(f"s_lshr_b32 s{sJ7}, s{sJ7}, 8")
    a(f"s_mul_i32 s{sLB}, s{sJ7}, 7")
    a(f"s_sub_u32 s{sJm}, s{sJm}, s{sLB}")
    a(f"s_lshr_b32 s{sLB}, s{sK}, 1")
    a(f"s_lshl_b32 s{sLB}, s{sLB}, 2")
    a(f"s_add_u32 s{sLB}, s{sLB}, s{sJ7}")
    a(f"s_and_b32 s{sFB}, s{sK}, 1")
    a(f"s_mul_i32 s{sFB}, s{sFB}, 7")
    a(f"s_add_u32 s{sFB}, s{sFB}, s{sJm}")

SX, SW1, SWS, SB1 = 4, 8, 12, 16
SOUT, SB2 = 24, 28
sW, sLB, sFB, sK, sJ7, sJm = 32, 33, 34, 35, 36, 37
sC, sRD, sWR, sXO, sWO, sT0, sT1, sT2 = 40, 41, 42, 43, 44, 45, 46, 47
sM = 48
sWF, sWL = 50, 51

SW2 = 20
G1X = os.environ.get("G1X", "")
PFX = int(os.environ.get("PFX", "1"))
PFW2_STEP = int(os.environ.get("PFW2", "5"))
STAT_STEP = int(os.environ.get("STATSTEP", "10"))
SDBG, sNONCE, sTG0, sTG1, sCNT, sT3 = 52, 56, 57, 58, 59, 60
G2S = dict(X=SX, W2=SW2, WS=SWS, OUT=SOUT, B2=SB2, W=sW, K=sK, J7=sJ7, JM=sJm, T0=sT0, T1=sT1, T2=sT2, T3=sT3,
           G2A=38, G2B=39, G2C=61, G2D=62)

def gen_g1(a, sI, hooks=None, fused=False, ts=None):
    V = VAlloc(1)
    V.limit = 250
    a(f"s_load_dwordx2 s[{SX}:{SX+1}], s[0:1], {KA['x']}")
    a(f"s_load_dwordx2 s[{SW1}:{SW1+1}], s[0:1], {KA['w1']}")
    a(f"s_load_dwordx2 s[{SWS}:{SWS+1}], s[0:1], {KA['ws']}")
    a(f"s_load_dwordx2 s[{SB1}:{SB1+1}], s[0:1], {KA['b1']}")
    if fused:
        for s_, k_ in ((SW2, 'w2'), (SOUT, 'out'), (SB2, 'b2'), (SDBG, 'dbg')):
            a(f"s_load_dwordx2 s[{s_}:{s_+1}], s[0:1], {KA[k_]}")
    mlp_ids(a, sI, sLB, sFB, sK, sJ7, sJm)
    vlane = V.get(); vt = V.get(); vt2 = V.get(); vt3 = V.get()
    a(f"v_and_b32 v{vlane}, 63, v0")
    a(f"v_lshrrev_b32 v{vt}, 6, v0")
    a(f"v_readfirstlane_b32 s{sW}, v{vt}")
    a(f"s_and_b32 s{sWF}, s{sW}, 1")
    a(f"s_lshr_b32 s{sWL}, s{sW}, 1")
    vxo = V.get(); vwo = V.get()
    a(f"v_lshrrev_b32 v{vt}, 2, v{vlane}")
    a(f"v_mul_u32_u24 v{vxo}, 896, v{vt}")
    a(f"v_lshrrev_b32 v{vt}, 4, v{vlane}")
    a(f"v_and_b32 v{vt2}, 3, v{vlane}")
    a(f"v_xor_b32 v{vt2}, v{vt}, v{vt2}")
    a(f"v_lshl_add_u32 v{vxo}, v{vt2}, 4, v{vxo}")
    a(f"s_lshl_b32 s{sT0}, s{sLB}, 7")
    a(f"s_lshl_b32 s{sT1}, s{sW}, 5")
    a(f"s_add_u32 s{sT0}, s{sT0}, s{sT1}")
    a(f"s_mul_i32 s{sXO}, s{sT0}, 896")
    a(f"v_mul_u32_u24 v{vwo}, 3584, v{vt}")
    a(f"v_lshlrev_b32 v{vt3}, 2, v{vt}")
    a(f"v_and_b32 v{vt2}, 15, v{vlane}")
    a(f"v_xor_b32 v{vt2}, v{vt3}, v{vt2}")
    a(f"v_lshl_add_u32 v{vwo}, v{vt2}, 4, v{vwo}")
    a(f"s_mul_i32 s{sWO}, s{sW}, {8*3584}")
    a(f"s_lshl_b32 s{sT0}, s{sFB}, 8")
    a(f"s_add_u32 s{sWO}, s{sWO}, s{sT0}")
    a(f"s_lshl_b32 s{sWR}, s{sW}, 11")
    a("s_waitcnt lgkmcnt(0)")
    srd_fin(a, SX, X_BYTES); srd_fin(a, SW1, W_BYTES); srd_fin(a, SWS, WS_SIZE); srd_fin(a, SB1, F*2)
    if fused:
        srd_fin(a, SW2, W_BYTES); srd_fin(a, SOUT, X_BYTES); srd_fin(a, SB2, D*2); srd_fin(a, SDBG, 256)
    from track import Cnt, both
    import g2
    vm = Cnt(a, "vmcnt", 63); lg = Cnt(a, "lgkmcnt", 15)
    NST = 5
    def dma(c):
        slot = (c % NST) * 16384
        a(f"s_add_u32 m0, s{sWR}, {slot}")
        a(f"s_add_u32 s{sT0}, s{sXO}, {64*c}")
        vm.issue(f"buffer_load_dwordx4 v{vxo}, s[{SX}:{SX+3}], s{sT0} offen lds", ("S", c))
        a(f"s_add_u32 m0, s{sWR}, {slot+1024}")
        a(f"s_add_u32 s{sT0}, s{sXO}, {64*c+14336}")
        vm.issue(f"buffer_load_dwordx4 v{vxo}, s[{SX}:{SX+3}], s{sT0} offen lds", ("S", c))
        a(f"s_add_u32 m0, s{sWR}, {slot+8192}")
        a(f"s_add_u32 s{sT0}, s{sWO}, {32*3584*c}")
        vm.issue(f"buffer_load_dwordx4 v{vwo}, s[{SW1}:{SW1+3}], s{sT0} offen lds", ("S", c))
        a(f"s_add_u32 m0, s{sWR}, {slot+9216}")
        a(f"s_add_u32 s{sT0}, s{sWO}, {32*3584*c+14336}")
        vm.issue(f"buffer_load_dwordx4 v{vwo}, s[{SW1}:{SW1+3}], s{sT0} offen lds", ("S", c))
    vb1 = V.get(2)
    a(f"v_and_b32 v{vt}, 31, v{vlane}")
    a(f"v_lshlrev_b32 v{vt}, 1, v{vt}")
    a(f"s_lshl_b32 s{sT0}, s{sFB}, 8")
    a(f"s_lshl_b32 s{sT1}, s{sWF}, 7")
    a(f"s_add_u32 s{sT0}, s{sT0}, s{sT1}")
    for c in range(4): dma(c)
    a(f"s_lshl_b32 s{sT0}, s{sFB}, 8")
    a(f"s_lshl_b32 s{sT1}, s{sWF}, 7")
    a(f"s_add_u32 s{sT0}, s{sT0}, s{sT1}")
    vm.issue(f"buffer_load_ushort v{vb1}, v{vt}, s[{SB1}:{SB1+3}], s{sT0} offen", "B1")
    vm.issue(f"buffer_load_ushort v{vb1+1}, v{vt}, s[{SB1}:{SB1+3}], s{sT0} offen offset:64", "B1")
    vpf = V.get(); vdum = V.get()
    if PFX:
        a(f"v_and_b32 v{vt2}, 31, v{vlane}")
        a(f"v_mul_u32_u24 v{vpf}, 896, v{vt2}")
        a(f"s_lshl_b32 s{sT0}, s{sLB}, 7")
        a(f"s_lshl_b32 s{sT1}, s{sW}, 5")
        a(f"s_add_u32 s{sT0}, s{sT0}, s{sT1}")
        a(f"s_mul_i32 s{sT0}, s{sT0}, 896")
        a(f"s_lshl_b32 s{sT1}, s{sJm}, 7")
        a(f"s_add_u32 s{sT0}, s{sT0}, s{sT1}")
        a(f"s_add_u32 s{sT0}, s{sT0}, 256")
        a(f"s_cmp_lt_u32 s{sJm}, 5")
        a(f"s_cselect_b32 s{sT0}, s{sT0}, {X_BYTES}")
        a(f"s_mov_b32 exec_hi, 0")
        vm.issue(f"buffer_load_dword v{vdum}, v{vpf}, s[{SX}:{SX+3}], s{sT0} offen", "PF")
        a(f"s_mov_b32 exec_hi, -1")
        a(f"v_lshrrev_b32 v{vt2}, 1, v{vlane}")
        a(f"v_mul_u32_u24 v{vpf}, 3584, v{vt2}")
        a(f"v_and_b32 v{vt2}, 1, v{vlane}")
        a(f"v_lshl_add_u32 v{vpf}, v{vt2}, 7, v{vpf}")
        a(f"s_mul_i32 s{sT0}, s{sJ7}, 80")
        a(f"s_mul_i32 s{sT1}, s{sW}, 20")
        a(f"s_add_u32 s{sT0}, s{sT0}, s{sT1}")
        a(f"s_add_u32 s{sT0}, s{sT0}, 128")
        a(f"s_mul_i32 s{sT0}, s{sT0}, 3584")
        a(f"s_lshl_b32 s{sT1}, s{sFB}, 8")
        a(f"s_add_u32 s{sT0}, s{sT0}, s{sT1}")
        a(f"s_mov_b32 exec_hi, 0xff")
        vm.issue(f"buffer_load_dword v{vdum}, v{vpf}, s[{SW1}:{SW1+3}], s{sT0} offen", "PF")
        a(f"s_mov_b32 exec_hi, -1")
    def pf_w2():
        a(f"v_mul_u32_u24 v{vpf}, 896, v{vlane}")
        a(f"s_mul_i32 s{sT0}, s{sJ7}, 448")
        a(f"s_mul_i32 s{sT1}, s{sW}, 112")
        a(f"s_add_u32 s{sT0}, s{sT0}, s{sT1}")
        a(f"s_mul_i32 s{sT0}, s{sT0}, 896")
        a(f"s_lshl_b32 s{sT1}, s{sJm}, 7")
        a(f"s_add_u32 s{sT0}, s{sT0}, s{sT1}")
        vm.issue(f"buffer_load_dword v{vdum}, v{vpf}, s[{SW2}:{SW2+3}], s{sT0} offen", "PF")
        a(f"s_add_u32 s{sT0}, s{sT0}, {64*896}")
        a(f"s_mov_b32 exec_hi, 0xffff")
        vm.issue(f"buffer_load_dword v{vdum}, v{vpf}, s[{SW2}:{SW2+3}], s{sT0} offen", "PF")
        a(f"s_mov_b32 exec_hi, -1")
    vB = [V.get(), V.get()]; vA = [V.get(), V.get()]
    vBh = [V.get(), V.get()]; vAh = [V.get(), V.get()]
    vn = V.get(); vhh = V.get()
    a(f"v_and_b32 v{vn}, 31, v{vlane}")
    a(f"v_lshrrev_b32 v{vhh}, 5, v{vlane}")
    a(f"v_bfe_u32 v{vt}, v{vn}, 2, 2")
    a(f"v_xor_b32 v{vt}, v{vt}, v{vhh}")
    a(f"s_lshl_b32 s{sT0}, s{sWL}, 12")
    a(f"v_lshl_add_u32 v{vt2}, v{vn}, 6, s{sT0}")
    a(f"v_lshl_add_u32 v{vB[0]}, v{vt}, 4, v{vt2}")
    a(f"v_xor_b32 v{vB[1]}, 32, v{vB[0]}")
    vr_ = V.get()
    a(f"v_bfe_u32 v{vr_}, v{vlane}, 2, 2")
    a(f"v_lshl_add_u32 v{vt}, v{vhh}, 3, v{vr_}")
    a(f"v_lshlrev_b32 v{vt}, 8, v{vt}")
    a(f"v_bfe_u32 v{vt2}, v{vlane}, 4, 1")
    a(f"v_lshl_add_u32 v{vt}, v{vt2}, 5, v{vt}")
    a(f"v_and_b32 v{vt2}, 3, v{vlane}")
    a(f"v_lshl_add_u32 v{vt}, v{vt2}, 3, v{vt}")
    a(f"v_add_u32 v{vt}, 8192, v{vt}")
    a(f"s_lshl_b32 s{sT0}, s{sWF}, 1")
    a(f"v_xor_b32 v{vt2}, s{sT0}, v{vr_}")
    a(f"v_lshl_add_u32 v{vA[0]}, v{vt2}, 6, v{vt}")
    a(f"v_xor_b32 v{vA[1]}, 64, v{vA[0]}")
    for k in range(2):
        a(f"v_add_u32 v{vBh[k]}, 49152, v{vB[k]}")
        a(f"v_add_u32 v{vAh[k]}, 49152, v{vA[k]}")
    acc = [[V.get(16, 4) for lt in range(2)] for ft in range(2)]
    fa = [[[V.get(4, 4) for s in range(2)] for ft in range(2)] for p in range(2)]
    fb = [[[V.get(4, 4) for s in range(2)] for lt in range(2)] for p in range(2)]
    cs = [V.get(), V.get()]
    ones = V.get()
    ST = [V.get(8, 4), V.get(8, 4)]
    vso = V.get()
    vD = V.get(); vl4 = V.get()
    a(f"v_lshlrev_b32 v{vl4}, 2, v{vlane}")
    for ft in range(2):
        for lt in range(2):
            for i in range(16): a(f"v_mov_b32 v{acc[ft][lt]+i}, 0")
    a(f"v_mov_b32 v{cs[0]}, 0"); a(f"v_mov_b32 v{cs[1]}, 0")
    a(f"v_mov_b32 v{ones}, 0x3f803f80")
    a(f"v_lshlrev_b32 v{vso}, 5, v{vn}")

    def reads(c):
        p = c % 2; slot = c % NST
        B_, A_, off = (vB, vA, slot*16384) if slot < 3 else (vBh, vAh, (slot-3)*16384)
        l = []
        for s in range(2):
            for lt in range(2):
                l.append(f"ds_read_b128 v[{fb[p][lt][s]}:{fb[p][lt][s]+3}], v{B_[s]} offset:{off+2048*lt}")
            for ft in range(2):
                b = fa[p][ft][s]
                l.append(f"ds_read_b64_tr_b16 v[{b}:{b+1}], v{A_[ft]} offset:{off+4096*s}")
                l.append(f"ds_read_b64_tr_b16 v[{b+2}:{b+3}], v{A_[ft]} offset:{off+4096*s+1024}")
        return l
    def mfmas(p):
        l = []
        for s in range(2):
            for ft in range(2):
                for lt in range(2):
                    A = fa[p][ft][s]; B = fb[p][lt][s]; C = acc[ft][lt]
                    l.append(f"v_mfma_f32_32x32x16_bf16 v[{C}:{C+15}], v[{A}:{A+3}], v[{B}:{B+3}], v[{C}:{C+15}]")
        return l
    def dots(p):
        l = []
        for s in range(2):
            for i in range(4):
                for ft in range(2):
                    l.append(f"v_dot2c_f32_bf16 v{cs[ft]}, v{fa[p][ft][s]+i}, v{ones}")
        return l
    def stat_loads(issue):
        a(f"s_lshl_b32 s{sT0}, s{sLB}, 12")
        a(f"s_lshl_b32 s{sT1}, s{sWL}, 11")
        a(f"s_add_u32 s{sT0}, s{sT0}, s{sT1}")
        a(f"s_add_u32 s{sT0}, s{sT0}, {WS_STAT}")
        for lt in range(2):
            issue(f"buffer_load_dwordx4 v[{ST[lt]}:{ST[lt]+3}], v{vso}, s[{SWS}:{SWS+3}], s{sT0} offen offset:{1024*lt} sc1")
            issue(f"buffer_load_dwordx4 v[{ST[lt]+4}:{ST[lt]+7}], v{vso}, s[{SWS}:{SWS+3}], s{sT0} offen offset:{1024*lt+16} sc1")
        if fused:
            issue(f"buffer_load_dword v{vD}, v{vl4}, s[{SDBG}:{SDBG+3}], 0 offen sc1")
    if "twice" in G1X:
        a("s_mov_b32 s97, 0")
        a.label("G1_TW")
        a("s_waitcnt vmcnt(0) lgkmcnt(0)")
        a("s_barrier")
        ts.at(8)
        vm.q = []
        for c in range(4): dma(c)
    for c in range(14):
        both(a, vm, lg, [("S", c)], ["R"])
        a("s_barrier")
        if c == 0 and ts: ts.at(1)
        rd = reads(c) if "noreads" not in G1X else []
        mm = mfmas((c-1) % 2) if c >= 1 else []
        dd = dots((c-1) % 2) if c >= 1 else []
        if "nodots" in G1X: dd = []
        if "nomfma" in G1X:
            for l in rd: lg.issue(l, "R")
            rd = []; mm = []
            for l in dd: a(l)
        if mm: a(mm[0])
        for l in rd[:6]: lg.issue(l, "R")
        if mm: a(mm[1])
        for l in rd[6:]: lg.issue(l, "R")
        if c + 4 < 14 and "nodma" not in G1X: dma(c + 4)
        if c == PFW2_STEP and PFX and fused: pf_w2()
        if c == STAT_STEP: stat_loads(lambda t: vm.issue(t, "ST"))
        if mm: interleave(mm[2:], dd, a)
    lg.waitall()
    if "twice" in G1X:
        a("s_add_u32 s97, s97, 1")
        a("s_cmp_lt_u32 s97, 2")
        a("s_cbranch_scc0 G1_TWE")
        ts.at(10)
        a("s_branch G1_TW")
        a.label("G1_TWE")
        ts.at(9)
        ts.flush(SWS, vt, vt2)
        a("s_endpgm")
    if fused:
        a("s_barrier")
        g2.g2_early(a, G2S, vm, vlane, vt, vt2, vt3)
    interleave(mfmas(1), dots(1), a)
    if ts: ts.at(2)
    FA = [fa[0][0][0], fa[0][0][1]]
    t0 = fb[0][0][0]; t1 = t0 + 1
    a(f"s_mov_b32 s{sM}, -1"); a(f"s_mov_b32 s{sM+1}, 0")
    if fused:
        vm.wait(["ST", "B1"])
        lck = a.newlabel("G1_CK"); lok = a.newlabel("G1_OK")
        a(f"s_mov_b32 s{sCNT}, {POLL_MAX}")
        a.label(lck)
        a(f"s_lshl_b32 s{sT0}, s{sLB}, 2")
        a(f"s_lshl_b32 s{sT1}, s{sWL}, 1")
        a(f"s_add_u32 s{sT0}, s{sT0}, s{sT1}")
        a(f"s_add_u32 s{sT1}, s{sT0}, 1")
        a(f"v_readlane_b32 s{sNONCE}, v{vD}, 0")
        a(f"v_readlane_b32 s{sTG0}, v{vD}, s{sT0}")
        a(f"v_readlane_b32 s{sTG1}, v{vD}, s{sT1}")
        a(f"v_xor_b32 v{t0}, s{sTG0}, v{ST[0]+3}")
        a(f"v_xor_b32 v{t1}, s{sTG0}, v{ST[0]+7}")
        a(f"v_or_b32 v{t0}, v{t0}, v{t1}")
        a(f"v_xor_b32 v{t1}, s{sTG1}, v{ST[1]+3}")
        a(f"v_or_b32 v{t0}, v{t0}, v{t1}")
        a(f"v_xor_b32 v{t1}, s{sTG1}, v{ST[1]+7}")
        a(f"v_or_b32 v{t0}, v{t0}, v{t1}")
        a(f"v_cmp_ne_u32 vcc, 0, v{t0}")
        a(f"s_and_b32 s{sT0}, s{sTG0}, s{sTG1}")
        a(f"s_and_b32 s{sT0}, s{sT0}, s{sNONCE}")
        a(f"s_and_b32 s{sT0}, s{sT0}, 1")
        a(f"s_xor_b32 s{sT0}, s{sT0}, 1")
        a(f"s_or_b32 s{sT0}, s{sT0}, vcc_lo")
        a(f"s_or_b32 s{sT0}, s{sT0}, vcc_hi")
        a(f"s_cmp_eq_u32 s{sT0}, 0")
        a(f"s_cbranch_scc1 {lok}")
        a(f"s_sub_u32 s{sCNT}, s{sCNT}, 1")
        a(f"s_cbranch_scc1 {lok}")
        stat_loads(a)
        a("s_waitcnt vmcnt(0)")
        a(f"s_branch {lck}")
        a.label(lok)
        a(f"v_mov_b32 v{ST[0]+3}, 0"); a(f"v_mov_b32 v{ST[1]+3}, 0")
    else:
        a("s_waitcnt vmcnt(0)")
    if ts: ts.at(3)
    for ft in range(2):
        c = cs[ft]; d = FA[ft]
        a(f"v_mov_b32 v{t0}, v{c}")
        a(f"v_permlane32_swap_b32 v{c}, v{t0}")
        a(f"v_add_f32 v{c}, v{c}, v{t0}")
        a(f"v_cvt_pk_bf16_f32 v{d}, v{c}, v{c}")
        a(f"v_and_b32 v{t1}, 0xffff0000, v{d}")
        a(f"v_sub_f32 v{t1}, v{c}, v{t1}")
        a(f"v_and_b32 v{d+1}, 0xffff, v{d}")
        a(f"v_cvt_pk_bf16_f32 v{d}, v{c}, v{t1}")
        a(f"v_lshl_or_b32 v{d+1}, v{vb1+ft}, 16, v{d+1}")
        a(f"v_mov_b32 v{d+2}, v{vb1+ft}")
        a(f"v_mov_b32 v{d+3}, 0")
        for k in range(3):
            a(f"v_cndmask_b32 v{d+k}, 0, v{d+k}, s[{sM}:{sM+1}]")
    for ft in range(2):
        for lt in range(2):
            C = acc[ft][lt]
            a(f"v_mfma_f32_32x32x16_bf16 v[{C}:{C+15}], v[{FA[ft]}:{FA[ft]+3}], v[{ST[lt]}:{ST[lt]+3}], v[{C}:{C+15}]")
    vho = V.get()
    a(f"v_lshlrev_b32 v{vho}, 4, v{vlane}")
    a(f"s_lshl_b32 s{sT0}, s{sLB}, 2")
    a(f"s_lshl_b32 s{sT1}, s{sWL}, 1")
    a(f"s_add_u32 s{sT0}, s{sT0}, s{sT1}")
    a(f"s_mul_i32 s{sT0}, s{sT0}, 112")
    a(f"s_lshl_b32 s{sT1}, s{sFB}, 3")
    a(f"s_add_u32 s{sT0}, s{sT0}, s{sT1}")
    a(f"s_lshl_b32 s{sT1}, s{sWF}, 2")
    a(f"s_add_u32 s{sT0}, s{sT0}, s{sT1}")
    a(f"s_lshl_b32 s{sT0}, s{sT0}, 10")
    a(f"s_add_u32 s{sT0}, s{sT0}, {WS_HF}")
    a(f"s_add_u32 s{sT1}, s{sT0}, {112*1024}")
    TA = [fa[1][0][0], fb[1][0][0]]
    TB = [fb[0][0][0], fb[0][1][0]]
    blk = 0
    for lt in range(2):
        K = ST[lt] + 4
        for ft in range(2):
            for kp in range(2):
                A0 = acc[ft][lt] + 8*kp
                T = TA[blk % 2]; O = TB[blk % 2]
                for k in range(4):
                    a(f"v_pk_mul_f32 v[{T+2*k}:{T+2*k+1}], v[{A0+2*k}:{A0+2*k+1}], v[{A0+2*k}:{A0+2*k+1}]")
                for k in range(4):
                    a(f"v_pk_fma_f32 v[{T+2*k}:{T+2*k+1}], v[{T+2*k}:{T+2*k+1}], v[{K}:{K+1}], v[{K}:{K+1}] op_sel:[0,1,0] op_sel_hi:[1,1,0]")
                for k in range(4):
                    a(f"v_pk_mul_f32 v[{T+2*k}:{T+2*k+1}], v[{T+2*k}:{T+2*k+1}], v[{A0+2*k}:{A0+2*k+1}]")
                for k in range(8):
                    a(f"v_exp_f32 v{T+k}, v{T+k}")
                for k in range(4):
                    a(f"v_pk_fma_f32 v[{T+2*k}:{T+2*k+1}], v[{T+2*k}:{T+2*k+1}], v[{K+2}:{K+3}], v[{K+2}:{K+3}] op_sel:[0,0,0] op_sel_hi:[1,0,0]")
                for k in range(8):
                    a(f"v_rcp_f32 v{T+k}, v{T+k}")
                for k in range(4):
                    a(f"v_pk_mul_f32 v[{T+2*k}:{T+2*k+1}], v[{T+2*k}:{T+2*k+1}], v[{A0+2*k}:{A0+2*k+1}]")
                for k in range(4):
                    a(f"v_cvt_pk_bf16_f32 v{O+k}, v{T+2*k}, v{T+2*k+1}")
                so = sT0 if lt == 0 else sT1
                txt = f"buffer_store_dwordx4 v[{O}:{O+3}], v{vho}, s[{SWS}:{SWS+3}], s{so} offen offset:{(2*ft+kp)*1024} sc1"
                if fused: vm.issue(txt, "H")
                else: a(txt)
                blk += 1
    if ts: ts.at(4)
    if fused: return V, vm
    return V
```

```python
from common import *
from track import Cnt, both
import math

U_SZ = 17408
L_U = 0
L_KR = 2 * U_SZ
KR_SZ = 4608
L_T32 = L_KR + 2 * KR_SZ
T32_SZ = 3072
L_FR = L_T32 + 2 * T32_SZ
FR_SZ = 4352
L_END = L_FR + 4 * FR_SZ
assert L_END <= 81920
LOG2E = 1.4426950408889634

def cmul(a, d, z, w, conjw=False):
    a(f"v_pk_mul_f32 v[{d}:{d+1}], v[{z}:{z+1}], v[{w}:{w+1}] op_sel:[0,0] op_sel_hi:[1,0]")
    a(f"v_pk_fma_f32 v[{d}:{d+1}], v[{z}:{z+1}], v[{w}:{w+1}], v[{d}:{d+1}] op_sel:[1,1,0] op_sel_hi:[0,1,1] neg_lo:[0,1,0]")

def cmul2(a, items):
    for d, z, w in items:
        assert d != z and d != w
        a(f"v_pk_mul_f32 v[{d}:{d+1}], v[{z}:{z+1}], v[{w}:{w+1}] op_sel:[0,0] op_sel_hi:[1,0]")
    for d, z, w in items:
        a(f"v_pk_fma_f32 v[{d}:{d+1}], v[{z}:{z+1}], v[{w}:{w+1}], v[{d}:{d+1}] op_sel:[1,1,0] op_sel_hi:[0,1,1] neg_lo:[0,1,0]")

def gen_ssm(a, sP, hooks=None, S=None, ts=None):
    hooks = hooks or {}
    V = VAlloc(1, 248)
    vm = Cnt(a, "vmcnt", 63); lg = Cnt(a, "lgkmcnt", 15)
    SLAR, SAIM, SCRE, SCIM, SWS = 4, 8, 12, 16, 20
    sLDT, sDSK = 24, 26
    sW, sCH, sHW, sD, sT0, sT1, sT2, sDT, sDS, sUB = 32, 33, 34, 35, 36, 37, 38, 39, 40, 41
    for s, k in ((SLAR, 'lar'), (SAIM, 'aim'), (SCRE, 'cre'), (SCIM, 'cim'), (SWS, 'ws'), (sLDT, 'ldt'), (sDSK, 'dsk')):
        a(f"s_load_dwordx2 s[{s}:{s+1}], s[0:1], {KA[k]}")
    if "pre" in hooks: hooks["pre"](a)
    vlane = V.get(); vt = V.get(); vt2 = V.get(); vt3 = V.get()
    a(f"v_and_b32 v{vlane}, 63, v0")
    a(f"v_lshrrev_b32 v{vt}, 6, v0")
    a(f"v_readfirstlane_b32 s{sW}, v{vt}")
    a(f"s_lshr_b32 s{sCH}, s{sW}, 1")
    a(f"s_and_b32 s{sHW}, s{sW}, 1")
    a(f"s_lshl_b32 s{sD}, s{sP}, 1")
    a(f"s_add_u32 s{sD}, s{sD}, s{sCH}")
    vpo = V.get()
    a(f"v_lshlrev_b32 v{vpo}, 2, v{vlane}")
    a(f"s_lshl_b32 s{sT0}, s{sD}, 9")
    a(f"s_lshl_b32 s{sT1}, s{sHW}, 8")
    a(f"s_add_u32 s{sT0}, s{sT0}, s{sT1}")
    a(f"s_lshl_b32 s{sT2}, s{sP}, 2")
    a("s_waitcnt lgkmcnt(0)")
    for s in (SLAR, SAIM, SCRE, SCIM): srd_fin(a, s, D * N * 2)
    srd_fin(a, SWS, WS_SIZE)
    if "post" in hooks: hooks["post"](a)
    PR = V.get(4)
    for i, s in enumerate((SLAR, SAIM, SCRE, SCIM)):
        vm.issue(f"buffer_load_dword v{PR+i}, v{vpo}, s[{s}:{s+3}], s{sT0} offen", "P")
    a(f"s_load_dword s{sDT}, s[{sLDT}:{sLDT+1}], s{sT2}")
    a(f"s_load_dword s{sDS}, s[{sDSK}:{sDSK+1}], s{sT2}")
    Z = V.get(2, 2)
    a(f"v_mov_b32 v{Z}, 0"); a(f"v_mov_b32 v{Z+1}, 0")
    a(f"v_lshlrev_b32 v{vt2}, 3, v{vlane}")
    a(f"s_mul_i32 s{sT0}, s{sCH}, {KR_SZ}")
    a(f"v_add_u32 v{vt2}, s{sT0}, v{vt2}")
    a(f"ds_write_b64 v{vt2}, v[{Z}:{Z+1}] offset:{L_KR + 4096}")
    GI = V.get(16)
    vtau = V.get(); vf = V.get(2, 2)
    a(f"s_lshl_b32 s{sT0}, s{sHW}, 6")
    a(f"v_add_u32 v{vtau}, s{sT0}, v{vlane}")
    a(f"v_lshlrev_b32 v{vt}, 1, v{vtau}")
    a(f"v_sub_u32 v{vt}, 2047, v{vt}")
    a(f"v_cvt_f32_u32 v{vf}, v{vt}")
    a(f"v_add_f32 v{vf+1}, -1.0, v{vf}")
    a(f"s_mul_i32 s{sT0}, s{sCH}, {T32_SZ}")
    a(f"s_add_u32 s{sT0}, s{sT0}, {L_T32}")
    a(f"s_sub_u32 s{sT1}, s{sT0}, {(0x4300 - 128) * 4}")
    C256 = V.get(2, 2)
    a(f"v_mov_b32 v{C256}, {fl(-256.0)}"); a(f"v_mov_b32 v{C256+1}, {fl(-256.0)}")
    for k in range(7):
        a(f"v_cvt_pk_bf16_f32 v{vt2}, v{vf}, v{vf+1}")
        a(f"v_and_b32 v{vt3}, 0xffff, v{vt2}")
        a(f"v_lshl_add_u32 v{GI+2*k}, v{vt3}, 2, s{sT1}")
        a(f"v_lshrrev_b32 v{vt3}, 16, v{vt2}")
        a(f"v_lshl_add_u32 v{GI+2*k+1}, v{vt3}, 2, s{sT1}")
        if k < 6: a(f"v_pk_add_f32 v[{vf}:{vf+1}], v[{vf}:{vf+1}], v[{C256}:{C256+1}]")
    a(f"v_subrev_u32 v{vt}, {7*256}, v{vt}")
    a(f"v_lshl_add_u32 v{GI+14}, v{vt}, 2, s{sT0}")
    a(f"v_add_u32 v{GI+15}, -4, v{GI+14}")
    vfw = V.get(); vfr = V.get()
    a(f"s_mul_i32 s{sT0}, s{sW}, {FR_SZ}")
    a(f"s_add_u32 s{sT0}, s{sT0}, {L_FR}")
    a(f"v_lshrrev_b32 v{vt}, 4, v{vlane}")
    a(f"v_mul_u32_u24 v{vfw}, 1088, v{vt}")
    a(f"v_bfe_u32 v{vt2}, v{vlane}, 2, 2")
    a(f"v_mul_u32_u24 v{vt2}, 272, v{vt2}")
    a(f"v_add_u32 v{vfw}, v{vfw}, v{vt2}")
    a(f"v_and_b32 v{vt2}, 3, v{vlane}")
    a(f"v_lshl_add_u32 v{vfw}, v{vt2}, 2, v{vfw}")
    a(f"v_add_u32 v{vfw}, s{sT0}, v{vfw}")
    a(f"v_mul_u32_u24 v{vfr}, 272, v{vt}")
    a(f"v_and_b32 v{vt2}, 15, v{vlane}")
    a(f"v_lshl_add_u32 v{vfr}, v{vt2}, 4, v{vfr}")
    a(f"v_add_u32 v{vfr}, s{sT0}, v{vfr}")
    vsa = V.get(); vsb0 = V.get(); vsb1 = V.get(); vsc = V.get()
    a(f"s_mul_i32 s{sT0}, s{sCH}, {T32_SZ}")
    a(f"s_add_u32 s{sT0}, s{sT0}, {L_T32}")
    a(f"v_lshrrev_b32 v{vt3}, 1, v{vt}")
    a(f"v_lshlrev_b32 v{vsa}, 7, v{vt3}")
    a(f"v_lshl_add_u32 v{vsa}, v{vt2}, 3, v{vsa}")
    a(f"v_and_b32 v{vsb0}, 1, v{vt}")
    a(f"v_lshl_add_u32 v{vsa}, v{vsb0}, 2, v{vsa}")
    a(f"v_lshl_add_u32 v{vsa}, v{vsa}, 2, s{sT0}")
    a(f"v_lshlrev_b32 v{vsb0}, 1, v{vt2}")
    a(f"v_lshlrev_b32 v{vsb1}, 2, v{vt2}")
    a(f"v_cmp_gt_u32 vcc, 2, v{vt}")
    a(f"v_cndmask_b32 v{vsb0}, v{vsb0}, v{vsb1}, vcc")
    a(f"v_lshl_add_u32 v{vsb0}, v{vt}, 6, v{vsb0}")
    a(f"v_add_u32 v{vsb0}, 256, v{vsb0}")
    a(f"v_mov_b32 v{vsb1}, 32")
    a(f"v_cndmask_b32 v{vsb1}, v{vsb1}, 2, vcc")
    a(f"v_add_u32 v{vsb1}, v{vsb1}, v{vsb0}")
    a(f"v_lshl_add_u32 v{vsb0}, v{vsb0}, 2, s{sT0}")
    a(f"v_lshl_add_u32 v{vsb1}, v{vsb1}, 2, s{sT0}")
    a(f"v_lshl_add_u32 v{vsc}, v{vt}, 6, v{vt2}")
    a(f"v_add_u32 v{vsc}, 512, v{vsc}")
    a(f"v_lshl_add_u32 v{vsc}, v{vsc}, 2, s{sT0}")
    vdt = V.get(); vds = V.get()
    a("s_waitcnt lgkmcnt(0)")
    a(f"s_lshl_b32 s{sT0}, s{sCH}, 4")
    a(f"s_lshr_b32 s{sDT}, s{sDT}, s{sT0}")
    a(f"s_lshl_b32 s{sDT}, s{sDT}, 16")
    a(f"s_lshr_b32 s{sDS}, s{sDS}, s{sT0}")
    a(f"s_lshl_b32 s{sDS}, s{sDS}, 16")
    a(f"v_mov_b32 v{vdt}, {fl(LOG2E)}")
    a(f"v_mul_f32 v{vdt}, s{sDT}, v{vdt}")
    a(f"v_exp_f32 v{vdt}, v{vdt}")
    bf16r(a, vdt, vdt)
    a(f"s_cmp_eq_u32 s{sHW}, 0")
    a(f"s_cselect_b32 s{sDS}, s{sDS}, 0")
    a(f"v_mov_b32 v{vds}, s{sDS}")
    a(f"v_cmp_eq_u32 vcc, 0, v{vlane}")
    a(f"v_cndmask_b32 v{vds}, 0, v{vds}, vcc")
    mark = V.mark()
    ACC = [V.get(4, 4) for _ in range(3)]
    for t in range(3):
        for i in range(4): a(f"v_mov_b32 v{ACC[t]+i}, 0")
    LF = V.get(16, 4); HF = [V.get(16, 4), V.get(16, 4)]
    E1, E2, E4, E8, E16, E128, E256 = [V.get(2, 2) for _ in range(7)]
    P = [V.get(2, 2) for _ in range(17)]
    W = [V.get(2, 2) for _ in range(8)]
    CV = V.get(16)
    x0 = V.get(); x1 = V.get(); x2 = V.get(); x3 = V.get(); xr = V.get(); xi = V.get()
    if ts: ts.at(1)
    vm.wait("P")
    if ts: ts.at(2)
    def expk(dst, k, conj):
        if k == 1:
            a(f"v_exp_f32 v{x0}, v{xr}")
            a(f"v_fract_f32 v{x1}, v{xi}")
        else:
            a(f"v_mul_f32 v{x0}, {fl(float(k))}, v{xr}")
            a(f"v_mul_f32 v{x1}, {fl(float(k))}, v{xi}")
            a(f"v_exp_f32 v{x0}, v{x0}")
            a(f"v_fract_f32 v{x1}, v{x1}")
        a(f"v_cos_f32 v{dst}, v{x1}")
        a(f"v_sin_f32 v{dst+1}, v{x1}")
        a(f"v_mul_f32 v{dst}, v{x0}, v{dst}")
        if conj: a(f"v_mul_f32 v{dst+1}, -v{x0}, v{dst+1}")
        else: a(f"v_mul_f32 v{dst+1}, v{x0}, v{dst+1}")
    def wr_rows(vals, n):
        i = 0
        while i < n:
            if i + 1 < n:
                lg.issue(f"ds_write2_b32 v{vfw}, v{vals[i]}, v{vals[i+1]} offset0:{4*i} offset1:{4*i+4}", "W"); i += 2
            else:
                lg.issue(f"ds_write_b32 v{vfw}, v{vals[i]} offset:{16*i}", "W"); i += 1
    def rd_frags(dst, tag):
        for s in range(4):
            lg.issue(f"ds_read_b128 v[{dst+4*s}:{dst+4*s+3}], v{vfr} offset:{1088*s}", tag)
    def mf(t, H):
        for s in range(4):
            a(f"v_mfma_f32_16x16x32_bf16 v[{ACC[t]}:{ACC[t]+3}], v[{H+4*s}:{H+4*s+3}], v[{LF+4*s}:{LF+4*s+3}], v[{ACC[t]}:{ACC[t]+3}]")
    def cv(dst, z): a(f"v_cvt_pk_bf16_f32 v{dst}, v{z}, v{z+1}")
    pend = None
    for ps in range(2):
        def unp(dst, src):
            if ps == 0: a(f"v_lshlrev_b32 v{dst}, 16, v{src}")
            else: a(f"v_and_b32 v{dst}, 0xffff0000, v{src}")
        unp(x0, PR + 0)
        a(f"v_mul_f32 v{x0}, {fl(LOG2E)}, v{x0}")
        a(f"v_exp_f32 v{x0}, v{x0}")
        unp(x1, PR + 1)
        unp(x2, PR + 2)
        unp(x3, PR + 3)
        bf16r(a, x0, x0)
        a(f"v_mul_f32 v{xr}, v{x0}, v{vdt}")
        a(f"v_mul_f32 v{xi}, v{x1}, v{vdt}")
        a(f"v_mul_f32 v{xr}, {fl(-LOG2E)}, v{xr}")
        a(f"v_mul_f32 v{xi}, {fl(1.0/(2*math.pi))}, v{xi}")
        a(f"v_mul_f32 v{x2}, v{x2}, v{vdt}")
        a(f"v_mul_f32 v{x3}, v{x3}, v{vdt}")
        a(f"v_add_f32 v{P[0]}, v{x2}, v{x2}")
        a(f"v_add_f32 v{P[0]+1}, v{x3}, v{x3}")
        expk(E8, 8, True)
        expk(E128, 128, False)
        expk(E1, 1, False)
        if pend is not None:
            lg.wait(pend[2]); mf(pend[0], pend[1]); pend = None
        cmul2(a, [(E16, E8, E8), (E256, E128, E128), (E2, E1, E1), (P[1], P[0], E128)])
        if ts and ps == 0: ts.at(9)
        a(f"v_mov_b32 v{CV}, 0x3f80")
        cv(CV + 1, E8); cv(CV + 2, E16)
        ev, od = E16, E8
        wi = 0
        cur_e, cur_o = E16, E8
        first = True
        for k in range(1, 8):
            no = W[wi % 4]; ne = W[(wi + 1) % 4]; wi += 2
            items = [(no, cur_o, E16)]
            if 2*k + 2 <= 14: items.append((ne, cur_e, E16))
            if k == 1: items.append((E4, E2, E2))
            items.append((P[2*k], P[2*k-2], E256)); items.append((P[2*k+1], P[2*k-1], E256))
            cmul2(a, items)
            cv(CV + 2*k + 1, no)
            if 2*k + 2 <= 14: cv(CV + 2*k + 2, ne)
            cur_o, cur_e = no, ne
        cmul2(a, [(P[16], P[14], E256)])
        wr_rows([CV + i for i in range(16)], 16)
        rd_frags(LF, "L")
        if ts and ps == 0: ts.at(10)
        cv(CV + 0, P[0]); cv(CV + 8, P[1])
        c0, c1 = P[0], P[1]
        for b in range(1, 8):
            n0 = W[(2*b) % 4]; n1 = W[(2*b + 1) % 4]
            cmul2(a, [(n0, c0, E1), (n1, c1, E1)])
            cv(CV + b, n0); cv(CV + 8 + b, n1)
            c0, c1 = n0, n1
        wr_rows([CV + i for i in range(16)], 16)
        rd_frags(HF[0], "A")
        cv(CV + 0, P[2]); cv(CV + 4, P[3])
        c0, c1 = P[2], P[3]
        for b in range(1, 4):
            n0 = W[(2*b) % 4]; n1 = W[(2*b + 1) % 4]
            cmul2(a, [(n0, c0, E2), (n1, c1, E2)])
            cv(CV + b, n0); cv(CV + 4 + b, n1)
            c0, c1 = n0, n1
        cmul2(a, [(W[4+i], P[4+i], E4) for i in range(4)])
        for i in range(4):
            cv(CV + 8 + 2*i, P[4+i]); cv(CV + 9 + 2*i, W[4+i])
        wr_rows([CV + i for i in range(16)], 16)
        lg.wait("A"); mf(0, HF[0])
        rd_frags(HF[1], "B")
        for i in range(9): cv(CV + i, P[8+i])
        wr_rows([CV + i for i in range(9)], 9)
        lg.wait("B"); mf(1, HF[1])
        rd_frags(HF[0], "C")
        pend = (2, HF[0], "C")
        if ts and ps == 0: ts.at(11)
        if ps == 0 and "mid_kgen" in hooks: hooks["mid_kgen"](a, V, vm, lg)
    lg.wait(pend[2]); mf(pend[0], pend[1])
    a(f"v_add_f32 v{ACC[0]}, v{ACC[0]}, v{vds}")
    vxw = x0; vxr = x1
    XR = W[0]
    assert W[1] == W[0] + 2 and W[2] == W[0] + 4
    XR4 = CV
    XR4 = (CV + 3) // 4 * 4
    a(f"s_mul_i32 s{sT0}, s{sW}, {FR_SZ}")
    a(f"s_add_u32 s{sT0}, s{sT0}, {L_FR}")
    a(f"v_lshl_add_u32 v{vxw}, v{vlane}, 4, s{sT0}")
    a(f"s_xor_b32 s{sT1}, s{sW}, 1")
    a(f"s_mul_i32 s{sT0}, s{sT1}, {FR_SZ}")
    a(f"s_add_u32 s{sT0}, s{sT0}, {L_FR}")
    a(f"v_lshl_add_u32 v{vxr}, v{vlane}, 4, s{sT0}")
    lg.waitall()
    if ts: ts.at(12)
    lx1 = a.newlabel("SSM_X1"); lxe = a.newlabel("SSM_XE")
    a(f"s_cmp_eq_u32 s{sHW}, 1")
    a(f"s_cbranch_scc1 {lx1}")
    for hw in range(2):
        if hw == 1: a.label(lx1)
        send4 = ACC[2] if hw == 0 else ACC[0]
        send2 = ACC[1] + 2 if hw == 0 else ACC[1]
        keep4 = ACC[0] if hw == 0 else ACC[2]
        keep2 = ACC[1] if hw == 0 else ACC[1] + 2
        a(f"ds_write_b128 v{vxw}, v[{send4}:{send4+3}]")
        a(f"v_mov_b32 v{XR4+4}, v{send2}"); a(f"v_mov_b32 v{XR4+5}, v{send2+1}")
        a(f"ds_write_b128 v{vxw}, v[{XR4+4}:{XR4+7}] offset:1024")
        a("s_waitcnt lgkmcnt(0)")
        a("s_barrier")
        a(f"ds_read_b128 v[{XR4}:{XR4+3}], v{vxr}")
        a(f"ds_read_b128 v[{XR4+4}:{XR4+7}], v{vxr} offset:1024")
        a("s_waitcnt lgkmcnt(0)")
        for i in range(4): a(f"v_add_f32 v{keep4+i}, v{keep4+i}, v{XR4+i}")
        for i in range(2): a(f"v_add_f32 v{keep2+i}, v{keep2+i}, v{XR4+4+i}")
        if hw == 0:
            a(f"ds_write_b128 v{vsa}, v[{keep4}:{keep4+3}]")
            a(f"ds_write_b64 v{vsb0}, v[{keep2}:{keep2+1}]")
            a(f"s_branch {lxe}")
        else:
            a(f"ds_write_b64 v{vsb1}, v[{keep2}:{keep2+1}]")
            a(f"ds_write2_b32 v{vsc}, v{keep4}, v{keep4+1} offset0:0 offset1:16")
            a(f"ds_write2_b32 v{vsc}, v{keep4+2}, v{keep4+3} offset0:32 offset1:48")
    a.label(lxe)
    lg.cleared()
    for _ in range(3): lg.note("TS")
    if ts: ts.at(13)
    lg.waitall()
    a("s_barrier")
    G = V.get(16)
    for i in range(16): lg.issue(f"ds_read_b32 v{G+i}, v{GI+i}", ("G", i // 2))
    vkw = V.get()
    a(f"s_mul_i32 s{sT0}, s{sCH}, {KR_SZ}")
    a(f"s_add_u32 s{sT0}, s{sT0}, {L_KR}")
    a(f"v_lshl_add_u32 v{vkw}, v{vtau}, 2, s{sT0}")
    for k in range(8):
        lg.wait(("G", k))
        a(f"v_cvt_pk_bf16_f32 v{G+2*k}, v{G+2*k}, v{G+2*k+1}")
        if k % 2 == 1:
            lg.issue(f"ds_write2st64_b32 v{vkw}, v{G+2*k-2}, v{G+2*k} offset0:{2*(k-1)} offset1:{2*k}", "KW")
    lg.waitall()
    if "wait_ln" in hooks: hooks["wait_ln"](a, V, vm, lg)
    vuo = V.get()
    a(f"v_lshrrev_b32 v{vt}, 2, v{vlane}")
    a(f"v_lshlrev_b32 v{vuo}, 4, v{vt}")
    a(f"v_and_b32 v{vt}, 3, v{vlane}")
    a(f"v_lshl_add_u32 v{vuo}, v{vt}, 1, v{vuo}")
    a(f"s_mul_i32 s{sUB}, s{sCH}, {U_SZ}")
    a(f"s_mul_i32 s{sT0}, s{sD}, {XNT_PITCH}")
    a(f"s_mul_i32 s{sT1}, s{sHW}, {9*256}")
    a(f"s_add_u32 s{sT0}, s{sT0}, s{sT1}")
    a(f"s_add_u32 s{sT0}, s{sT0}, {WS_XNT + 98}")
    a(f"s_mul_i32 s{sT1}, s{sHW}, {9*1024}")
    a(f"s_add_u32 s{sT1}, s{sT1}, s{sUB}")
    for k in range(9):
        if k == 8:
            lsk = a.newlabel("SSM_SK")
            a(f"s_cmp_eq_u32 s{sHW}, 1")
            a(f"s_cbranch_scc1 {lsk}")
        a(f"s_add_u32 m0, s{sT1}, {1024*k}")
        a(f"s_add_u32 s{sT2}, s{sT0}, {256*k}")
        a(f"buffer_load_dwordx4 v{vuo}, s[{SWS}:{SWS+3}], s{sT2} offen sc1 lds")
        if k == 8: a.label(lsk)
    V.release(mark)
    vA1 = V.get(); vA2 = V.get(); vB = V.get()
    a(f"v_and_b32 v{vt}, 15, v{vlane}")
    a(f"v_lshrrev_b32 v{vt2}, 4, v{vlane}")
    a(f"v_lshl_add_u32 v{vt3}, v{vt2}, 3, v{vt}")
    a(f"v_lshrrev_b32 v{vA1}, 3, v{vt3}")
    a(f"v_lshlrev_b32 v{vA1}, 6, v{vA1}")
    a(f"v_and_b32 v{vA2}, 3, v{vt3}")
    a(f"v_lshl_add_u32 v{vA1}, v{vA2}, 4, v{vA1}")
    a(f"s_lshl_b32 s{sT0}, s{sHW}, 10")
    a(f"s_add_u32 s{sT0}, s{sT0}, s{sUB}")
    a(f"v_add_u32 v{vA1}, s{sT0}, v{vA1}")
    a(f"v_bfe_u32 v{vt3}, v{vt3}, 2, 1")
    a(f"v_mul_u32_u24 v{vA2}, 56, v{vt3}")
    a(f"v_lshl_add_u32 v{vA1}, v{vt3}, 3, v{vA1}")
    a(f"v_mul_u32_u24 v{vA2}, 48, v{vt3}")
    a(f"v_add3_u32 v{vA2}, v{vA2}, v{vA1}, 8")
    a(f"s_mul_i32 s{sT0}, s{sCH}, {KR_SZ}")
    a(f"s_lshl_b32 s{sT1}, s{sHW}, 8")
    a(f"s_add_u32 s{sT0}, s{sT0}, s{sT1}")
    a(f"s_add_u32 s{sT0}, s{sT0}, {L_KR + 480}")
    a(f"v_lshlrev_b32 v{vt}, 5, v{vt}")
    a(f"v_sub_u32 v{vB}, s{sT0}, v{vt}")
    a(f"v_lshl_add_u32 v{vB}, v{vt2}, 4, v{vB}")
    YA = [V.get(4, 4) for _ in range(8)]
    AF = [[V.get(4, 4) for _ in range(8)] for _ in range(2)]
    BFr = [[V.get(4, 4) for _ in range(8)] for _ in range(2)]
    for c in range(8):
        for i in range(4): a(f"v_mov_b32 v{YA[c]+i}, 0")
    a("s_waitcnt vmcnt(0) lgkmcnt(0)"); vm.cleared(); lg.cleared()
    if ts: ts.at(5)
    a("s_barrier")
    def reads(ph):
        st = ph % 2; l = []
        for T in range(8):
            b = BFr[st][T]
            l.append(f"ds_read_b128 v[{b}:{b+3}], v{vB} offset:{512*T + 64*ph}")
            f = AF[st][T]
            l.append(f"ds_read_b64 v[{f}:{f+1}], v{vA1} offset:{2048*T + 256*ph}")
            l.append(f"ds_read_b64 v[{f+2}:{f+3}], v{vA2} offset:{2048*T + 256*ph}")
        return l
    def mfmas(ph):
        st = ph % 2; l = []
        for T in range(8):
            for c in range(T, 8):
                bp = T - c + 7
                l.append(f"v_mfma_f32_16x16x32_bf16 v[{YA[c]}:{YA[c]+3}], v[{AF[st][T]}:{AF[st][T]+3}], v[{BFr[st][bp]}:{BFr[st][bp]+3}], v[{YA[c]}:{YA[c]+3}]")
        return l
    for l in reads(0): a(l)
    for ph in range(4):
        a("s_waitcnt lgkmcnt(0)")
        mm = mfmas(ph)
        rd = reads(ph + 1) if ph < 3 else []
        k = 0
        for i, m in enumerate(mm):
            a(m)
            if k < len(rd) and i < 30:
                a(rd[k]); k += 1
        while k < len(rd): a(rd[k]); k += 1
    if ts: ts.at(6)
    if "nonce" in hooks: hooks["nonce"](a, V, vm, lg)
    vrw = V.get(); vrr = V.get(); vso = V.get()
    a(f"s_mul_i32 s{sT0}, s{sW}, {FR_SZ}")
    a(f"s_add_u32 s{sT0}, s{sT0}, {L_FR}")
    a(f"v_lshl_add_u32 v{vrw}, v{vlane}, 4, s{sT0}")
    a(f"s_xor_b32 s{sT1}, s{sW}, 1")
    a(f"s_mul_i32 s{sT0}, s{sT1}, {FR_SZ}")
    a(f"s_add_u32 s{sT0}, s{sT0}, {L_FR}")
    a(f"v_lshl_add_u32 v{vrr}, v{vlane}, 4, s{sT0}")
    a(f"v_and_b32 v{vt}, 15, v{vlane}")
    a(f"v_lshlrev_b32 v{vso}, 5, v{vt}")
    a(f"v_bfe_u32 v{vt}, v{vlane}, 4, 1")
    a(f"v_lshl_add_u32 v{vso}, v{vt}, 9, v{vso}")
    a(f"v_lshrrev_b32 v{vt}, 5, v{vlane}")
    a(f"v_lshl_add_u32 v{vso}, v{vt}, 4, v{vso}")
    a(f"s_lshl_b32 s{sT0}, s{sD}, 12")
    a(f"s_lshl_b32 s{sT1}, s{sHW}, 11")
    a(f"s_add_u32 s{sT0}, s{sT0}, s{sT1}")
    a(f"s_add_u32 s{sT0}, s{sT0}, {WS_ST}")
    R = AF[0][0]
    O = AF[1][0]
    lh1 = a.newlabel("SSM_H1"); lend = a.newlabel("SSM_RE")
    a(f"s_cmp_eq_u32 s{sHW}, 1")
    a(f"s_cbranch_scc1 {lh1}")
    for hw in range(2):
        if hw == 1: a.label(lh1)
        mine = range(4*hw, 4*hw + 4); other = range(4*(1-hw), 4*(1-hw) + 4)
        for i, c in enumerate(other):
            a(f"ds_write_b128 v{vrw}, v[{YA[c]}:{YA[c]+3}] offset:{1024*i}")
        a("s_waitcnt lgkmcnt(0)")
        a("s_barrier")
        for i in range(4):
            a(f"ds_read_b128 v[{R+4*i}:{R+4*i+3}], v{vrr} offset:{1024*i}")
        for i, c in enumerate(mine):
            a(f"s_waitcnt lgkmcnt({3-i})")
            a(f"v_pk_add_f32 v[{R+4*i}:{R+4*i+1}], v[{R+4*i}:{R+4*i+1}], v[{YA[c]}:{YA[c]+1}]")
            a(f"v_pk_add_f32 v[{R+4*i+2}:{R+4*i+3}], v[{R+4*i+2}:{R+4*i+3}], v[{YA[c]+2}:{YA[c]+3}]")
            a(f"v_cvt_pk_bf16_f32 v{O+2*i}, v{R+4*i}, v{R+4*i+1}")
            a(f"v_cvt_pk_bf16_f32 v{O+2*i+1}, v{R+4*i+2}, v{R+4*i+3}")
        if hw == 0: a(f"s_branch {lend}")
    a.label(lend)
    for p in range(2):
        a(f"v_permlane16_swap_b32 v{O+4*p}, v{O+4*p+2}")
        a(f"v_permlane16_swap_b32 v{O+4*p+1}, v{O+4*p+3}")
    for p in range(2):
        a(f"buffer_store_dwordx4 v[{O+4*p}:{O+4*p+3}], v{vso}, s[{SWS}:{SWS+3}], s{sT0} offen offset:{1024*p} sc1")
    if "done" in hooks: hooks["done"](a, V, SWS)
    return V
```

```python
import sys
from common import *
import prep

def build_multi(parts):
    text = []; desc = []; launches = []
    if "prep" in parts:
        a = Asm()
        a("s_cmp_ge_u32 s2, 64")
        a("s_cbranch_scc1 PREP_EXIT")
        a("s_mov_b32 s3, s2")
        hi = prep.gen_prep(a, 3)
        a.label("PREP_EXIT")
        a("s_endpgm")
        text.append(kernel_text("prep_kernel", a.finish())); desc.append(kernel_desc("prep_kernel", 256))
        launches.append("; @launch kernel=prep_kernel grid=(64,1,1) block=(256,1,1) lds=81920")
    if "g1" in parts:
        import mlp
        a = Asm()
        a("s_cmp_ge_u32 s2, 224")
        a("s_cbranch_scc1 G1_EXIT")
        a("s_mov_b32 s3, s2")
        mlp.gen_g1(a, 3)
        a.label("G1_EXIT")
        a("s_endpgm")
        text.append(kernel_text("g1_kernel", a.finish())); desc.append(kernel_desc("g1_kernel", 256))
        launches.append("; @launch kernel=g1_kernel grid=(224,1,1) block=(256,1,1) lds=81920")
    if "ssm" in parts:
        import ssm
        a = Asm()
        a("s_cmp_ge_u32 s2, 224")
        a("s_cbranch_scc1 SSM_EXIT")
        a("s_mov_b32 s3, s2")
        ssm.gen_ssm(a, 3)
        a.label("SSM_EXIT")
        a("s_endpgm")
        text.append(kernel_text("ssm_kernel", a.finish())); desc.append(kernel_desc("ssm_kernel", 256))
        launches.append("; @launch kernel=ssm_kernel grid=(224,1,1) block=(256,1,1) lds=81920")
    if "g2" in parts:
        import mlp
        a = Asm()
        a("s_cmp_ge_u32 s2, 224")
        a("s_cbranch_scc1 G2_EXIT")
        a("s_mov_b32 s3, s2")
        import g2
        S = dict(X=4, W2=8, WS=12, OUT=24, B2=28, W=32, K=35, J7=36, JM=37, T0=45, T1=46, T2=47, T3=48, G2A=40, G2B=41, G2C=42, G2D=43)
        for nm, ka in (("X","x"),("W2","w2"),("WS","ws"),("OUT","out"),("B2","b2")):
            a(f"s_load_dwordx2 s[{S[nm]}:{S[nm]+1}], s[0:1], {KA[ka]}")
        mlp.mlp_ids(a, 3, 33, 34, 35, 36, 37)
        a("v_lshrrev_b32 v1, 6, v0")
        a("v_readfirstlane_b32 s32, v1")
        a("s_waitcnt lgkmcnt(0)")
        srd_fin(a, 4, X_BYTES); srd_fin(a, 8, W_BYTES); srd_fin(a, 12, WS_SIZE); srd_fin(a, 24, X_BYTES); srd_fin(a, 28, D*2)
        g2.gen_g2(a, S, standalone=True)
        a.label("G2_EXIT")
        a("s_endpgm")
        text.append(kernel_text("g2_kernel", a.finish())); desc.append(kernel_desc("g2_kernel", 256))
        launches.append("; @launch kernel=g2_kernel grid=(224,1,1) block=(256,1,1) lds=81920")
    out = HEADER + "\n".join(launches) + "\n" + '.amdgcn_target "amdgcn-amd-amdhsa--gfx950"\n.text\n' + "\n".join(text)
    out += '.section .rodata,"a"\n.p2align 6\n' + "\n".join(desc)
    return out

def build_fused():
    import prep2, ssm, mlp, g2
    a = Asm()
    ts = Stamps(a)
    a("s_cmp_ge_u32 s2, 512")
    a("s_cbranch_scc1 K_EXIT")
    ts.at(0)
    if PROF: a("s_memtime s[98:99]")
    a("s_cmp_ge_u32 s2, 288")
    a("s_cbranch_scc1 K_MLP")
    a("s_cmp_ge_u32 s2, 64")
    a("s_cbranch_scc1 K_SSM")
    a("s_mov_b32 s3, s2")
    prep2.gen_prep2(a, 3, ts)
    a("s_endpgm")
    a.label("K_SSM")
    if os.environ.get("NOSSM"): a("s_endpgm")
    a("s_sub_u32 s3, s2, 64")
    SDBG = 44
    sW, sCH, sHW, sD = 32, 33, 34, 35
    sNONCE, sCNT, sX0 = 48, 49, 50
    def mid_kgen(a, V, vm, lg):
        a(f"v_and_b32 v248, 63, v0")
        a(f"v_lshlrev_b32 v248, 2, v248")
        vm.issue(f"buffer_load_dword v249, v248, s[{SDBG}:{SDBG+3}], 0 offen sc1", "D")
    def wait_ln(a, V, vm, lg):
        ts.at(3)
        m = V.mark()
        vF = V.get(); vDd = 249; vo = 248
        lsk = a.newlabel("SPOLLX")
        a(f"s_cmp_lg_u32 s{sW}, 0")
        a(f"s_cbranch_scc1 {lsk}")
        a(f"s_lshr_b32 s{sX0}, s3, 5")
        a(f"s_mul_i32 s{sX0}, s{sX0}, {LN_RS}")
        a(f"s_lshr_b32 s{sX0+1}, s{sD}, 4")
        a(f"s_and_b32 s{sX0+1}, s{sX0+1}, 3")
        a(f"s_lshl_b32 s{sX0+1}, s{sX0+1}, 8")
        a(f"s_add_u32 s{sX0}, s{sX0}, s{sX0+1}")
        a(f"s_add_u32 s{sX0}, s{sX0}, {FL_LN}")
        lp = a.newlabel("SPOLL"); dn = a.newlabel("SPOLLD"); lnd = a.newlabel("SPOLLN")
        a(f"s_mov_b32 s{sCNT}, {POLL_MAX}")
        a.label(lp)
        a(f"buffer_load_dword v{vF}, v{vo}, s[20:23], s{sX0} offen sc1")
        a(f"s_sub_u32 s{sCNT}, s{sCNT}, 1")
        a(f"s_cbranch_scc1 {dn}")
        a("s_waitcnt vmcnt(0)")
        a(f"v_cmp_eq_u32 s[{sX0+2}:{sX0+3}], 0, v{vDd}")
        a(f"v_cmp_ne_u32 vcc, v{vF}, v{vDd}")
        a(f"s_cmp_eq_u64 s[{sX0+2}:{sX0+3}], 0")
        a(f"s_cbranch_scc1 {lnd}")
        a(f"buffer_load_dword v{vDd}, v{vo}, s[{SDBG}:{SDBG+3}], 0 offen sc1")
        a(f"s_sleep {POLL_SLEEP}")
        a(f"s_branch {lp}")
        a.label(lnd)
        a("s_cmp_eq_u64 vcc, 0")
        a(f"s_cbranch_scc1 {dn}")
        a(f"s_sleep {POLL_SLEEP}")
        a(f"s_branch {lp}")
        a.label(dn)
        a(f"s_branch {lsk}")
        a.label(lsk)
        a("s_waitcnt vmcnt(0)")
        a("s_barrier")
        vm.cleared()
        V.release(m)
        ts.at(4)
    def done(a, V, SWS):
        vz = V.get(); vn = V.get()
        a(f"v_mov_b32 v{vz}, 0")
        a(f"v_mov_b32 v{vn}, s{sNONCE}")
        a(f"s_lshr_b32 s{sX0}, s{sD}, 6")
        a(f"s_lshl_b32 s{sX0}, s{sX0}, 1")
        a(f"s_add_u32 s{sX0}, s{sX0}, s{sHW}")
        a(f"s_mul_i32 s{sX0}, s{sX0}, {S_RS}")
        a(f"s_and_b32 s{sX0+1}, s{sD}, 63")
        a(f"s_lshl_b32 s{sX0+1}, s{sX0+1}, 2")
        a(f"s_add_u32 s{sX0}, s{sX0}, s{sX0+1}")
        a(f"s_add_u32 s{sX0}, s{sX0}, {FL_S}")
        ts.at(7)
        a("s_waitcnt vmcnt(0)")
        ts.at(8)
        a("s_mov_b64 exec, 1")
        a(f"buffer_store_dword v{vn}, v{vz}, s[{SWS}:{SWS+3}], s{sX0} offen sc1")
        a("s_mov_b64 exec, -1")
        ts.flush(SWS, vz, vn)
    def get_nonce(a, V, vm, lg):
        lo = a.newlabel("SNON")
        a(f"v_readfirstlane_b32 s{sNONCE}, v249")
        a(f"s_cmp_lg_u32 s{sNONCE}, 0")
        a(f"s_cbranch_scc1 {lo}")
        a(f"buffer_load_dword v249, v248, s[{SDBG}:{SDBG+3}], 0 offen sc1")
        a("s_waitcnt vmcnt(0)")
        a(f"v_readfirstlane_b32 s{sNONCE}, v249")
        a.label(lo)
    def ssm_pre(a):
        a(f"s_load_dwordx2 s[{SDBG}:{SDBG+1}], s[0:1], {KA['dbg']}")
    def ssm_post(a):
        srd_fin(a, SDBG, 256)
    ssm.gen_ssm(a, 3, hooks=dict(wait_ln=wait_ln, done=done, pre=ssm_pre, post=ssm_post, mid_kgen=mid_kgen, nonce=get_nonce), ts=ts)
    a("s_endpgm")
    a.label("K_MLP")
    a("s_sub_u32 s3, s2, 288")
    V, vm = mlp.gen_g1(a, 3, fused=True, ts=ts)
    S = mlp.G2S
    def publish_h(a, V, vm, lg):
        m = V.mark()
        vz = V.get(); vn = V.get()
        a(f"v_mov_b32 v{vz}, 0")
        a(f"v_mov_b32 v{vn}, s{mlp.sNONCE}")
        a(f"s_lshl_b32 s{mlp.sT0}, s{mlp.sLB}, 1")
        a(f"s_add_u32 s{mlp.sT0}, s{mlp.sT0}, s{mlp.sWL}")
        a(f"s_mul_i32 s{mlp.sT0}, s{mlp.sT0}, {H_RS}")
        a(f"s_lshl_b32 s{mlp.sT1}, s{mlp.sFB}, 1")
        a(f"s_add_u32 s{mlp.sT1}, s{mlp.sT1}, s{mlp.sWF}")
        a(f"s_lshl_b32 s{mlp.sT1}, s{mlp.sT1}, 2")
        a(f"s_add_u32 s{mlp.sT0}, s{mlp.sT0}, s{mlp.sT1}")
        a(f"s_add_u32 s{mlp.sT0}, s{mlp.sT0}, {FL_H}")
        vm.wait("H")
        ts.at(5)
        a("s_mov_b64 exec, 1")
        vm.issue(f"buffer_store_dword v{vn}, v{vz}, s[{mlp.SWS}:{mlp.SWS+3}], s{mlp.sT0} offen sc1", "F")
        a("s_mov_b64 exec, -1")
        V.release(m)
    def wait_h(a, V, vm, lg):
        m = V.mark()
        vo = V.get(); vt = V.get()
        lsk = a.newlabel("HPOLLX")
        ts.at(6)
        a(f"s_cmp_lg_u32 s{mlp.sW}, 0")
        a(f"s_cbranch_scc1 {lsk}")
        a(f"v_and_b32 v{vo}, 63, v0")
        a(f"v_lshlrev_b32 v{vo}, 2, v{vo}")
        a(f"s_mul_i32 s{mlp.sT0}, s{S['G2C']}, {H_RS}")
        a(f"s_add_u32 s{mlp.sT0}, s{mlp.sT0}, {FL_H}")
        poll_eq(a, 28, vo, mlp.SWS, mlp.sT0, vt, mlp.sNONCE, mlp.sCNT)
        a.label(lsk)
        a("s_barrier")
        ts.at(7)
        V.release(m)
    def s_flag_addr(a, vo):
        a(f"v_and_b32 v{vo}, 63, v0")
        a(f"v_lshlrev_b32 v{vo}, 2, v{vo}")
        a(f"s_lshl_b32 s{mlp.sT0}, s{mlp.sJm}, 1")
        a(f"s_lshr_b32 s{mlp.sT1}, s{S['G2C']}, 4")
        a(f"s_add_u32 s{mlp.sT0}, s{mlp.sT0}, s{mlp.sT1}")
        a(f"s_mul_i32 s{mlp.sT0}, s{mlp.sT0}, {S_RS}")
        a(f"s_lshl_b32 s{mlp.sT1}, s{mlp.sW}, 6")
        a(f"s_add_u32 s{mlp.sT0}, s{mlp.sT0}, s{mlp.sT1}")
        a(f"s_add_u32 s{mlp.sT0}, s{mlp.sT0}, {FL_S}")
    def wait_s(a, V, vm, lg):
        m = V.mark()
        vo = V.get(); vt = V.get()
        s_flag_addr(a, vo)
        poll_eq(a, 16, vo, mlp.SWS, mlp.sT0, vt, mlp.sNONCE, mlp.sCNT)
        vm.cleared()
        V.release(m)
    g2.gen_g2(a, S, hooks=dict(publish_h=publish_h, wait_h=wait_h, wait_s=wait_s), vm=vm, ts=ts)
    ts.at(13)
    ts.flush(mlp.SWS, 1, 2)
    a.label("K_EXIT")
    a("s_endpgm")
    out = HEADER + "; @launch grid=(512,1,1) block=(256,1,1) lds=81920\n" + '.amdgcn_target "amdgcn-amd-amdhsa--gfx950"\n.text\n'
    out += kernel_text(KN + "_kernel", a.finish())
    out += '.section .rodata,"a"\n.p2align 6\n' + kernel_desc(KN + "_kernel", 256, 102)
    return out

if __name__ == "__main__":
    mode = sys.argv[1]; outp = sys.argv[2]
    if mode == "fused": s = build_fused()
    if mode.startswith("multi:"):
        s = build_multi(mode[6:].split(","))
    open(outp, "w").write(s)
    print("wrote", outp, len(s))
```

```python
from asm import Asm, VAlloc, vr, sr
KN = "recurrent_scan__ssm_conv_s4d__mixer_channel_mlp__prompt"
KA = dict(x=0, lar=8, aim=16, cre=24, cim=32, ldt=40, dsk=48, w1=64, b1=72, w2=80, b2=88, out=96, dbg=104, ws=112)
L, D, N, F = 2048, 448, 256, 1792
XNT_PITCH = 4224
WS_XNT = 0
WS_STAT = 0x1D0000
WS_FLAG = 0x1E0000
FL_LN = WS_FLAG
LN_RS = 4352
FL_H = WS_FLAG + 0x8000
H_RS = 1152
FL_S = WS_FLAG + 0x14000
S_RS = 2304
POLL_SLEEP = 4
WS_TS = 0xD00000
TS0 = 64
import os
PROF = os.environ.get("PROF", "") != ""
POLL_MAX = int(os.environ.get('POLL_MAX', '4000'))
WS_W2F = 0x200000
WS_ST = 0x400000
WS_HF = 0x600000
WS_SIZE = 0xE00000
SRD3 = 0x00020000
X_BYTES = L * D * 2
W_BYTES = D * F * 2

def f32bits(x):
    import struct
    return struct.unpack("<I", struct.pack("<f", x))[0]
def fl(x): return "0x%08x" % f32bits(x)

def srd(a, s, ka, nbytes):
    a(f"s_load_dwordx2 s[{s}:{s+1}], s[0:1], {ka}")
def srd_fin(a, s, nbytes):
    a(f"s_mov_b32 s{s+2}, {nbytes}")
    a(f"s_mov_b32 s{s+3}, 0x{SRD3:08x}")

def bf16r(a, dst, src, tmp=None):
    a(f"v_cvt_pk_bf16_f32 v{dst}, v{src}, v{src}")
    a(f"v_and_b32 v{dst}, 0xffff0000, v{dst}")

def kernel_text(name, body, vgpr=256, sgpr=102):
    return f""".globl {name}
.p2align 8
.type {name},@function
{name}:
{body}
"""
def kernel_desc(name, vgpr=256, sgpr=96):
    acc = min(256, (vgpr + 3) // 4 * 4)
    return f""".amdhsa_kernel {name}
  .amdhsa_next_free_vgpr {vgpr}
  .amdhsa_next_free_sgpr {sgpr}
  .amdhsa_accum_offset {acc}
  .amdhsa_group_segment_fixed_size 0
  .amdhsa_kernarg_size 120
  .amdhsa_user_sgpr_count 2
  .amdhsa_user_sgpr_kernarg_segment_ptr 1
  .amdhsa_system_sgpr_workgroup_id_x 1
.end_amdhsa_kernel
"""
HEADER = open("cdna_kernels/" + KN + ".s.ref").read().split("; Override launch geometry")[0]

class Stamps:
    def __init__(self, a): self.a = a; self.n = 0
    def __call__(self, name=None):
        if not PROF: return
        assert self.n < 16
        self.a(f"s_memrealtime s[{TS0+2*self.n}:{TS0+2*self.n+1}]")
        self.n += 1
    lock = False
    def at(self, idx):
        if not PROF or self.lock: return
        self.a(f"s_memrealtime s[{TS0+2*idx}:{TS0+2*idx+1}]")
        self.n = max(self.n, idx + 1)
    def cyc(self, idx):
        if not PROF: return
        self.a(f"s_memtime s[{TS0+2*idx}:{TS0+2*idx+1}]")
    def flush(self, SWS, vtmp, vtmp2, n=16):
        if not PROF: return
        a = self.a
        self.lock = False
        self.cyc(15); self.at(14)
        a("s_waitcnt lgkmcnt(0)")
        if os.environ.get("HWID"):
            a(f"s_getreg_b32 s{TS0+26}, hwreg(HW_REG_HW_ID)")
            a(f"s_getreg_b32 s96, hwreg(HW_REG_XCC_ID, 0, 4)")
            a(f"s_and_b32 s{TS0+26}, s{TS0+26}, 0xffffff")
            a(f"s_lshl_b32 s96, s96, 24")
            a(f"s_or_b32 s{TS0+26}, s{TS0+26}, s96")
        a(f"s_sub_u32 s{TS0+30}, s{TS0+30}, s98")
        a(f"v_lshrrev_b32 v{vtmp}, 6, v0")
        a(f"v_lshlrev_b32 v{vtmp}, 6, v{vtmp}")
        a(f"s_lshl_b32 s96, s2, 8")
        a(f"s_add_u32 s96, s96, {WS_TS}")
        for i in range(n):
            a(f"v_mov_b32 v{vtmp2}, s{TS0+2*i}")
            a(f"buffer_store_dword v{vtmp2}, v{vtmp}, s[{SWS}:{SWS+3}], s96 offen offset:{4*i}")


def poll_eq(a, nlanes, vaddr, srd_, soff, vtmp, sExp, sCnt, sSave=None, sleep=0):
    lp = a.newlabel("POLL"); dn = a.newlabel("POLLD")
    mask = (1 << nlanes) - 1
    if nlanes == 64: a("s_mov_b64 exec, -1")
    elif nlanes <= 6: a(f"s_mov_b64 exec, {mask}")
    else:
        a(f"s_mov_b32 exec_lo, 0x{mask & 0xffffffff:x}")
        a(f"s_mov_b32 exec_hi, 0x{mask >> 32:x}")
    a(f"s_mov_b32 s{sCnt}, {POLL_MAX}")
    a.label(lp)
    a(f"buffer_load_dword v{vtmp}, v{vaddr}, s[{srd_}:{srd_+3}], s{soff} offen sc1")
    a(f"s_sub_u32 s{sCnt}, s{sCnt}, 1")
    a(f"s_cbranch_scc1 {dn}")
    a("s_waitcnt vmcnt(0)")
    a(f"v_cmp_ne_u32 vcc, s{sExp}, v{vtmp}")
    a("s_cmp_eq_u64 vcc, 0")
    a(f"s_cbranch_scc1 {dn}")
    a(f"s_sleep {POLL_SLEEP}")
    a(f"s_branch {lp}")
    a.label(dn)
    a("s_waitcnt vmcnt(0)")
    a("s_mov_b64 exec, -1")
```

```python
from common import *

def interleave(main, fill, a, first=0):
    n = len(main); k = 0
    per = [(len(fill) * (i + 1)) // n - (len(fill) * i) // n for i in range(n)]
    for i, m in enumerate(main):
        a(m)
        for _ in range(per[i]):
            a(fill[k]); k += 1

def mlp_ids(a, sI, sLB, sFB, sK, sJ7, sJm):
    a(f"s_and_b32 s{sK}, s{sI}, 7")
    a(f"s_lshr_b32 s{sJm}, s{sI}, 3")
    a(f"s_mul_i32 s{sJ7}, s{sJm}, 37")
    a(f"s_lshr_b32 s{sJ7}, s{sJ7}, 8")
    a(f"s_mul_i32 s{sLB}, s{sJ7}, 7")
    a(f"s_sub_u32 s{sJm}, s{sJm}, s{sLB}")
    a(f"s_lshr_b32 s{sLB}, s{sK}, 1")
    a(f"s_lshl_b32 s{sLB}, s{sLB}, 2")
    a(f"s_add_u32 s{sLB}, s{sLB}, s{sJ7}")
    a(f"s_and_b32 s{sFB}, s{sK}, 1")
    a(f"s_mul_i32 s{sFB}, s{sFB}, 7")
    a(f"s_add_u32 s{sFB}, s{sFB}, s{sJm}")

SX, SW1, SWS, SB1 = 4, 8, 12, 16
SOUT, SB2 = 24, 28
sW, sLB, sFB, sK, sJ7, sJm = 32, 33, 34, 35, 36, 37
sC, sRD, sWR, sXO, sWO, sT0, sT1, sT2 = 40, 41, 42, 43, 44, 45, 46, 47
sM = 48
sWF, sWL = 50, 51
sXB0, sWB0 = 40, 41
sXE, sWRW = 63, 57
ROT = int(os.environ.get("ROT", "1"))

SW2 = 20
G1X = os.environ.get("G1X", "")
G1TS = os.environ.get("G1TS", "")
PFX = int(os.environ.get("PFX", "0"))
PFW2_STEP = int(os.environ.get("PFW2", "99"))
STAT_STEP = int(os.environ.get("STATSTEP", "10"))
SDBG, sNONCE, sTG0, sTG1, sCNT, sT3 = 52, 56, 57, 58, 59, 60
G2S = dict(X=SX, W2=SW2, WS=SWS, OUT=SOUT, B2=SB2, W=sW, K=sK, J7=sJ7, JM=sJm, T0=sT0, T1=sT1, T2=sT2, T3=sT3,
           G2A=38, G2B=39, G2C=61, G2D=62, G2E=40, G2F=41, G2G=42)

def gen_g1(a, sI, hooks=None, fused=False, ts=None):
    V = VAlloc(1)
    V.limit = 250
    T2 = (G1TS == "2")
    if T2: ts.at(1)
    a(f"s_load_dwordx2 s[{SX}:{SX+1}], s[0:1], {KA['x']}")
    a(f"s_load_dwordx2 s[{SW1}:{SW1+1}], s[0:1], {KA['w1']}")
    a(f"s_load_dwordx2 s[{SWS}:{SWS+1}], s[0:1], {KA['ws']}")
    a(f"s_load_dwordx2 s[{SB1}:{SB1+1}], s[0:1], {KA['b1']}")
    if fused:
        for s_, k_ in ((SW2, 'w2'), (SOUT, 'out'), (SB2, 'b2'), (SDBG, 'dbg')):
            a(f"s_load_dwordx2 s[{s_}:{s_+1}], s[0:1], {KA[k_]}")
    mlp_ids(a, sI, sLB, sFB, sK, sJ7, sJm)
    vlane = V.get(); vt = V.get(); vt2 = V.get(); vt3 = V.get()
    a(f"v_and_b32 v{vlane}, 63, v0")
    a(f"v_lshrrev_b32 v{vt}, 6, v0")
    a(f"v_readfirstlane_b32 s{sW}, v{vt}")
    a(f"s_and_b32 s{sWF}, s{sW}, 1")
    a(f"s_lshr_b32 s{sWL}, s{sW}, 1")
    vx = [V.get() for _ in range(4)]; vw0 = V.get(); vw1 = V.get()
    a(f"v_lshrrev_b32 v{vt}, 3, v{vlane}")
    a(f"v_mul_u32_u24 v{vx[0]}, 896, v{vt}")
    a(f"v_lshrrev_b32 v{vt}, 4, v{vlane}")
    a(f"v_and_b32 v{vt2}, 7, v{vlane}")
    a(f"v_xor_b32 v{vt2}, v{vt}, v{vt2}")
    a(f"v_xor_b32 v{vt3}, 4, v{vt2}")
    a(f"v_lshl_add_u32 v{vx[1]}, v{vt3}, 4, v{vx[0]}")
    a(f"v_lshl_add_u32 v{vx[0]}, v{vt2}, 4, v{vx[0]}")
    a(f"v_add_u32 v{vx[1]}, {7168-1024}, v{vx[1]}")
    a(f"v_add_u32 v{vx[2]}, {2*(7168-1024)}, v{vx[0]}")
    a(f"v_add_u32 v{vx[3]}, {2*(7168-1024)}, v{vx[1]}")
    a(f"s_lshl_b32 s{sT0}, s{sLB}, 7")
    a(f"s_lshl_b32 s{sT1}, s{sW}, 5")
    a(f"s_add_u32 s{sT0}, s{sT0}, s{sT1}")
    a(f"s_mul_i32 s{sXB0}, s{sT0}, 896")
    a(f"v_mul_u32_u24 v{vt3}, 3584, v{vt}")
    a(f"v_lshlrev_b32 v{vw0}, 2, v{vt}")
    a(f"v_and_b32 v{vt2}, 15, v{vlane}")
    a(f"v_xor_b32 v{vt2}, v{vw0}, v{vt2}")
    a(f"v_lshl_add_u32 v{vw0}, v{vt2}, 4, v{vt3}")
    a(f"v_add_u32 v{vw1}, {14336-1024}, v{vw0}")
    a(f"s_mul_i32 s{sWB0}, s{sW}, {8*3584}")
    a(f"s_lshl_b32 s{sT0}, s{sFB}, 8")
    a(f"s_add_u32 s{sWB0}, s{sWB0}, s{sT0}")
    a(f"s_lshl_b32 s{sWR}, s{sW}, 12")
    a(f"s_lshl_b32 s{sWRW}, s{sW}, 11")
    a(f"s_add_u32 s{sWRW}, s{sWRW}, 49152")
    a(f"s_lshl_b32 s{sT0}, s{sJ7}, 1")
    a(f"s_add_u32 s{sT0}, s{sT0}, s{sJm}")
    a(f"s_cmp_ge_u32 s{sT0}, 7")
    a(f"s_cselect_b32 s{sT1}, 7, 0")
    a(f"s_sub_u32 s{sT0}, s{sT0}, s{sT1}")
    if not ROT: a(f"s_mov_b32 s{sT0}, 0")
    a(f"s_lshl_b32 s{sT1}, s{sT0}, 7")
    a(f"s_add_u32 s{sXO}, s{sXB0}, s{sT1}")
    a(f"s_add_u32 s{sXE}, s{sXB0}, 896")
    a(f"s_mul_i32 s{sT1}, s{sT0}, {2*32*3584}")
    a(f"s_add_u32 s{sWO}, s{sWB0}, s{sT1}")
    if T2: ts.at(2)
    a("s_waitcnt lgkmcnt(0)")
    if T2: ts.at(3)
    srd_fin(a, SX, X_BYTES); srd_fin(a, SW1, W_BYTES); srd_fin(a, SWS, WS_SIZE); srd_fin(a, SB1, F*2)
    if fused:
        srd_fin(a, SW2, W_BYTES); srd_fin(a, SOUT, X_BYTES); srd_fin(a, SB2, D*2); srd_fin(a, SDBG, 256)
    from track import Cnt, both
    import g2
    vm = Cnt(a, "vmcnt", 63); lg = Cnt(a, "lgkmcnt", 15)
    def xdma(j, half):
        slot = (j % 3) * 16384
        pre = [f"s_add_u32 m0, s{sWR}, {slot}" if slot else f"s_mov_b32 m0, s{sWR}"]
        loads = [(f"buffer_load_dwordx4 v{vx[i]}, s[{SX}:{SX+3}], s{sXO} offen" + (f" offset:{1024*i}" if i else "") + " lds", ("X", j))
                 for i in (2*half, 2*half+1)]
        post = []
        if half == 1:
            post = [f"s_add_u32 s{sXO}, s{sXO}, 128", f"s_cmp_eq_u32 s{sXO}, s{sXE}", f"s_cselect_b32 s{sXO}, s{sXB0}, s{sXO}"]
        return pre, loads, post
    def wdma(c):
        slot = (c % 4) * 8192
        pre = [f"s_add_u32 m0, s{sWRW}, {slot}" if slot else f"s_mov_b32 m0, s{sWRW}"]
        loads = [(f"buffer_load_dwordx4 v{vw0}, s[{SW1}:{SW1+3}], s{sWO} offen lds", ("W", c)),
                 (f"buffer_load_dwordx4 v{vw1}, s[{SW1}:{SW1+3}], s{sWO} offen offset:1024 lds", ("W", c))]
        post = [f"s_add_u32 s{sWO}, s{sWO}, {32*3584}", f"s_cmp_ge_u32 s{sWO}, {W_BYTES}", f"s_cselect_b32 s{sWO}, s{sWB0}, s{sWO}"]
        return pre, loads, post
    def emit(d):
        pre, loads, post = d
        for t in pre: a(t)
        a("s_nop 0")
        for t, T in loads: vm.issue(t, T)
        for t in post: a(t)
    def dma_first():
        emit(xdma(0, 0)); emit(wdma(0)); emit(xdma(0, 1)); emit(wdma(1))
    def dma_second():
        emit(xdma(1, 0)); emit(wdma(2)); emit(xdma(1, 1))
    vb1 = V.get(2)
    a(f"v_and_b32 v{vt}, 31, v{vlane}")
    a(f"v_lshlrev_b32 v{vt}, 1, v{vt}")
    a(f"s_lshl_b32 s{sT0}, s{sFB}, 8")
    a(f"s_lshl_b32 s{sT1}, s{sWF}, 7")
    a(f"s_add_u32 s{sT0}, s{sT0}, s{sT1}")
    if "twice" in G1X:
        a("s_mov_b32 s94, s%d" % sXO); a("s_mov_b32 s95, s%d" % sWO)
    dma_first()
    if T2: ts.at(4)
    a(f"s_lshl_b32 s{sT0}, s{sFB}, 8")
    a(f"s_lshl_b32 s{sT1}, s{sWF}, 7")
    a(f"s_add_u32 s{sT0}, s{sT0}, s{sT1}")
    vm.issue(f"buffer_load_ushort v{vb1}, v{vt}, s[{SB1}:{SB1+3}], s{sT0} offen", "B1")
    vm.issue(f"buffer_load_ushort v{vb1+1}, v{vt}, s[{SB1}:{SB1+3}], s{sT0} offen offset:64", "B1")
    vB = [[V.get() for s_ in range(2)] for e in range(2)]; vA = [V.get(), V.get()]
    vn = V.get(); vhh = V.get()
    a(f"v_and_b32 v{vn}, 31, v{vlane}")
    a(f"v_lshrrev_b32 v{vhh}, 5, v{vlane}")
    a(f"v_bfe_u32 v{vt}, v{vn}, 1, 3")
    a(f"v_xor_b32 v{vt}, v{vt}, v{vhh}")
    a(f"s_lshl_b32 s{sT0}, s{sWL}, 13")
    a(f"v_lshl_add_u32 v{vt2}, v{vn}, 7, s{sT0}")
    a(f"v_lshl_add_u32 v{vB[0][0]}, v{vt}, 4, v{vt2}")
    for e in range(2):
        for s_ in range(2):
            if e or s_: a(f"v_xor_b32 v{vB[e][s_]}, {64*e + 32*s_}, v{vB[0][0]}")
    vr_ = V.get()
    a(f"v_bfe_u32 v{vr_}, v{vlane}, 2, 2")
    a(f"v_lshl_add_u32 v{vt}, v{vhh}, 3, v{vr_}")
    a(f"v_lshlrev_b32 v{vt}, 8, v{vt}")
    a(f"v_bfe_u32 v{vt2}, v{vlane}, 4, 1")
    a(f"v_lshl_add_u32 v{vt}, v{vt2}, 5, v{vt}")
    a(f"v_and_b32 v{vt2}, 3, v{vlane}")
    a(f"v_lshl_add_u32 v{vt}, v{vt2}, 3, v{vt}")
    a(f"v_add_u32 v{vt}, 49152, v{vt}")
    a(f"s_lshl_b32 s{sT0}, s{sWF}, 1")
    a(f"v_xor_b32 v{vt2}, s{sT0}, v{vr_}")
    a(f"v_lshl_add_u32 v{vA[0]}, v{vt2}, 6, v{vt}")
    a(f"v_xor_b32 v{vA[1]}, 64, v{vA[0]}")
    acc = [[V.get(16, 4) for lt in range(2)] for ft in range(2)]
    fa = [[[V.get(4, 4) for s in range(2)] for ft in range(2)] for p in range(2)]
    fb = [[[V.get(4, 4) for s in range(2)] for lt in range(2)] for p in range(2)]
    cs = [V.get(4, 4), V.get(4, 4)]
    sel = V.get(4, 4)
    ST = [V.get(8, 4), V.get(8, 4)]
    vso = V.get()
    vD = V.get(); vl4 = V.get()
    a(f"v_lshlrev_b32 v{vl4}, 2, v{vlane}")
    for ft in range(2):
        for lt in range(2):
            for i in range(16): a(f"v_mov_b32 v{acc[ft][lt]+i}, 0")
    for ft in range(2):
        for i in range(4): a(f"v_mov_b32 v{cs[ft]+i}, 0")
    a(f"v_and_b32 v{vt}, 15, v{vlane}")
    a(f"v_bfe_u32 v{vt2}, v{vlane}, 4, 1")
    a(f"v_cmp_eq_u32 vcc, v{vt}, v{vt2}")
    a(f"v_mov_b32 v{vt}, 0x3f803f80")
    for i in range(4): a(f"v_cndmask_b32 v{sel+i}, 0, v{vt}, vcc")
    a(f"v_lshlrev_b32 v{vso}, 5, v{vn}")

    def reads(c):
        p = c % 2; e = c % 2
        xoff = ((c // 2) % 3) * 16384; woff = (c % 4) * 8192
        def rb(lt, s): return f"ds_read_b128 v[{fb[p][lt][s]}:{fb[p][lt][s]+3}], v{vB[e][s]} offset:{xoff+4096*lt}"
        def ra(ft, s):
            b = fa[p][ft][s]
            return [f"ds_read_b64_tr_b16 v[{b}:{b+1}], v{vA[ft]} offset:{woff+4096*s}",
                    f"ds_read_b64_tr_b16 v[{b+2}:{b+3}], v{vA[ft]} offset:{woff+4096*s+1024}"]
        l = []
        for s in range(2):
            l += [rb(0, s)] + ra(0, s) + [rb(1, s)] + ra(1, s)
        return l
    def mfmas(p):
        l = []
        for s in range(2):
            for ft in range(2):
                for lt in range(2):
                    A = fa[p][ft][s]; B = fb[p][lt][s]; C = acc[ft][lt]
                    l.append(f"v_mfma_f32_32x32x16_bf16 v[{C}:{C+15}], v[{A}:{A+3}], v[{B}:{B+3}], v[{C}:{C+15}]")
        return l
    def csm(p):
        l = []
        for s in range(2):
            for ft in range(2):
                B = fa[p][ft][s]; C = cs[ft]
                l.append(f"v_mfma_f32_16x16x32_bf16 v[{C}:{C+3}], v[{sel}:{sel+3}], v[{B}:{B+3}], v[{C}:{C+3}]")
        return l
    def stat_loads(issue):
        a(f"s_lshl_b32 s{sT0}, s{sLB}, 12")
        a(f"s_lshl_b32 s{sT1}, s{sWL}, 11")
        a(f"s_add_u32 s{sT0}, s{sT0}, s{sT1}")
        a(f"s_add_u32 s{sT0}, s{sT0}, {WS_STAT}")
        for lt in range(2):
            issue(f"buffer_load_dwordx4 v[{ST[lt]}:{ST[lt]+3}], v{vso}, s[{SWS}:{SWS+3}], s{sT0} offen offset:{1024*lt} sc1")
            issue(f"buffer_load_dwordx4 v[{ST[lt]+4}:{ST[lt]+7}], v{vso}, s[{SWS}:{SWS+3}], s{sT0} offen offset:{1024*lt+16} sc1")
        if fused:
            issue(f"buffer_load_dword v{vD}, v{vl4}, s[{SDBG}:{SDBG+3}], 0 offen sc1")
    dma_second()
    if "twice" in G1X:
        a("s_mov_b32 s97, 0")
        a.label("G1_TW")
    if T2: ts.at(5)
    for c in range(14):
        p = (c - 1) % 2
        rd = reads(c) if "noreads" not in G1X else []
        mm = mfmas(p) if c >= 1 else [None]*8
        sm = csm(p) if c >= 1 else [None]*4
        if "nocs" in G1X: sm = [None]*4
        if "nomfma" in G1X: mm = [None]*8; sm = [None]*4
        nod = "nodma" in G1X
        dw = wdma(c + 3) if (c + 3 < 14 and not nod) else ([], [None, None], [])
        jx = c // 2 + 2
        dx = xdma(jx, c % 2) if (jx < 7 and not nod) else ([], [None, None], [])
        lg.wait("R")
        if mm[0]: a(mm[0])
        vm.wait([("W", c), ("X", c // 2)])
        a("s_barrier")
        if T2:
            if c <= 5: ts.at(c + 6)
        elif G1TS and ts:
            if c <= 10: ts.at(c + 1)
        elif c == 0 and ts: ts.at(1)
        R = [("r", x) for x in rd]
        def S_(l): return [("s", x) for x in l]
        def D_(x): return [("d",) + x] if x is not None else []
        def rr(i, j): return R[i:j]
        nop = [("s", "s_nop 0")] if c == 0 else []
        seq = [(mm[1], rr(0, 3) + S_(dw[0])),
               (mm[2], nop + D_(dw[1][0]) + rr(3, 5)),
               (mm[3], rr(5, 8)),
               (sm[0], rr(8, 9)),
               (sm[1], D_(dw[1][1])),
               (mm[4], S_(dx[0]) + rr(9, 12)),
               (mm[5], D_(dx[1][0]) + S_(dw[2][:2])),
               (mm[6], S_(dw[2][2:])),
               (mm[7], D_(dx[1][1])),
               (sm[2], S_(dx[2][:2])),
               (sm[3], S_(dx[2][2:]))]
        for m, fl_ in seq:
            if m: a(m)
            for f in fl_:
                if f[0] == "r": lg.issue(f[1], "R")
                elif f[0] == "d": vm.issue(f[1], f[2])
                else: a(f[1])
        if c == STAT_STEP: stat_loads(lambda t: vm.issue(t, "ST"))
    lg.waitall()
    if G1TS and ts: ts.at(12); g1ts_end = True
    if "twice" in G1X:
        a("s_add_u32 s97, s97, 1")
        a("s_cmp_lt_u32 s97, 2")
        a("s_cbranch_scc0 G1_TWE")
        ts.lock = False
        ts.at(10)
        a("s_waitcnt vmcnt(0) lgkmcnt(0)")
        a("s_barrier")
        ts.at(8)
        vm.q = []
        a("s_mov_b32 s%d, s94" % sXO); a("s_mov_b32 s%d, s95" % sWO)
        dma_first(); dma_second()
        a("s_branch G1_TW")
        a.label("G1_TWE")
        ts.at(9)
        ts.flush(SWS, vt, vt2)
        a("s_endpgm")
    if fused:
        a("s_barrier")
        g2.g2_early(a, G2S, vm, vlane, vt, vt2, vt3)
    for m in csm(1) + mfmas(1): a(m)
    if G1TS and ts: ts.at(13); ts.lock = True
    if ts: ts.at(2)
    FA = [fa[0][0][0], fa[0][0][1]]
    t0 = fb[0][0][0]; t1 = t0 + 1
    a(f"s_mov_b32 s{sM}, -1"); a(f"s_mov_b32 s{sM+1}, 0")
    if fused:
        vm.wait(["ST", "B1"])
        lck = a.newlabel("G1_CK"); lok = a.newlabel("G1_OK")
        a(f"s_mov_b32 s{sCNT}, {POLL_MAX}")
        a.label(lck)
        a(f"s_lshl_b32 s{sT0}, s{sLB}, 2")
        a(f"s_lshl_b32 s{sT1}, s{sWL}, 1")
        a(f"s_add_u32 s{sT0}, s{sT0}, s{sT1}")
        a(f"s_add_u32 s{sT1}, s{sT0}, 1")
        a(f"v_readlane_b32 s{sNONCE}, v{vD}, 0")
        a(f"v_readlane_b32 s{sTG0}, v{vD}, s{sT0}")
        a(f"v_readlane_b32 s{sTG1}, v{vD}, s{sT1}")
        a(f"v_xor_b32 v{t0}, s{sTG0}, v{ST[0]+3}")
        a(f"v_xor_b32 v{t1}, s{sTG0}, v{ST[0]+7}")
        a(f"v_or_b32 v{t0}, v{t0}, v{t1}")
        a(f"v_xor_b32 v{t1}, s{sTG1}, v{ST[1]+3}")
        a(f"v_or_b32 v{t0}, v{t0}, v{t1}")
        a(f"v_xor_b32 v{t1}, s{sTG1}, v{ST[1]+7}")
        a(f"v_or_b32 v{t0}, v{t0}, v{t1}")
        a(f"v_cmp_ne_u32 vcc, 0, v{t0}")
        a(f"s_and_b32 s{sT0}, s{sTG0}, s{sTG1}")
        a(f"s_and_b32 s{sT0}, s{sT0}, s{sNONCE}")
        a(f"s_and_b32 s{sT0}, s{sT0}, 1")
        a(f"s_xor_b32 s{sT0}, s{sT0}, 1")
        a(f"s_or_b32 s{sT0}, s{sT0}, vcc_lo")
        a(f"s_or_b32 s{sT0}, s{sT0}, vcc_hi")
        a(f"s_cmp_eq_u32 s{sT0}, 0")
        a(f"s_cbranch_scc1 {lok}")
        a(f"s_sub_u32 s{sCNT}, s{sCNT}, 1")
        a(f"s_cbranch_scc1 {lok}")
        stat_loads(a)
        a("s_waitcnt vmcnt(0)")
        a(f"s_branch {lck}")
        a.label(lok)
        a(f"v_mov_b32 v{ST[0]+3}, 0"); a(f"v_mov_b32 v{ST[1]+3}, 0")
    else:
        a("s_waitcnt vmcnt(0)")
    if ts: ts.at(3)
    for ft in range(2):
        c = cs[ft]; d = FA[ft]
        a(f"v_permlane16_swap_b32 v{c}, v{c+1}")
        a(f"v_cvt_pk_bf16_f32 v{d}, v{c}, v{c}")
        a(f"v_and_b32 v{t1}, 0xffff0000, v{d}")
        a(f"v_sub_f32 v{t1}, v{c}, v{t1}")
        a(f"v_and_b32 v{d+1}, 0xffff, v{d}")
        a(f"v_cvt_pk_bf16_f32 v{d}, v{c}, v{t1}")
        a(f"v_lshl_or_b32 v{d+1}, v{vb1+ft}, 16, v{d+1}")
        a(f"v_mov_b32 v{d+2}, v{vb1+ft}")
        a(f"v_mov_b32 v{d+3}, 0")
        for k in range(3):
            a(f"v_cndmask_b32 v{d+k}, 0, v{d+k}, s[{sM}:{sM+1}]")
    for ft in range(2):
        for lt in range(2):
            C = acc[ft][lt]
            a(f"v_mfma_f32_32x32x16_bf16 v[{C}:{C+15}], v[{FA[ft]}:{FA[ft]+3}], v[{ST[lt]}:{ST[lt]+3}], v[{C}:{C+15}]")
    vho = V.get()
    a(f"v_lshlrev_b32 v{vho}, 4, v{vlane}")
    a(f"s_lshl_b32 s{sT0}, s{sLB}, 2")
    a(f"s_lshl_b32 s{sT1}, s{sWL}, 1")
    a(f"s_add_u32 s{sT0}, s{sT0}, s{sT1}")
    a(f"s_mul_i32 s{sT0}, s{sT0}, 112")
    a(f"s_lshl_b32 s{sT1}, s{sFB}, 3")
    a(f"s_add_u32 s{sT0}, s{sT0}, s{sT1}")
    a(f"s_lshl_b32 s{sT1}, s{sWF}, 2")
    a(f"s_add_u32 s{sT0}, s{sT0}, s{sT1}")
    a(f"s_lshl_b32 s{sT0}, s{sT0}, 10")
    a(f"s_add_u32 s{sT0}, s{sT0}, {WS_HF}")
    a(f"s_add_u32 s{sT1}, s{sT0}, {112*1024}")
    TA = [fa[1][0][0], fb[1][0][0]]
    TB = [fb[0][0][0], fb[0][1][0]]
    blk = 0
    for lt in range(2):
        K = ST[lt] + 4
        a(f"v_mov_b32 v{K-2}, v{K+1}")
        for ft in range(2):
            for kp in range(2):
                A0 = acc[ft][lt] + 8*kp
                T = TA[blk % 2]; O = TB[blk % 2]
                for k in range(4):
                    a(f"v_pk_mul_f32 v[{T+2*k}:{T+2*k+1}], v[{A0+2*k}:{A0+2*k+1}], v[{A0+2*k}:{A0+2*k+1}]")
                for k in range(4):
                    a(f"v_pk_fma_f32 v[{T+2*k}:{T+2*k+1}], v[{T+2*k}:{T+2*k+1}], v[{K-2}:{K-1}], v[{K}:{K+1}] op_sel_hi:[1,0,0]")
                for k in range(4):
                    a(f"v_pk_mul_f32 v[{T+2*k}:{T+2*k+1}], v[{T+2*k}:{T+2*k+1}], v[{A0+2*k}:{A0+2*k+1}]")
                for k in range(8):
                    a(f"v_exp_f32 v{T+k}, v{T+k}")
                for k in range(4):
                    a(f"v_pk_fma_f32 v[{T+2*k}:{T+2*k+1}], v[{T+2*k}:{T+2*k+1}], v[{K+2}:{K+3}], v[{K+2}:{K+3}] op_sel:[0,0,0] op_sel_hi:[1,0,0]")
                for k in range(8):
                    a(f"v_rcp_f32 v{T+k}, v{T+k}")
                for k in range(4):
                    a(f"v_pk_mul_f32 v[{T+2*k}:{T+2*k+1}], v[{T+2*k}:{T+2*k+1}], v[{A0+2*k}:{A0+2*k+1}]")
                for k in range(4):
                    a(f"v_cvt_pk_bf16_f32 v{O+k}, v{T+2*k}, v{T+2*k+1}")
                so = sT0 if lt == 0 else sT1
                txt = f"buffer_store_dwordx4 v[{O}:{O+3}], v{vho}, s[{SWS}:{SWS+3}], s{so} offen offset:{(2*ft+kp)*1024} sc1"
                if fused: vm.issue(txt, "H")
                else: a(txt)
                blk += 1
    if ts: ts.at(4)
    if fused: return V, vm
    return V
```

```python
from common import *
from track import Cnt, both

def gen_prep2(a, sP, ts):
    V = VAlloc(1)
    SX, SWS, SDBG = 4, 8, 12
    sW, sT0, sT1, sT2, sTag = 20, 21, 22, 23, 24
    sRT = 26
    a(f"s_load_dwordx2 s[{SX}:{SX+1}], s[0:1], {KA['x']}")
    a(f"s_load_dwordx2 s[{SWS}:{SWS+1}], s[0:1], {KA['ws']}")
    a(f"s_load_dwordx2 s[{SDBG}:{SDBG+1}], s[0:1], {KA['dbg']}")
    a(f"s_memrealtime s[{sRT}:{sRT+1}]")
    vtid = 0
    vlane = V.get(); vt = V.get(); vt2 = V.get(); vxo = V.get()
    a(f"v_and_b32 v{vlane}, 63, v{vtid}")
    a(f"v_lshrrev_b32 v{vt}, 6, v{vtid}")
    a(f"v_readfirstlane_b32 s{sW}, v{vt}")
    a(f"v_lshrrev_b32 v{vt}, 3, v{vtid}")
    a(f"v_mul_u32_u24 v{vxo}, 896, v{vt}")
    a(f"v_and_b32 v{vt2}, 7, v{vtid}")
    a(f"v_lshl_add_u32 v{vxo}, v{vt2}, 4, v{vxo}")
    a(f"s_mul_i32 s{sT0}, s{sP}, {32*896}")
    a("s_waitcnt lgkmcnt(0)")
    srd_fin(a, SX, X_BYTES); srd_fin(a, SWS, WS_SIZE); srd_fin(a, SDBG, 256)
    X = V.get(28, 4)
    for i in range(7):
        a(f"buffer_load_dwordx4 v[{X+4*i}:{X+4*i+3}], v{vxo}, s[{SX}:{SX+3}], s{sT0} offen offset:{128*i}")
    TAGL = 32768
    vtag = V.get(); vz = V.get()
    a(f"s_or_b32 s{sTag}, s{sRT}, 1")
    a(f"v_mov_b32 v{vtag}, s{sTag}")
    a(f"v_mov_b32 v{vz}, 0")
    lnw = a.newlabel("PREP_NW")
    a(f"s_cmp_lg_u32 s{sW}, 0")
    a(f"s_cbranch_scc1 {lnw}")
    a(f"ds_write_b32 v{vz}, v{vtag} offset:{TAGL}")
    a(f"s_lshl_b32 s{sT1}, s{sP}, 2")
    a(f"s_mov_b64 s[28:29], exec")
    a(f"s_mov_b64 exec, 1")
    a(f"buffer_store_dword v{vtag}, v{vz}, s[{SDBG}:{SDBG+3}], s{sT1} offen sc1")
    a(f"s_mov_b64 exec, s[28:29]")
    a("s_waitcnt lgkmcnt(0)")
    a.label(lnw)
    a("s_barrier")
    a(f"ds_read_b32 v{vtag}, v{vz} offset:{TAGL}")
    LDS_XN = 0; XP = 912
    s1 = V.get(); s2 = V.get(); s1b = V.get(); s2b = V.get()
    ones = V.get()
    a(f"v_mov_b32 v{ones}, 0x3f803f80")
    for r in (s1, s2, s1b, s2b): a(f"v_mov_b32 v{r}, 0")
    ts.at(1)
    a("s_waitcnt vmcnt(0)")
    ts.at(2)
    src = X
    for i in range(0, 28, 2):
        a(f"v_dot2c_f32_bf16 v{s1}, v{src+i}, v{ones}")
        a(f"v_dot2c_f32_bf16 v{s2}, v{src+i}, v{src+i}")
        a(f"v_dot2c_f32_bf16 v{s1b}, v{src+i+1}, v{ones}")
        a(f"v_dot2c_f32_bf16 v{s2b}, v{src+i+1}, v{src+i+1}")
    a(f"v_add_f32 v{s1}, v{s1}, v{s1b}")
    a(f"v_add_f32 v{s2}, v{s2}, v{s2b}")
    for m in ("quad_perm:[1,0,3,2]", "quad_perm:[2,3,0,1]", "row_half_mirror"):
        a(f"v_add_f32_dpp v{s1}, v{s1}, v{s1} {m} row_mask:0xf bank_mask:0xf")
        a(f"v_add_f32_dpp v{s2}, v{s2}, v{s2} {m} row_mask:0xf bank_mask:0xf")
    mean = V.get(); var = V.get(); m1 = V.get(); sd1 = V.get(); m2 = V.get(); sd2 = V.get(); tq = V.get()
    a(f"v_mul_f32 v{mean}, {fl(1.0/448)}, v{s1}")
    a(f"v_mul_f32 v{var}, {fl(1.0/448)}, v{s2}")
    a(f"v_fma_f32 v{var}, -v{mean}, v{mean}, v{var}")
    a(f"v_max_f32 v{var}, 0, v{var}")
    bf16r(a, m1, mean)
    bf16r(a, tq, var)
    a(f"v_add_f32 v{tq}, {fl(1e-5)}, v{tq}")
    bf16r(a, tq, tq)
    a(f"v_sqrt_f32 v{tq}, v{tq}")
    bf16r(a, sd1, tq)
    rs = V.get(2, 2)
    a(f"v_rcp_f32 v{rs}, v{sd1}")
    a(f"v_sub_f32 v{m2}, v{mean}, v{m1}")
    nb = V.get(2, 2)
    a(f"v_mul_f32 v{nb}, v{m1}, v{rs}")
    a(f"v_sub_f32 v{nb}, 0, v{nb}")
    a(f"v_mul_f32 v{m2}, v{m2}, v{rs}")
    a(f"v_mul_f32 v{tq}, v{var}, v{rs}")
    a(f"v_mul_f32 v{tq}, v{tq}, v{rs}")
    bf16r(a, m2, m2)
    bf16r(a, tq, tq)
    a(f"v_add_f32 v{tq}, {fl(1e-5)}, v{tq}")
    bf16r(a, tq, tq)
    a(f"v_sqrt_f32 v{tq}, v{tq}")
    bf16r(a, sd2, tq)
    R = V.get(8, 4)
    ia = V.get(); al = V.get(); mu = V.get()
    a(f"v_mul_f32 v{ia}, v{sd1}, v{sd2}")
    a(f"v_rcp_f32 v{al}, v{ia}")
    a(f"v_fma_f32 v{mu}, v{m2}, v{sd1}, v{m1}")
    a(f"v_sub_f32 v{mu}, 0, v{mu}")
    a(f"v_cvt_pk_bf16_f32 v{R}, v{mu}, v{mu}")
    a(f"v_and_b32 v{tq}, 0xffff0000, v{R}")
    a(f"v_sub_f32 v{tq}, v{mu}, v{tq}")
    a(f"v_cvt_pk_bf16_f32 v{R+1}, v{tq}, v{ia}")
    a(f"v_and_b32 v{tq}, 0xffff0000, v{R+1}")
    a(f"v_sub_f32 v{tq}, v{ia}, v{tq}")
    a(f"v_cvt_pk_bf16_f32 v{R+2}, v{tq}, v{vz}")
    C1 = 2 * 0.7978845608028654 * 1.4426950408889634
    C2 = C1 * 0.044715
    a(f"v_mul_f32 v{R+4}, {fl(-C1)}, v{al}")
    a(f"v_mul_f32 v{tq}, v{al}, v{al}")
    a(f"v_mul_f32 v{tq}, v{tq}, v{al}")
    a(f"v_mul_f32 v{R+5}, {fl(-C2)}, v{tq}")
    a(f"v_mov_b32 v{R+6}, v{ia}")
    a("s_waitcnt lgkmcnt(0)")
    a(f"v_mov_b32 v{R+3}, v{vtag}")
    a(f"v_mov_b32 v{R+7}, v{vtag}")
    a(f"v_cmp_eq_u32 vcc, 1, v{vt2}")
    for k in range(4):
        a(f"v_cndmask_b32 v{R+k}, v{R+k}, v{R+4+k}, vcc")
    vso = V.get()
    a(f"v_lshlrev_b32 v{vso}, 5, v{vt}")
    a(f"v_lshl_add_u32 v{vso}, v{vt2}, 4, v{vso}")
    a(f"s_lshl_b32 s{sT0}, s{sP}, 10")
    a(f"s_add_u32 s{sT0}, s{sT0}, {WS_STAT}")
    a(f"v_cmp_gt_u32 vcc, 2, v{vt2}")
    a(f"s_and_saveexec_b64 s[28:29], vcc")
    a(f"buffer_store_dwordx4 v[{R}:{R+3}], v{vso}, s[{SWS}:{SWS+3}], s{sT0} offen sc1")
    a(f"s_mov_b64 exec, s[28:29]")
    ts.at(3)
    Z = V.get(4, 4)
    lnp = a.newlabel("PREP_NP")
    a(f"s_cmp_ge_u32 s{sP}, 7")
    a(f"s_cbranch_scc1 {lnp}")
    for k in range(4): a(f"v_mov_b32 v{Z+k}, 0")
    vzo = V.get()
    a(f"v_lshrrev_b32 v{vzo}, 1, v{vlane}")
    a(f"v_mul_u32_u24 v{vzo}, {XNT_PITCH}, v{vzo}")
    a(f"v_and_b32 v{tq}, 1, v{vlane}")
    a(f"v_lshl_add_u32 v{vzo}, v{tq}, 4, v{vzo}")
    a(f"s_lshl_b32 s{sT0}, s{sP}, 2")
    a(f"s_add_u32 s{sT0}, s{sT0}, s{sW}")
    a(f"s_mul_i32 s{sT0}, s{sT0}, {16*XNT_PITCH}")
    a(f"s_add_u32 s{sT0}, s{sT0}, {WS_XNT + 96}")
    a(f"v_cmp_gt_u32 vcc, 32, v{vlane}")
    a(f"s_and_saveexec_b64 s[28:29], vcc")
    a(f"buffer_store_dwordx4 v[{Z}:{Z+3}], v{vzo}, s[{SWS}:{SWS+3}], s{sT0} offen sc1")
    a(f"s_mov_b64 exec, s[28:29]")
    a.label(lnp)
    T = V.get(8, 2)
    vla = V.get()
    a(f"v_mul_u32_u24 v{vla}, {XP}, v{vt}")
    a(f"v_lshl_add_u32 v{vla}, v{vt2}, 4, v{vla}")
    for i in range(0, 28, 4):
        for k in range(4):
            a(f"v_lshlrev_b32 v{T+2*k}, 16, v{X+i+k}")
            a(f"v_and_b32 v{T+2*k+1}, 0xffff0000, v{X+i+k}")
        for k in range(4):
            a(f"v_pk_fma_f32 v[{T+2*k}:{T+2*k+1}], v[{T+2*k}:{T+2*k+1}], v[{rs}:{rs+1}], v[{nb}:{nb+1}] op_sel_hi:[1,0,0]")
        for k in range(4):
            a(f"v_cvt_pk_bf16_f32 v{X+i+k}, v{T+2*k}, v{T+2*k+1}")
        a(f"ds_write_b128 v{vla}, v[{X+i}:{X+i+3}] offset:{LDS_XN + 32*i}")
    vg = V.get(); vrr = V.get(); vc4 = V.get(); vpa = V.get(); voo = V.get()
    a(f"v_lshrrev_b32 v{vg}, 4, v{vlane}")
    a(f"v_bfe_u32 v{vrr}, v{vlane}, 2, 2")
    a(f"v_and_b32 v{vc4}, 3, v{vlane}")
    a(f"v_lshl_add_u32 v{vpa}, v{vc4}, 3, v{vrr}")
    a(f"v_mul_u32_u24 v{vpa}, {XP}, v{vpa}")
    a(f"v_lshl_add_u32 v{vpa}, v{vg}, 3, v{vpa}")
    a(f"s_lshl_b32 s{sT0}, s{sW}, 5")
    a(f"v_add_u32 v{vpa}, s{sT0}, v{vpa}")
    a(f"v_lshl_add_u32 v{voo}, v{vg}, 2, v{vc4}")
    a(f"v_mul_u32_u24 v{voo}, {XNT_PITCH}, v{voo}")
    a(f"v_lshl_add_u32 v{voo}, v{vrr}, 4, v{voo}")
    a(f"s_mul_i32 s{sT0}, s{sW}, {16*XNT_PITCH}")
    a(f"s_lshl_b32 s{sT1}, s{sP}, 6")
    a(f"s_add_u32 s{sT0}, s{sT0}, s{sT1}")
    a(f"s_add_u32 s{sT0}, s{sT0}, {WS_XNT + 128}")
    a("s_waitcnt lgkmcnt(0)")
    a("s_barrier")
    ts.at(4)
    TT = V.get(28, 4)
    for k in range(7):
        a(f"ds_read_b64_tr_b16 v[{TT+4*k}:{TT+4*k+1}], v{vpa} offset:{LDS_XN + 128*k}")
        a(f"ds_read_b64_tr_b16 v[{TT+4*k+2}:{TT+4*k+3}], v{vpa} offset:{LDS_XN + 128*k + 4*XP}")
    for k in range(7):
        a(f"s_waitcnt lgkmcnt({2*(6-k)})")
        a(f"buffer_store_dwordx4 v[{TT+4*k}:{TT+4*k+3}], v{voo}, s[{SWS}:{SWS+3}], s{sT0} offen sc1")
        if k < 6: a(f"s_add_u32 s{sT0}, s{sT0}, {64*XNT_PITCH}")
    a(f"s_lshl_b32 s{sT0}, s{sW}, 8")
    a(f"s_lshl_b32 s{sT1}, s{sP}, 2")
    a(f"s_add_u32 s{sT0}, s{sT0}, s{sT1}")
    a(f"s_add_u32 s{sT0}, s{sT0}, {FL_LN}")
    a(f"v_mul_u32_u24 v{vz}, {LN_RS}, v{vlane}")
    ts.at(5)
    a("s_waitcnt vmcnt(0)")
    ts.at(6)
    a(f"s_mov_b64 exec, 0x7f")
    a(f"buffer_store_dword v{vtag}, v{vz}, s[{SWS}:{SWS+3}], s{sT0} offen sc1")
    a(f"s_mov_b64 exec, -1")
    ts.flush(SWS, vt, vt2)
    return V
```

```python
from common import *
from track import Cnt, both

import os
DBG = os.environ.get('G2DBG', '')
NA = 10
NB = 8
RING = 10
WREG = 20480

PV = 250

ROT2 = int(os.environ.get('ROT2', '1'))
def g2_early(a, S, vm, vlane, vt, vt2, vt3, n=None):
    SW2 = S["W2"]; sW, sK, sJ7, sJm = S["W"], S["K"], S["J7"], S["JM"]
    sT0 = S["T0"]; sWB, sRB, sLB2 = S["G2A"], S["G2B"], S["G2C"]
    vwo = PV
    a(f"s_lshl_b32 s{sLB2}, s{sK}, 2")
    a(f"s_add_u32 s{sLB2}, s{sLB2}, s{sJ7}")
    a(f"v_lshrrev_b32 v{vt}, 3, v{vlane}")
    a(f"v_mul_u32_u24 v{vwo}, 896, v{vt}")
    a(f"v_and_b32 v{vt2}, 7, v{vlane}")
    a(f"v_bfe_u32 v{vt3}, v{vlane}, 4, 1")
    a(f"v_lshlrev_b32 v{vt3}, 2, v{vt3}")
    a(f"v_xor_b32 v{vt2}, v{vt2}, v{vt3}")
    a(f"v_lshl_add_u32 v{vwo}, v{vt2}, 4, v{vwo}")
    a(f"s_mul_i32 s{sWB}, s{sW}, {448*896}")
    a(f"s_lshl_b32 s{sT0}, s{sJm}, 7")
    a(f"s_add_u32 s{sWB}, s{sWB}, s{sT0}")
    a(f"s_mul_i32 s{sRB}, s{sW}, {WREG}")
    a(f"v_add_u32 v{PV+1}, {8*896-1024}, v{vwo}")
    sW2, sW2E, sROT = S["G2E"], S["G2F"], S["G2G"]
    a(f"s_lshl_b32 s{sT0}, s{sJ7}, 1")
    a(f"s_add_u32 s{sT0}, s{sT0}, s{sJm}")
    a(f"s_cmp_ge_u32 s{sT0}, 7")
    a(f"s_cselect_b32 s{sROT}, 7, 0")
    a(f"s_sub_u32 s{sROT}, s{sT0}, s{sROT}")
    if not ROT2: a(f"s_mov_b32 s{sROT}, 0")
    a(f"s_mul_i32 s{sW2}, s{sROT}, {64*896}")
    a(f"s_add_u32 s{sW2}, s{sW2}, s{sWB}")
    a(f"s_add_u32 s{sW2E}, s{sWB}, {448*896}")
    a(f"s_lshl_b32 s{sROT}, s{sROT}, 12")
    for k in range(n if n is not None else RING): g2_dma(a, S, vm, k)

def g2_dma(a, S, vm, k):
    slot = k % RING
    sW2, sW2E = S["G2E"], S["G2F"]
    a(f"s_add_u32 m0, s{S['G2B']}, {slot*2048}")
    a("s_nop 0")
    vm.issue(f"buffer_load_dwordx4 v{PV}, s[{S['W2']}:{S['W2']+3}], s{sW2} offen lds", ("D", k))
    vm.issue(f"buffer_load_dwordx4 v{PV+1}, s[{S['W2']}:{S['W2']+3}], s{sW2} offen offset:1024 lds", ("D", k))
    a(f"s_add_u32 s{sW2}, s{sW2}, {16*896}")
    a(f"s_cmp_eq_u32 s{sW2}, s{sW2E}")
    a(f"s_cselect_b32 s{sW2}, s{S['G2A']}, s{sW2}")

def gen_g2(a, S, hooks=None, vbase=1, standalone=False, vm=None, ts=None):
    hooks = hooks or {}
    SX, SW2, SWS, SOUT, SB2 = S["X"], S["W2"], S["WS"], S["OUT"], S["B2"]
    sW, sK, sJ7, sJm = S["W"], S["K"], S["J7"], S["JM"]
    sT0, sT1, sT2, sT3 = S["T0"], S["T1"], S["T2"], S["T3"]
    sWB, sRB, sLB2, sBO = S["G2A"], S["G2B"], S["G2C"], S["G2D"]
    V = VAlloc(vbase)
    V.limit = PV
    early_done = vm is not None
    if vm is None: vm = Cnt(a, "vmcnt", 63)
    lg = Cnt(a, "lgkmcnt", 15)
    vlane = V.get(); vt = V.get(); vt2 = V.get(); vt3 = V.get()
    a(f"v_and_b32 v{vlane}, 63, v0")
    if not early_done: g2_early(a, S, vm, vlane, vt, vt2, vt3)
    def dma(k): g2_dma(a, S, vm, k)
    vg = V.get(); vc = V.get(); vi = V.get()
    a(f"v_lshrrev_b32 v{vg}, 4, v{vlane}")
    a(f"v_bfe_u32 v{vc}, v{vlane}, 2, 2")
    a(f"v_and_b32 v{vi}, 3, v{vlane}")
    vA = [V.get(), V.get()]
    vhh = V.get(); vr = V.get()
    a(f"v_lshrrev_b32 v{vhh}, 5, v{vlane}")
    a(f"v_lshl_add_u32 v{vt}, v{vhh}, 2, v{vc}")
    a(f"v_lshlrev_b32 v{vt}, 7, v{vt}")
    a(f"v_bfe_u32 v{vt2}, v{vlane}, 3, 1")
    a(f"v_lshl_add_u32 v{vt}, v{vt2}, 6, v{vt}")
    a(f"v_bfe_u32 v{vt2}, v{vlane}, 4, 1")
    a(f"v_lshl_add_u32 v{vt}, v{vt2}, 5, v{vt}")
    a(f"v_lshl_add_u32 v{vt}, v{vi}, 3, v{vt}")
    a(f"v_add_u32 v{vA[0]}, s{sRB}, v{vt}")
    a(f"v_xor_b32 v{vA[1]}, 64, v{vA[0]}")
    acc = [[V.get(16, 4) for lt in range(2)] for dt in range(2)]
    AF = [V.get(8, 4) for _ in range(NA)]
    BF = [V.get(8, 4) for _ in range(NB)]
    def trread(k):
        slot = k % RING; b = AF[k % NA]
        for dt in range(2):
            lg.issue(f"ds_read_b64_tr_b16 v[{b+4*dt}:{b+4*dt+1}], v{vA[dt]} offset:{slot*2048}", ("A", k))
            lg.issue(f"ds_read_b64_tr_b16 v[{b+4*dt+2}:{b+4*dt+3}], v{vA[dt]} offset:{slot*2048+1024}", ("A", k))
    for k in range(NA):
        vm.wait(("D", k))
        trread(k)
    if "publish_h" in hooks: hooks["publish_h"](a, V, vm, lg)
    lg.waitall()
    for k in range(RING, 2*RING): dma(k)
    vxo = V.get()
    a(f"v_lshl_add_u32 v{vt}, v{vg}, 2, v{vi}")
    a(f"v_mul_u32_u24 v{vxo}, 896, v{vt}")
    a(f"v_lshl_add_u32 v{vxo}, v{vc}, 4, v{vxo}")
    sXO = sT3
    a(f"s_lshl_b32 s{sXO}, s{sLB2}, 2")
    a(f"s_add_u32 s{sXO}, s{sXO}, s{sW}")
    a(f"s_mul_i32 s{sXO}, s{sXO}, {16*896}")
    a(f"s_lshl_b32 s{sT0}, s{sJm}, 7")
    a(f"s_add_u32 s{sXO}, s{sXO}, s{sT0}")
    XR = V.get(8, 4); BR = V.get(8, 4)
    vb2 = V.get()
    a(f"v_lshlrev_b32 v{vb2}, 4, v{vc}")
    vm.issue(f"buffer_load_dwordx4 v[{XR}:{XR+3}], v{vxo}, s[{SX}:{SX+3}], s{sXO} offen", "X")
    vm.issue(f"buffer_load_dwordx4 v[{XR+4}:{XR+7}], v{vxo}, s[{SX}:{SX+3}], s{sXO} offen offset:64", "X")
    vm.issue(f"buffer_load_dwordx4 v[{BR}:{BR+3}], v{vb2}, s[{SB2}:{SB2+3}], s{sT0} offen", "X")
    vm.issue(f"buffer_load_dwordx4 v[{BR+4}:{BR+7}], v{vb2}, s[{SB2}:{SB2+3}], s{sT0} offen offset:64", "X")
    for dt in range(2):
        for lt in range(2):
            for i in range(16): a(f"v_mov_b32 v{acc[dt][lt]+i}, 0")
    vB = [V.get(), V.get()]
    a(f"v_lshlrev_b32 v{vt}, 4, v{vlane}")
    a(f"s_lshl_b32 s{sT0}, s{sLB2}, 1")
    a(f"s_mul_i32 s{sT0}, s{sT0}, {112*1024}")
    a(f"s_mul_i32 s{sT1}, s{sW}, {28*1024}")
    a(f"s_add_u32 s{sT0}, s{sT0}, s{sT1}")
    a(f"s_add_u32 s{sT0}, s{sT0}, {WS_HF}")
    a(f"v_add_u32 v{vB[0]}, s{sT0}, v{vt}")
    a(f"v_add_u32 v{vB[1]}, {112*1024}, v{vB[0]}")
    if "wait_h" in hooks: hooks["wait_h"](a, V, vm, lg)
    cur_bo = [None]
    def bload(k):
        blk = k // 4
        if cur_bo[0] != blk:
            if blk == 0: a(f"s_mov_b32 s{sBO}, s{S['G2G']}")
            else:
                a(f"s_add_u32 s{sBO}, s{sBO}, 4096")
                a(f"s_cmp_eq_u32 s{sBO}, {7*4096}")
                a(f"s_cselect_b32 s{sBO}, 0, s{sBO}")
            cur_bo[0] = blk
        b = BF[k % NB]
        for lt in range(2):
            vm.issue(f"buffer_load_dwordx4 v[{b+4*lt}:{b+4*lt+3}], v{vB[lt]}, s[{SWS}:{SWS+3}], s{sBO} offen offset:{(k%4)*1024} sc1", ("B", k))
    for k in range(NB): bload(k)
    for k in range(28):
        both(a, vm, lg, [("B", k)], [("A", k)])
        A = AF[k % NA]; B = BF[k % NB]
        mm = []
        for dt in range(2):
            for lt in range(2):
                C = acc[dt][lt]
                mm.append(f"v_mfma_f32_32x32x16_bf16 v[{C}:{C+15}], v[{A+4*dt}:{A+4*dt+3}], v[{B+4*lt}:{B+4*lt+3}], v[{C}:{C+15}]")
        for m in mm: a(m)
        if k + NB < 28: bload(k + NB)
        if k + NA < 28:
            vm.wait(("D", k + NA))
            trread(k + NA)
        kd = k - 1 + 2*RING
        if k >= 1 and kd < 28 and kd >= 2*RING:
            lg.wait(("A", kd - RING))
            dma(kd)
        if "step" in hooks: hooks["step"](a, V, vm, lg, k)
    if ts: ts.at(9)
    if "wait_s" in hooks: hooks["wait_s"](a, V, vm, lg)
    if ts: ts.at(10)
    vso = V.get(); vso2 = V.get()
    a(f"v_lshrrev_b32 v{vt}, 3, v{vlane}")
    a(f"v_lshlrev_b32 v{vso}, 12, v{vt}")
    a(f"s_and_b32 s{sT0}, s{sW}, 1")
    a(f"s_lshl_b32 s{sT0}, s{sT0}, 2")
    a(f"v_bfe_u32 v{vt2}, v{vlane}, 4, 1")
    a(f"v_or_b32 v{vt2}, s{sT0}, v{vt2}")
    a(f"v_and_b32 v{vt3}, 7, v{vlane}")
    a(f"v_xor_b32 v{vt2}, v{vt2}, v{vt3}")
    a(f"v_lshl_add_u32 v{vso}, v{vt2}, 4, v{vso}")
    a(f"v_xor_b32 v{vso2}, 32, v{vso}")
    a(f"s_lshl_b32 s{sT0}, s{sJm}, 2")
    a(f"s_add_u32 s{sT0}, s{sT0}, s{sW}")
    a(f"s_lshl_b32 s{sT0}, s{sT0}, 16")
    a(f"s_lshl_b32 s{sT1}, s{sLB2}, 7")
    a(f"s_add_u32 s{sT0}, s{sT0}, s{sT1}")
    a(f"s_add_u32 s{sT0}, s{sT0}, {WS_ST}")
    a(f"s_add_u32 s{sT1}, s{sT0}, {8*4096}")
    lg.waitall()
    a(f"s_add_u32 m0, s{sRB}, 16384")
    vm.issue(f"buffer_load_dwordx4 v{vso}, s[{SWS}:{SWS+3}], s{sT0} offen sc1 lds", "S")
    a(f"s_add_u32 m0, s{sRB}, {16384+1024}")
    vm.issue(f"buffer_load_dwordx4 v{vso2}, s[{SWS}:{SWS+3}], s{sT1} offen sc1 lds", "S")
    vn = AF[0]; vm_ = AF[0] + 1; vpw = AF[0] + 2
    a(f"v_and_b32 v{vn}, 31, v{vlane}")
    def mfun(dst, src, tmp):
        a(f"v_and_b32 v{dst}, 1, v{src}")
        a(f"v_and_b32 v{tmp}, 2, v{src}")
        a(f"v_lshl_or_b32 v{dst}, v{tmp}, 2, v{dst}")
        a(f"v_bfe_u32 v{tmp}, v{src}, 2, 2")
        a(f"v_lshl_or_b32 v{dst}, v{tmp}, 1, v{dst}")
    mfun(vm_, vn, vt)
    a(f"v_xor_b32 v{vm_}, v{vm_}, v{vhh}")
    a(f"v_lshlrev_b32 v{vm_}, 4, v{vm_}")
    a(f"v_lshl_add_u32 v{vpw}, v{vn}, 8, v{vm_}")
    a(f"v_add_u32 v{vpw}, s{sRB}, v{vpw}")
    PA = [AF[1] + i for i in range(8)]
    for c in range(8):
        a(f"v_xor_b32 v{PA[c]}, {32*c}, v{vpw}")
    for dt in range(2):
        for q in range(4):
            for lt in range(2):
                C = acc[dt][lt] + 4*q
                lg.issue(f"ds_write_b128 v{PA[4*dt+q]}, v[{C}:{C+3}] offset:{8192*lt}", "P")
    vl = AF[2]; vmr = AF[2] + 1; vpr = AF[2] + 2
    a(f"v_lshl_add_u32 v{vl}, v{vg}, 2, v{vi}")
    mfun(vmr, vl, vt)
    a(f"v_lshlrev_b32 v{vt}, 1, v{vc}")
    a(f"v_xor_b32 v{vmr}, v{vmr}, v{vt}")
    a(f"v_lshlrev_b32 v{vmr}, 4, v{vmr}")
    a(f"s_lshl_b32 s{sT0}, s{sW}, 12")
    a(f"v_lshl_add_u32 v{vpr}, v{vl}, 8, s{sT0}")
    a(f"v_add_u32 v{vpr}, v{vpr}, v{vmr}")
    PR = [AF[3] + i for i in range(4)]
    for t in range(4):
        tc = (t & 1) + 8 * (t >> 1)
        a(f"v_xor_b32 v{PR[t]}, {16*tc}, v{vpr}")
    vsr = AF[4]
    a(f"v_lshrrev_b32 v{vt}, 1, v{vi}")
    a(f"v_mul_u32_u24 v{vsr}, {WREG}, v{vt}")
    a(f"v_and_b32 v{vt}, 1, v{vi}")
    a(f"v_lshl_add_u32 v{vt}, v{vt}, 3, v{vc}")
    a(f"v_lshl_add_u32 v{vsr}, v{vt}, 7, v{vsr}")
    a(f"v_lshrrev_b32 v{vt}, 1, v{vg}")
    a(f"s_lshl_b32 s{sT0}, s{sW}, 1")
    a(f"v_add_u32 v{vt}, s{sT0}, v{vt}")
    a(f"v_lshrrev_b32 v{vt2}, 1, v{vc}")
    a(f"v_lshl_add_u32 v{vt2}, v{vi}, 1, v{vt2}")
    a(f"v_xor_b32 v{vt}, v{vt}, v{vt2}")
    a(f"v_and_b32 v{vt}, 7, v{vt}")
    a(f"v_lshl_add_u32 v{vsr}, v{vt}, 4, v{vsr}")
    a(f"v_and_b32 v{vt}, 1, v{vg}")
    a(f"v_lshl_add_u32 v{vsr}, v{vt}, 3, v{vsr}")
    a(f"v_add_u32 v{vsr}, 16384, v{vsr}")
    a("s_waitcnt vmcnt(0) lgkmcnt(0)"); vm.cleared(); lg.cleared()
    if ts: ts.at(11)
    a("s_barrier")
    P = [[acc[src >> 1][src & 1] + 4*t for t in range(4)] for src in range(4)]
    SR = BF[0]
    for t in range(4):
        lg.issue(f"ds_read_b64_tr_b16 v[{SR+2*t}:{SR+2*t+1}], v{vsr} offset:{(t&1)*512 + (t>>1)*2*WREG}", "SR")
    for t in range(4):
        for src in range(4):
            lg.issue(f"ds_read_b128 v[{P[src][t]}:{P[src][t]+3}], v{PR[t]} offset:{src*WREG}", ("P", t))
    BU = AF[5]
    XU = AF[7]
    SU = BF[1]
    assert AF[6] == AF[5] + 8 and AF[8] == AF[7] + 8 and BF[2] == BF[1] + 8
    for i in range(8):
        a(f"v_lshlrev_b32 v{BU+2*i}, 16, v{BR+i}")
        a(f"v_and_b32 v{BU+2*i+1}, 0xffff0000, v{BR+i}")
    for i in range(8):
        a(f"v_lshlrev_b32 v{XU+2*i}, 16, v{XR+i}")
        a(f"v_and_b32 v{XU+2*i+1}, 0xffff0000, v{XR+i}")
    lg.wait("SR")
    for i in range(8):
        a(f"v_lshlrev_b32 v{SU+2*i}, 16, v{SR+i}")
        a(f"v_and_b32 v{SU+2*i+1}, 0xffff0000, v{SR+i}")
    CN = BF[3]
    a(f"v_mov_b32 v{CN}, {fl(-1.4426950408889634)}")
    a(f"v_mov_b32 v{CN+2}, 1.0")
    O = BF[4]; E = BF[5]
    OUT = BF[6]
    for t in range(4):
        lg.wait(("P", t))
        p = [P[s][t] for s in range(4)]
        for h in range(2):
            a(f"v_pk_add_f32 v[{p[0]+2*h}:{p[0]+2*h+1}], v[{p[0]+2*h}:{p[0]+2*h+1}], v[{p[1]+2*h}:{p[1]+2*h+1}]")
            a(f"v_pk_add_f32 v[{p[2]+2*h}:{p[2]+2*h+1}], v[{p[2]+2*h}:{p[2]+2*h+1}], v[{p[3]+2*h}:{p[3]+2*h+1}]")
        for h in range(2):
            a(f"v_pk_add_f32 v[{p[0]+2*h}:{p[0]+2*h+1}], v[{p[0]+2*h}:{p[0]+2*h+1}], v[{BU+4*t+2*h}:{BU+4*t+2*h+1}]")
        for h in range(2):
            a(f"v_pk_add_f32 v[{p[0]+2*h}:{p[0]+2*h+1}], v[{p[0]+2*h}:{p[0]+2*h+1}], v[{p[2]+2*h}:{p[2]+2*h+1}]")
        if DBG == "o":
            for h in range(2):
                a(f"v_cvt_pk_bf16_f32 v{OUT+2*t+h}, v{p[0]+2*h}, v{p[0]+2*h+1}")
            continue
        if DBG == "s":
            for h in range(2):
                a(f"v_cvt_pk_bf16_f32 v{OUT+2*t+h}, v{SU+4*t+2*h}, v{SU+4*t+2*h+1}")
            continue
        for h in range(2):
            a(f"v_pk_mul_f32 v[{p[1]+2*h}:{p[1]+2*h+1}], v[{p[0]+2*h}:{p[0]+2*h+1}], v[{CN}:{CN+1}] op_sel:[0,0] op_sel_hi:[1,0]")
        for i in range(4): a(f"v_exp_f32 v{p[1]+i}, v{p[1]+i}")
        for h in range(2):
            a(f"v_pk_add_f32 v[{p[1]+2*h}:{p[1]+2*h+1}], v[{p[1]+2*h}:{p[1]+2*h+1}], v[{CN+2}:{CN+3}] op_sel_hi:[1,0]")
        for i in range(4): a(f"v_rcp_f32 v{p[1]+i}, v{p[1]+i}")
        for h in range(2):
            a(f"v_pk_mul_f32 v[{p[0]+2*h}:{p[0]+2*h+1}], v[{p[0]+2*h}:{p[0]+2*h+1}], v[{p[1]+2*h}:{p[1]+2*h+1}]")
        for h in range(2):
            a(f"v_pk_fma_f32 v[{p[0]+2*h}:{p[0]+2*h+1}], v[{p[0]+2*h}:{p[0]+2*h+1}], v[{SU+4*t+2*h}:{SU+4*t+2*h+1}], v[{XU+4*t+2*h}:{XU+4*t+2*h+1}]")
        for h in range(2):
            a(f"v_cvt_pk_bf16_f32 v{OUT+2*t+h}, v{p[0]+2*h}, v{p[0]+2*h+1}")
    a(f"buffer_store_dwordx4 v[{OUT}:{OUT+3}], v{vxo}, s[{SOUT}:{SOUT+3}], s{sXO} offen")
    a(f"buffer_store_dwordx4 v[{OUT+4}:{OUT+7}], v{vxo}, s[{SOUT}:{SOUT+3}], s{sXO} offen offset:64")
    if ts: ts.at(12)
    return V
```

```python
from common import *
from track import Cnt, both
import math

U_SZ = 17408
L_U = 0
L_KR = 2 * U_SZ
KR_SZ = 4608
L_T32 = L_KR + 2 * KR_SZ
T32_SZ = 3072
L_FR = L_T32 + 2 * T32_SZ
FR_SZ = 4352
L_END = L_FR + 4 * FR_SZ
assert L_END <= 81920
LOG2E = 1.4426950408889634

def cmul(a, d, z, w, conjw=False):
    a(f"v_pk_mul_f32 v[{d}:{d+1}], v[{z}:{z+1}], v[{w}:{w+1}] op_sel:[0,0] op_sel_hi:[1,0]")
    a(f"v_pk_fma_f32 v[{d}:{d+1}], v[{z}:{z+1}], v[{w}:{w+1}], v[{d}:{d+1}] op_sel:[1,1,0] op_sel_hi:[0,1,1] neg_lo:[0,1,0]")

def cmul2(a, items):
    for d, z, w in items:
        assert d != z and d != w
        a(f"v_pk_mul_f32 v[{d}:{d+1}], v[{z}:{z+1}], v[{w}:{w+1}] op_sel:[0,0] op_sel_hi:[1,0]")
    for d, z, w in items:
        a(f"v_pk_fma_f32 v[{d}:{d+1}], v[{z}:{z+1}], v[{w}:{w+1}], v[{d}:{d+1}] op_sel:[1,1,0] op_sel_hi:[0,1,1] neg_lo:[0,1,0]")

def gen_ssm(a, sP, hooks=None, S=None, ts=None):
    hooks = hooks or {}
    V = VAlloc(1, 246)
    vm = Cnt(a, "vmcnt", 63); lg = Cnt(a, "lgkmcnt", 15)
    SLAR, SAIM, SCRE, SCIM, SWS = 4, 8, 12, 16, 20
    sLDT, sDSK = 24, 26
    sW, sCH, sHW, sD, sT0, sT1, sT2, sDT, sDS, sUB = 32, 33, 34, 35, 36, 37, 38, 39, 40, 41
    for s, k in ((SLAR, 'lar'), (SAIM, 'aim'), (SCRE, 'cre'), (SCIM, 'cim'), (SWS, 'ws'), (sLDT, 'ldt'), (sDSK, 'dsk')):
        a(f"s_load_dwordx2 s[{s}:{s+1}], s[0:1], {KA[k]}")
    if "pre" in hooks: hooks["pre"](a)
    vlane = V.get(); vt = V.get(); vt2 = V.get(); vt3 = V.get()
    a(f"v_and_b32 v{vlane}, 63, v0")
    a(f"v_lshrrev_b32 v{vt}, 6, v0")
    a(f"v_readfirstlane_b32 s{sW}, v{vt}")
    a(f"s_lshr_b32 s{sCH}, s{sW}, 1")
    a(f"s_and_b32 s{sHW}, s{sW}, 1")
    a(f"s_lshl_b32 s{sD}, s{sP}, 1")
    a(f"s_add_u32 s{sD}, s{sD}, s{sCH}")
    vpo = V.get()
    a(f"v_lshlrev_b32 v{vpo}, 2, v{vlane}")
    a(f"s_lshl_b32 s{sT0}, s{sD}, 9")
    a(f"s_lshl_b32 s{sT1}, s{sHW}, 8")
    a(f"s_add_u32 s{sT0}, s{sT0}, s{sT1}")
    a(f"s_lshl_b32 s{sT2}, s{sP}, 2")
    a("s_waitcnt lgkmcnt(0)")
    for s in (SLAR, SAIM, SCRE, SCIM): srd_fin(a, s, D * N * 2)
    srd_fin(a, SWS, WS_SIZE)
    if "post" in hooks: hooks["post"](a)
    PR = V.get(4)
    for i, s in enumerate((SLAR, SAIM, SCRE, SCIM)):
        vm.issue(f"buffer_load_dword v{PR+i}, v{vpo}, s[{s}:{s+3}], s{sT0} offen", "P")
    a(f"s_load_dword s{sDT}, s[{sLDT}:{sLDT+1}], s{sT2}")
    a(f"s_load_dword s{sDS}, s[{sDSK}:{sDSK+1}], s{sT2}")
    Z = V.get(2, 2)
    a(f"v_mov_b32 v{Z}, 0"); a(f"v_mov_b32 v{Z+1}, 0")
    a(f"v_lshlrev_b32 v{vt2}, 3, v{vlane}")
    a(f"s_mul_i32 s{sT0}, s{sCH}, {KR_SZ}")
    a(f"v_add_u32 v{vt2}, s{sT0}, v{vt2}")
    a(f"ds_write_b64 v{vt2}, v[{Z}:{Z+1}] offset:{L_KR + 4096}")
    GI = V.get(16)
    vtau = V.get(); vf = V.get(2, 2)
    a(f"s_lshl_b32 s{sT0}, s{sHW}, 6")
    a(f"v_add_u32 v{vtau}, s{sT0}, v{vlane}")
    a(f"v_lshlrev_b32 v{vt}, 1, v{vtau}")
    a(f"v_sub_u32 v{vt}, 2047, v{vt}")
    a(f"v_cvt_f32_u32 v{vf}, v{vt}")
    a(f"v_add_f32 v{vf+1}, -1.0, v{vf}")
    a(f"s_mul_i32 s{sT0}, s{sCH}, {T32_SZ}")
    a(f"s_add_u32 s{sT0}, s{sT0}, {L_T32}")
    a(f"s_sub_u32 s{sT1}, s{sT0}, {(0x4300 - 128) * 4}")
    C256 = V.get(2, 2)
    a(f"v_mov_b32 v{C256}, {fl(-256.0)}"); a(f"v_mov_b32 v{C256+1}, {fl(-256.0)}")
    for k in range(7):
        a(f"v_cvt_pk_bf16_f32 v{vt2}, v{vf}, v{vf+1}")
        a(f"v_and_b32 v{vt3}, 0xffff, v{vt2}")
        a(f"v_lshl_add_u32 v{GI+2*k}, v{vt3}, 2, s{sT1}")
        a(f"v_lshrrev_b32 v{vt3}, 16, v{vt2}")
        a(f"v_lshl_add_u32 v{GI+2*k+1}, v{vt3}, 2, s{sT1}")
        if k < 6: a(f"v_pk_add_f32 v[{vf}:{vf+1}], v[{vf}:{vf+1}], v[{C256}:{C256+1}]")
    a(f"v_subrev_u32 v{vt}, {7*256}, v{vt}")
    a(f"v_lshl_add_u32 v{GI+14}, v{vt}, 2, s{sT0}")
    a(f"v_add_u32 v{GI+15}, -4, v{GI+14}")
    vfw = V.get(); vfr = V.get()
    a(f"s_mul_i32 s{sT0}, s{sW}, {FR_SZ}")
    a(f"s_add_u32 s{sT0}, s{sT0}, {L_FR}")
    a(f"v_lshrrev_b32 v{vt}, 4, v{vlane}")
    a(f"v_mul_u32_u24 v{vfw}, 1088, v{vt}")
    a(f"v_bfe_u32 v{vt2}, v{vlane}, 2, 2")
    a(f"v_mul_u32_u24 v{vt2}, 272, v{vt2}")
    a(f"v_add_u32 v{vfw}, v{vfw}, v{vt2}")
    a(f"v_and_b32 v{vt2}, 3, v{vlane}")
    a(f"v_lshl_add_u32 v{vfw}, v{vt2}, 2, v{vfw}")
    a(f"v_add_u32 v{vfw}, s{sT0}, v{vfw}")
    a(f"v_mul_u32_u24 v{vfr}, 272, v{vt}")
    a(f"v_and_b32 v{vt2}, 15, v{vlane}")
    a(f"v_lshl_add_u32 v{vfr}, v{vt2}, 4, v{vfr}")
    a(f"v_add_u32 v{vfr}, s{sT0}, v{vfr}")
    vsa = V.get(); vsb0 = V.get(); vsb1 = V.get(); vsc = V.get()
    a(f"s_mul_i32 s{sT0}, s{sCH}, {T32_SZ}")
    a(f"s_add_u32 s{sT0}, s{sT0}, {L_T32}")
    a(f"v_lshrrev_b32 v{vt3}, 1, v{vt}")
    a(f"v_lshlrev_b32 v{vsa}, 7, v{vt3}")
    a(f"v_lshl_add_u32 v{vsa}, v{vt2}, 3, v{vsa}")
    a(f"v_and_b32 v{vsb0}, 1, v{vt}")
    a(f"v_lshl_add_u32 v{vsa}, v{vsb0}, 2, v{vsa}")
    a(f"v_lshl_add_u32 v{vsa}, v{vsa}, 2, s{sT0}")
    a(f"v_lshlrev_b32 v{vsb0}, 1, v{vt2}")
    a(f"v_lshlrev_b32 v{vsb1}, 2, v{vt2}")
    a(f"v_cmp_gt_u32 vcc, 2, v{vt}")
    a(f"v_cndmask_b32 v{vsb0}, v{vsb0}, v{vsb1}, vcc")
    a(f"v_lshl_add_u32 v{vsb0}, v{vt}, 6, v{vsb0}")
    a(f"v_add_u32 v{vsb0}, 256, v{vsb0}")
    a(f"v_mov_b32 v{vsb1}, 32")
    a(f"v_cndmask_b32 v{vsb1}, v{vsb1}, 2, vcc")
    a(f"v_add_u32 v{vsb1}, v{vsb1}, v{vsb0}")
    a(f"v_lshl_add_u32 v{vsb0}, v{vsb0}, 2, s{sT0}")
    a(f"v_lshl_add_u32 v{vsb1}, v{vsb1}, 2, s{sT0}")
    a(f"v_lshl_add_u32 v{vsc}, v{vt}, 6, v{vt2}")
    a(f"v_add_u32 v{vsc}, 512, v{vsc}")
    a(f"v_lshl_add_u32 v{vsc}, v{vsc}, 2, s{sT0}")
    vdt = V.get(); vds = V.get()
    a("s_waitcnt lgkmcnt(0)")
    a(f"s_lshl_b32 s{sT0}, s{sCH}, 4")
    a(f"s_lshr_b32 s{sDT}, s{sDT}, s{sT0}")
    a(f"s_lshl_b32 s{sDT}, s{sDT}, 16")
    a(f"s_lshr_b32 s{sDS}, s{sDS}, s{sT0}")
    a(f"s_lshl_b32 s{sDS}, s{sDS}, 16")
    a(f"v_mov_b32 v{vdt}, {fl(LOG2E)}")
    a(f"v_mul_f32 v{vdt}, s{sDT}, v{vdt}")
    a(f"v_exp_f32 v{vdt}, v{vdt}")
    bf16r(a, vdt, vdt)
    a(f"s_cmp_eq_u32 s{sHW}, 0")
    a(f"s_cselect_b32 s{sDS}, s{sDS}, 0")
    a(f"v_mov_b32 v{vds}, s{sDS}")
    a(f"v_cmp_eq_u32 vcc, 0, v{vlane}")
    a(f"v_cndmask_b32 v{vds}, 0, v{vds}, vcc")
    mark = V.mark()
    ACC = [V.get(4, 4) for _ in range(3)]
    for t in range(3):
        for i in range(4): a(f"v_mov_b32 v{ACC[t]+i}, 0")
    LF = V.get(16, 4); HF = [V.get(16, 4), V.get(16, 4)]
    E1, E2, E4, E8, E16, E128, E256 = [V.get(2, 2) for _ in range(7)]
    P = [V.get(2, 2) for _ in range(17)]
    W = [V.get(2, 2) for _ in range(8)]
    CV = V.get(16)
    x0 = V.get(); x1 = V.get(); x2 = V.get(); x3 = V.get(); xr = V.get(); xi = V.get()
    if ts: ts.at(1)
    vm.wait("P")
    if ts: ts.at(2)
    def expk(dst, k, conj):
        if k == 1:
            a(f"v_exp_f32 v{x0}, v{xr}")
            a(f"v_fract_f32 v{x1}, v{xi}")
        else:
            a(f"v_mul_f32 v{x0}, {fl(float(k))}, v{xr}")
            a(f"v_mul_f32 v{x1}, {fl(float(k))}, v{xi}")
            a(f"v_exp_f32 v{x0}, v{x0}")
            a(f"v_fract_f32 v{x1}, v{x1}")
        a(f"v_cos_f32 v{dst}, v{x1}")
        a(f"v_sin_f32 v{dst+1}, v{x1}")
        a(f"v_mul_f32 v{dst}, v{x0}, v{dst}")
        if conj: a(f"v_mul_f32 v{dst+1}, -v{x0}, v{dst+1}")
        else: a(f"v_mul_f32 v{dst+1}, v{x0}, v{dst+1}")
    def wr_rows(vals, n):
        i = 0
        while i < n:
            if i + 1 < n:
                lg.issue(f"ds_write2_b32 v{vfw}, v{vals[i]}, v{vals[i+1]} offset0:{4*i} offset1:{4*i+4}", "W"); i += 2
            else:
                lg.issue(f"ds_write_b32 v{vfw}, v{vals[i]} offset:{16*i}", "W"); i += 1
    def rd_frags(dst, tag):
        for s in range(4):
            lg.issue(f"ds_read_b128 v[{dst+4*s}:{dst+4*s+3}], v{vfr} offset:{1088*s}", tag)
    def mf(t, H):
        for s in range(4):
            a(f"v_mfma_f32_16x16x32_bf16 v[{ACC[t]}:{ACC[t]+3}], v[{H+4*s}:{H+4*s+3}], v[{LF+4*s}:{LF+4*s+3}], v[{ACC[t]}:{ACC[t]+3}]")
    def cv(dst, z): a(f"v_cvt_pk_bf16_f32 v{dst}, v{z}, v{z+1}")
    pend = None
    for ps in range(2):
        def unp(dst, src):
            if ps == 0: a(f"v_lshlrev_b32 v{dst}, 16, v{src}")
            else: a(f"v_and_b32 v{dst}, 0xffff0000, v{src}")
        unp(x0, PR + 0)
        a(f"v_mul_f32 v{x0}, {fl(LOG2E)}, v{x0}")
        a(f"v_exp_f32 v{x0}, v{x0}")
        unp(x1, PR + 1)
        unp(x2, PR + 2)
        unp(x3, PR + 3)
        bf16r(a, x0, x0)
        a(f"v_mul_f32 v{xr}, v{x0}, v{vdt}")
        a(f"v_mul_f32 v{xi}, v{x1}, v{vdt}")
        a(f"v_mul_f32 v{xr}, {fl(-LOG2E)}, v{xr}")
        a(f"v_mul_f32 v{xi}, {fl(1.0/(2*math.pi))}, v{xi}")
        a(f"v_mul_f32 v{x2}, v{x2}, v{vdt}")
        a(f"v_mul_f32 v{x3}, v{x3}, v{vdt}")
        a(f"v_add_f32 v{P[0]}, v{x2}, v{x2}")
        a(f"v_add_f32 v{P[0]+1}, v{x3}, v{x3}")
        expk(E8, 8, True)
        expk(E128, 128, False)
        expk(E1, 1, False)
        if pend is not None:
            lg.wait(pend[2]); mf(pend[0], pend[1]); pend = None
        cmul2(a, [(E16, E8, E8), (E256, E128, E128), (E2, E1, E1), (P[1], P[0], E128)])
        if ts and ps == 0: ts.at(9)
        a(f"v_mov_b32 v{CV}, 0x3f80")
        cv(CV + 1, E8); cv(CV + 2, E16)
        ev, od = E16, E8
        wi = 0
        cur_e, cur_o = E16, E8
        first = True
        for k in range(1, 8):
            no = W[wi % 4]; ne = W[(wi + 1) % 4]; wi += 2
            items = [(no, cur_o, E16)]
            if 2*k + 2 <= 14: items.append((ne, cur_e, E16))
            if k == 1: items.append((E4, E2, E2))
            items.append((P[2*k], P[2*k-2], E256)); items.append((P[2*k+1], P[2*k-1], E256))
            cmul2(a, items)
            cv(CV + 2*k + 1, no)
            if 2*k + 2 <= 14: cv(CV + 2*k + 2, ne)
            cur_o, cur_e = no, ne
        cmul2(a, [(P[16], P[14], E256)])
        wr_rows([CV + i for i in range(16)], 16)
        rd_frags(LF, "L")
        if "kpt" in hooks: hooks["kpt"](a, V, vm, lg, 4*ps + 0)
        if ts and ps == 0: ts.at(10)
        cv(CV + 0, P[0]); cv(CV + 8, P[1])
        c0, c1 = P[0], P[1]
        for b in range(1, 8):
            n0 = W[(2*b) % 4]; n1 = W[(2*b + 1) % 4]
            cmul2(a, [(n0, c0, E1), (n1, c1, E1)])
            cv(CV + b, n0); cv(CV + 8 + b, n1)
            c0, c1 = n0, n1
        wr_rows([CV + i for i in range(16)], 16)
        rd_frags(HF[0], "A")
        if "kpt" in hooks: hooks["kpt"](a, V, vm, lg, 4*ps + 1)
        cv(CV + 0, P[2]); cv(CV + 4, P[3])
        c0, c1 = P[2], P[3]
        for b in range(1, 4):
            n0 = W[(2*b) % 4]; n1 = W[(2*b + 1) % 4]
            cmul2(a, [(n0, c0, E2), (n1, c1, E2)])
            cv(CV + b, n0); cv(CV + 4 + b, n1)
            c0, c1 = n0, n1
        cmul2(a, [(W[4+i], P[4+i], E4) for i in range(4)])
        for i in range(4):
            cv(CV + 8 + 2*i, P[4+i]); cv(CV + 9 + 2*i, W[4+i])
        wr_rows([CV + i for i in range(16)], 16)
        lg.wait("A"); mf(0, HF[0])
        rd_frags(HF[1], "B")
        if "kpt" in hooks: hooks["kpt"](a, V, vm, lg, 4*ps + 2)
        for i in range(9): cv(CV + i, P[8+i])
        wr_rows([CV + i for i in range(9)], 9)
        lg.wait("B"); mf(1, HF[1])
        rd_frags(HF[0], "C")
        pend = (2, HF[0], "C")
        if ts and ps == 0: ts.at(11)
        if ps == 0 and "mid_kgen" in hooks: hooks["mid_kgen"](a, V, vm, lg)
        if "kpt" in hooks: hooks["kpt"](a, V, vm, lg, 4*ps + 3)
    lg.wait(pend[2]); mf(pend[0], pend[1])
    a(f"v_add_f32 v{ACC[0]}, v{ACC[0]}, v{vds}")
    vxw = x0; vxr = x1
    XR = W[0]
    assert W[1] == W[0] + 2 and W[2] == W[0] + 4
    XR4 = CV
    XR4 = (CV + 3) // 4 * 4
    a(f"s_mul_i32 s{sT0}, s{sW}, {FR_SZ}")
    a(f"s_add_u32 s{sT0}, s{sT0}, {L_FR}")
    a(f"v_lshl_add_u32 v{vxw}, v{vlane}, 4, s{sT0}")
    a(f"s_xor_b32 s{sT1}, s{sW}, 1")
    a(f"s_mul_i32 s{sT0}, s{sT1}, {FR_SZ}")
    a(f"s_add_u32 s{sT0}, s{sT0}, {L_FR}")
    a(f"v_lshl_add_u32 v{vxr}, v{vlane}, 4, s{sT0}")
    lg.waitall()
    if ts: ts.at(12)
    lx1 = a.newlabel("SSM_X1"); lxe = a.newlabel("SSM_XE")
    a(f"s_cmp_eq_u32 s{sHW}, 1")
    a(f"s_cbranch_scc1 {lx1}")
    for hw in range(2):
        if hw == 1: a.label(lx1)
        send4 = ACC[2] if hw == 0 else ACC[0]
        send2 = ACC[1] + 2 if hw == 0 else ACC[1]
        keep4 = ACC[0] if hw == 0 else ACC[2]
        keep2 = ACC[1] if hw == 0 else ACC[1] + 2
        a(f"ds_write_b128 v{vxw}, v[{send4}:{send4+3}]")
        a(f"v_mov_b32 v{XR4+4}, v{send2}"); a(f"v_mov_b32 v{XR4+5}, v{send2+1}")
        a(f"ds_write_b128 v{vxw}, v[{XR4+4}:{XR4+7}] offset:1024")
        a("s_waitcnt lgkmcnt(0)")
        a("s_barrier")
        a(f"ds_read_b128 v[{XR4}:{XR4+3}], v{vxr}")
        a(f"ds_read_b128 v[{XR4+4}:{XR4+7}], v{vxr} offset:1024")
        a("s_waitcnt lgkmcnt(0)")
        for i in range(4): a(f"v_add_f32 v{keep4+i}, v{keep4+i}, v{XR4+i}")
        for i in range(2): a(f"v_add_f32 v{keep2+i}, v{keep2+i}, v{XR4+4+i}")
        if hw == 0:
            a(f"ds_write_b128 v{vsa}, v[{keep4}:{keep4+3}]")
            a(f"ds_write_b64 v{vsb0}, v[{keep2}:{keep2+1}]")
            a(f"s_branch {lxe}")
        else:
            a(f"ds_write_b64 v{vsb1}, v[{keep2}:{keep2+1}]")
            a(f"ds_write2_b32 v{vsc}, v{keep4}, v{keep4+1} offset0:0 offset1:16")
            a(f"ds_write2_b32 v{vsc}, v{keep4+2}, v{keep4+3} offset0:32 offset1:48")
    a.label(lxe)
    lg.cleared()
    for _ in range(3): lg.note("TS")
    if ts: ts.at(13)
    lg.waitall()
    a("s_barrier")
    G = V.get(16)
    for i in range(16): lg.issue(f"ds_read_b32 v{G+i}, v{GI+i}", ("G", i // 2))
    vkw = V.get()
    a(f"s_mul_i32 s{sT0}, s{sCH}, {KR_SZ}")
    a(f"s_add_u32 s{sT0}, s{sT0}, {L_KR}")
    a(f"v_lshl_add_u32 v{vkw}, v{vtau}, 2, s{sT0}")
    for k in range(8):
        lg.wait(("G", k))
        a(f"v_cvt_pk_bf16_f32 v{G+2*k}, v{G+2*k}, v{G+2*k+1}")
        if k % 2 == 1:
            lg.issue(f"ds_write2st64_b32 v{vkw}, v{G+2*k-2}, v{G+2*k} offset0:{2*(k-1)} offset1:{2*k}", "KW")
    lg.waitall()
    if "wait_ln" in hooks: hooks["wait_ln"](a, V, vm, lg)
    vuo = V.get()
    a(f"v_lshrrev_b32 v{vt}, 2, v{vlane}")
    a(f"v_lshlrev_b32 v{vuo}, 4, v{vt}")
    a(f"v_and_b32 v{vt}, 3, v{vlane}")
    a(f"v_lshl_add_u32 v{vuo}, v{vt}, 1, v{vuo}")
    a(f"s_mul_i32 s{sUB}, s{sCH}, {U_SZ}")
    a(f"s_mul_i32 s{sT0}, s{sD}, {XNT_PITCH}")
    a(f"s_mul_i32 s{sT1}, s{sHW}, {9*256}")
    a(f"s_add_u32 s{sT0}, s{sT0}, s{sT1}")
    a(f"s_add_u32 s{sT0}, s{sT0}, {WS_XNT + 98}")
    a(f"s_mul_i32 s{sT1}, s{sHW}, {9*1024}")
    a(f"s_add_u32 s{sT1}, s{sT1}, s{sUB}")
    for k in range(9):
        if k == 8:
            lsk = a.newlabel("SSM_SK")
            a(f"s_cmp_eq_u32 s{sHW}, 1")
            a(f"s_cbranch_scc1 {lsk}")
        a(f"s_add_u32 m0, s{sT1}, {1024*k}")
        a(f"s_add_u32 s{sT2}, s{sT0}, {256*k}")
        a(f"buffer_load_dwordx4 v{vuo}, s[{SWS}:{SWS+3}], s{sT2} offen sc1 lds")
        if k == 8: a.label(lsk)
    V.release(mark)
    vA1 = V.get(); vA2 = V.get(); vB = V.get()
    a(f"v_and_b32 v{vt}, 15, v{vlane}")
    a(f"v_lshrrev_b32 v{vt2}, 4, v{vlane}")
    a(f"v_lshl_add_u32 v{vt3}, v{vt2}, 3, v{vt}")
    a(f"v_lshrrev_b32 v{vA1}, 3, v{vt3}")
    a(f"v_lshlrev_b32 v{vA1}, 6, v{vA1}")
    a(f"v_and_b32 v{vA2}, 3, v{vt3}")
    a(f"v_lshl_add_u32 v{vA1}, v{vA2}, 4, v{vA1}")
    a(f"s_lshl_b32 s{sT0}, s{sHW}, 10")
    a(f"s_add_u32 s{sT0}, s{sT0}, s{sUB}")
    a(f"v_add_u32 v{vA1}, s{sT0}, v{vA1}")
    a(f"v_bfe_u32 v{vt3}, v{vt3}, 2, 1")
    a(f"v_mul_u32_u24 v{vA2}, 56, v{vt3}")
    a(f"v_lshl_add_u32 v{vA1}, v{vt3}, 3, v{vA1}")
    a(f"v_mul_u32_u24 v{vA2}, 48, v{vt3}")
    a(f"v_add3_u32 v{vA2}, v{vA2}, v{vA1}, 8")
    a(f"s_mul_i32 s{sT0}, s{sCH}, {KR_SZ}")
    a(f"s_lshl_b32 s{sT1}, s{sHW}, 8")
    a(f"s_add_u32 s{sT0}, s{sT0}, s{sT1}")
    a(f"s_add_u32 s{sT0}, s{sT0}, {L_KR + 480}")
    a(f"v_lshlrev_b32 v{vt}, 5, v{vt}")
    a(f"v_sub_u32 v{vB}, s{sT0}, v{vt}")
    a(f"v_lshl_add_u32 v{vB}, v{vt2}, 4, v{vB}")
    YA = [V.get(4, 4) for _ in range(8)]
    AF = [[V.get(4, 4) for _ in range(8)] for _ in range(2)]
    BFr = [[V.get(4, 4) for _ in range(8)] for _ in range(2)]
    for c in range(8):
        for i in range(4): a(f"v_mov_b32 v{YA[c]+i}, 0")
    a("s_waitcnt vmcnt(0) lgkmcnt(0)"); vm.cleared(); lg.cleared()
    if ts: ts.at(5)
    a("s_barrier")
    def reads(ph):
        st = ph % 2; l = []
        for T in range(8):
            b = BFr[st][T]
            l.append(f"ds_read_b128 v[{b}:{b+3}], v{vB} offset:{512*T + 64*ph}")
            f = AF[st][T]
            l.append(f"ds_read_b64 v[{f}:{f+1}], v{vA1} offset:{2048*T + 256*ph}")
            l.append(f"ds_read_b64 v[{f+2}:{f+3}], v{vA2} offset:{2048*T + 256*ph}")
        return l
    def mfmas(ph):
        st = ph % 2; l = []
        for T in range(8):
            for c in range(T, 8):
                bp = T - c + 7
                l.append(f"v_mfma_f32_16x16x32_bf16 v[{YA[c]}:{YA[c]+3}], v[{AF[st][T]}:{AF[st][T]+3}], v[{BFr[st][bp]}:{BFr[st][bp]+3}], v[{YA[c]}:{YA[c]+3}]")
        return l
    for l in reads(0): a(l)
    for ph in range(4):
        a("s_waitcnt lgkmcnt(0)")
        mm = mfmas(ph)
        rd = reads(ph + 1) if ph < 3 else []
        k = 0
        for i, m in enumerate(mm):
            a(m)
            if k < len(rd) and i < 30:
                a(rd[k]); k += 1
        while k < len(rd): a(rd[k]); k += 1
    if ts: ts.at(6)
    if "nonce" in hooks: hooks["nonce"](a, V, vm, lg)
    vrw = V.get(); vrr = V.get(); vso = V.get()
    a(f"s_mul_i32 s{sT0}, s{sW}, {FR_SZ}")
    a(f"s_add_u32 s{sT0}, s{sT0}, {L_FR}")
    a(f"v_lshl_add_u32 v{vrw}, v{vlane}, 4, s{sT0}")
    a(f"s_xor_b32 s{sT1}, s{sW}, 1")
    a(f"s_mul_i32 s{sT0}, s{sT1}, {FR_SZ}")
    a(f"s_add_u32 s{sT0}, s{sT0}, {L_FR}")
    a(f"v_lshl_add_u32 v{vrr}, v{vlane}, 4, s{sT0}")
    a(f"v_and_b32 v{vt}, 15, v{vlane}")
    a(f"v_lshlrev_b32 v{vso}, 5, v{vt}")
    a(f"v_bfe_u32 v{vt}, v{vlane}, 4, 1")
    a(f"v_lshl_add_u32 v{vso}, v{vt}, 9, v{vso}")
    a(f"v_lshrrev_b32 v{vt}, 5, v{vlane}")
    a(f"v_lshl_add_u32 v{vso}, v{vt}, 4, v{vso}")
    a(f"s_lshl_b32 s{sT0}, s{sD}, 12")
    a(f"s_lshl_b32 s{sT1}, s{sHW}, 11")
    a(f"s_add_u32 s{sT0}, s{sT0}, s{sT1}")
    a(f"s_add_u32 s{sT0}, s{sT0}, {WS_ST}")
    R = AF[0][0]
    O = AF[1][0]
    lh1 = a.newlabel("SSM_H1"); lend = a.newlabel("SSM_RE")
    a(f"s_cmp_eq_u32 s{sHW}, 1")
    a(f"s_cbranch_scc1 {lh1}")
    for hw in range(2):
        if hw == 1: a.label(lh1)
        mine = range(4*hw, 4*hw + 4); other = range(4*(1-hw), 4*(1-hw) + 4)
        for i, c in enumerate(other):
            a(f"ds_write_b128 v{vrw}, v[{YA[c]}:{YA[c]+3}] offset:{1024*i}")
        a("s_waitcnt lgkmcnt(0)")
        a("s_barrier")
        for i in range(4):
            a(f"ds_read_b128 v[{R+4*i}:{R+4*i+3}], v{vrr} offset:{1024*i}")
        for i, c in enumerate(mine):
            a(f"s_waitcnt lgkmcnt({3-i})")
            a(f"v_pk_add_f32 v[{R+4*i}:{R+4*i+1}], v[{R+4*i}:{R+4*i+1}], v[{YA[c]}:{YA[c]+1}]")
            a(f"v_pk_add_f32 v[{R+4*i+2}:{R+4*i+3}], v[{R+4*i+2}:{R+4*i+3}], v[{YA[c]+2}:{YA[c]+3}]")
            a(f"v_cvt_pk_bf16_f32 v{O+2*i}, v{R+4*i}, v{R+4*i+1}")
            a(f"v_cvt_pk_bf16_f32 v{O+2*i+1}, v{R+4*i+2}, v{R+4*i+3}")
        if hw == 0: a(f"s_branch {lend}")
    a.label(lend)
    for p in range(2):
        a(f"v_permlane16_swap_b32 v{O+4*p}, v{O+4*p+2}")
        a(f"v_permlane16_swap_b32 v{O+4*p+1}, v{O+4*p+3}")
    for p in range(2):
        a(f"buffer_store_dwordx4 v[{O+4*p}:{O+4*p+3}], v{vso}, s[{SWS}:{SWS+3}], s{sT0} offen offset:{1024*p} sc1")
    if "done" in hooks: hooks["done"](a, V, SWS)
    return V
```

```python
import sys
from common import *
import prep

def build_multi(parts):
    text = []; desc = []; launches = []
    if "prep" in parts:
        a = Asm()
        a("s_cmp_ge_u32 s2, 64")
        a("s_cbranch_scc1 PREP_EXIT")
        a("s_mov_b32 s3, s2")
        hi = prep.gen_prep(a, 3)
        a.label("PREP_EXIT")
        a("s_endpgm")
        text.append(kernel_text("prep_kernel", a.finish())); desc.append(kernel_desc("prep_kernel", 256))
        launches.append("; @launch kernel=prep_kernel grid=(64,1,1) block=(256,1,1) lds=81920")
    if "g1" in parts:
        import mlp
        a = Asm()
        a("s_cmp_ge_u32 s2, 224")
        a("s_cbranch_scc1 G1_EXIT")
        a("s_mov_b32 s3, s2")
        mlp.gen_g1(a, 3)
        a.label("G1_EXIT")
        a("s_endpgm")
        text.append(kernel_text("g1_kernel", a.finish())); desc.append(kernel_desc("g1_kernel", 256))
        launches.append("; @launch kernel=g1_kernel grid=(224,1,1) block=(256,1,1) lds=81920")
    if "ssm" in parts:
        import ssm
        a = Asm()
        a("s_cmp_ge_u32 s2, 224")
        a("s_cbranch_scc1 SSM_EXIT")
        a("s_mov_b32 s3, s2")
        ssm.gen_ssm(a, 3)
        a.label("SSM_EXIT")
        a("s_endpgm")
        text.append(kernel_text("ssm_kernel", a.finish())); desc.append(kernel_desc("ssm_kernel", 256))
        launches.append("; @launch kernel=ssm_kernel grid=(224,1,1) block=(256,1,1) lds=81920")
    if "g2" in parts:
        import mlp
        a = Asm()
        a("s_cmp_ge_u32 s2, 224")
        a("s_cbranch_scc1 G2_EXIT")
        a("s_mov_b32 s3, s2")
        import g2
        S = dict(X=4, W2=8, WS=12, OUT=24, B2=28, W=32, K=35, J7=36, JM=37, T0=45, T1=46, T2=47, T3=48, G2A=40, G2B=41, G2C=42, G2D=43, G2E=49, G2F=50, G2G=51)
        for nm, ka in (("X","x"),("W2","w2"),("WS","ws"),("OUT","out"),("B2","b2")):
            a(f"s_load_dwordx2 s[{S[nm]}:{S[nm]+1}], s[0:1], {KA[ka]}")
        mlp.mlp_ids(a, 3, 33, 34, 35, 36, 37)
        a("v_lshrrev_b32 v1, 6, v0")
        a("v_readfirstlane_b32 s32, v1")
        a("s_waitcnt lgkmcnt(0)")
        srd_fin(a, 4, X_BYTES); srd_fin(a, 8, W_BYTES); srd_fin(a, 12, WS_SIZE); srd_fin(a, 24, X_BYTES); srd_fin(a, 28, D*2)
        g2.gen_g2(a, S, standalone=True)
        a.label("G2_EXIT")
        a("s_endpgm")
        text.append(kernel_text("g2_kernel", a.finish())); desc.append(kernel_desc("g2_kernel", 256))
        launches.append("; @launch kernel=g2_kernel grid=(224,1,1) block=(256,1,1) lds=81920")
    out = HEADER + "\n".join(launches) + "\n" + '.amdgcn_target "amdgcn-amd-amdhsa--gfx950"\n.text\n' + "\n".join(text)
    out += '.section .rodata,"a"\n.p2align 6\n' + "\n".join(desc)
    return out

def build_fused():
    import prep2, ssm, mlp, g2
    a = Asm()
    ts = Stamps(a)
    a("s_cmp_ge_u32 s2, 512")
    a("s_cbranch_scc1 K_EXIT")
    ts.at(0)
    if PROF: a("s_memtime s[98:99]")
    a("s_cmp_ge_u32 s2, 288")
    a("s_cbranch_scc1 K_MLP")
    a("s_cmp_ge_u32 s2, 64")
    a("s_cbranch_scc1 K_SSM")
    a("s_mov_b32 s3, s2")
    prep2.gen_prep2(a, 3, ts)
    a("s_endpgm")
    a.label("K_SSM")
    if os.environ.get("NOSSM"): a("s_endpgm")
    a("s_sub_u32 s3, s2, 64")
    SDBG = 44
    SPF = 56
    sPFO = 60
    PFW2 = int(os.environ.get("PFW2S", "0"))
    sW, sCH, sHW, sD = 32, 33, 34, 35
    sNONCE, sCNT, sX0 = 48, 49, 50
    def mid_kgen(a, V, vm, lg):
        a(f"v_and_b32 v248, 63, v0")
        a(f"v_lshlrev_b32 v248, 2, v248")
        vm.issue(f"buffer_load_dword v249, v248, s[{SDBG}:{SDBG+3}], 0 offen sc1", "D")
    PFSTART = int(os.environ.get("PFSTART", "1"))
    PFL = int(os.environ.get("PFL", "16"))
    def kpt(a, V, vm, lg, idx):
        if not PFW2: return
        nb = (112 + PFL - 1) // PFL
        if idx == PFSTART - 1 or (PFSTART == 0 and idx == 0):
            a(f"s_lshr_b32 s{sPFO}, s3, 3")
            a(f"s_lshl_b32 s{sPFO}, s{sPFO}, 2")
            a(f"s_add_u32 s{sPFO}, s{sPFO}, s{sW}")
            a(f"s_mul_i32 s{sPFO}, s{sPFO}, 14336")
            a(f"v_and_b32 v247, 63, v0")
            a(f"v_lshlrev_b32 v247, 7, v247")
        b = idx - PFSTART
        lo = b; hi = b + 1
        if idx == 7: hi = nb
        for bb in range(lo, hi):
            if 0 <= bb < nb:
                a(f"s_mov_b64 exec, 0x{(1 << PFL) - 1:x}" if PFL < 32 else f"s_mov_b64 exec, -1")
                vm.issue(f"buffer_load_dword v246, v247, s[{SPF}:{SPF+3}], s{sPFO} offen", "PF")
                a("s_mov_b64 exec, -1")
                a(f"s_add_u32 s{sPFO}, s{sPFO}, {PFL*128}")
    def wait_ln(a, V, vm, lg):
        ts.at(3)
        m = V.mark()
        vF = V.get(); vDd = 249; vo = 248
        lsk = a.newlabel("SPOLLX")
        a(f"s_cmp_lg_u32 s{sW}, 0")
        a(f"s_cbranch_scc1 {lsk}")
        a(f"s_lshr_b32 s{sX0}, s3, 5")
        a(f"s_mul_i32 s{sX0}, s{sX0}, {LN_RS}")
        a(f"s_lshr_b32 s{sX0+1}, s{sD}, 4")
        a(f"s_and_b32 s{sX0+1}, s{sX0+1}, 3")
        a(f"s_lshl_b32 s{sX0+1}, s{sX0+1}, 8")
        a(f"s_add_u32 s{sX0}, s{sX0}, s{sX0+1}")
        a(f"s_add_u32 s{sX0}, s{sX0}, {FL_LN}")
        lp = a.newlabel("SPOLL"); dn = a.newlabel("SPOLLD"); lnd = a.newlabel("SPOLLN")
        a(f"s_mov_b32 s{sCNT}, {POLL_MAX}")
        a.label(lp)
        a(f"buffer_load_dword v{vF}, v{vo}, s[20:23], s{sX0} offen sc1")
        a(f"s_sub_u32 s{sCNT}, s{sCNT}, 1")
        a(f"s_cbranch_scc1 {dn}")
        a("s_waitcnt vmcnt(0)")
        a(f"v_cmp_eq_u32 s[{sX0+2}:{sX0+3}], 0, v{vDd}")
        a(f"v_cmp_ne_u32 vcc, v{vF}, v{vDd}")
        a(f"s_cmp_eq_u64 s[{sX0+2}:{sX0+3}], 0")
        a(f"s_cbranch_scc1 {lnd}")
        a(f"buffer_load_dword v{vDd}, v{vo}, s[{SDBG}:{SDBG+3}], 0 offen sc1")
        a(f"s_sleep {POLL_SLEEP}")
        a(f"s_branch {lp}")
        a.label(lnd)
        a("s_cmp_eq_u64 vcc, 0")
        a(f"s_cbranch_scc1 {dn}")
        a(f"s_sleep {POLL_SLEEP}")
        a(f"s_branch {lp}")
        a.label(dn)
        a(f"s_branch {lsk}")
        a.label(lsk)
        a("s_waitcnt vmcnt(0)")
        a("s_barrier")
        vm.cleared()
        V.release(m)
        ts.at(4)
    def done(a, V, SWS):
        vz = V.get(); vn = V.get()
        a(f"v_mov_b32 v{vz}, 0")
        a(f"v_mov_b32 v{vn}, s{sNONCE}")
        a(f"s_lshr_b32 s{sX0}, s{sD}, 6")
        a(f"s_lshl_b32 s{sX0}, s{sX0}, 1")
        a(f"s_add_u32 s{sX0}, s{sX0}, s{sHW}")
        a(f"s_mul_i32 s{sX0}, s{sX0}, {S_RS}")
        a(f"s_and_b32 s{sX0+1}, s{sD}, 63")
        a(f"s_lshl_b32 s{sX0+1}, s{sX0+1}, 2")
        a(f"s_add_u32 s{sX0}, s{sX0}, s{sX0+1}")
        a(f"s_add_u32 s{sX0}, s{sX0}, {FL_S}")
        ts.at(7)
        a("s_waitcnt vmcnt(0)")
        ts.at(8)
        a("s_mov_b64 exec, 1")
        a(f"buffer_store_dword v{vn}, v{vz}, s[{SWS}:{SWS+3}], s{sX0} offen sc1")
        a("s_mov_b64 exec, -1")
        ts.flush(SWS, vz, vn)
    def get_nonce(a, V, vm, lg):
        lo = a.newlabel("SNON")
        a(f"v_readfirstlane_b32 s{sNONCE}, v249")
        a(f"s_cmp_lg_u32 s{sNONCE}, 0")
        a(f"s_cbranch_scc1 {lo}")
        a(f"buffer_load_dword v249, v248, s[{SDBG}:{SDBG+3}], 0 offen sc1")
        a("s_waitcnt vmcnt(0)")
        a(f"v_readfirstlane_b32 s{sNONCE}, v249")
        a.label(lo)
    def ssm_pre(a):
        a(f"s_load_dwordx2 s[{SDBG}:{SDBG+1}], s[0:1], {KA['dbg']}")
        if PFW2: a(f"s_load_dwordx2 s[{SPF}:{SPF+1}], s[0:1], {KA['w2']}")
    def ssm_post(a):
        srd_fin(a, SDBG, 256)
        if PFW2: srd_fin(a, SPF, W_BYTES)
    ssm.gen_ssm(a, 3, hooks=dict(wait_ln=wait_ln, done=done, pre=ssm_pre, post=ssm_post, mid_kgen=mid_kgen, nonce=get_nonce, kpt=kpt), ts=ts)
    a("s_endpgm")
    a.label("K_MLP")
    a("s_sub_u32 s3, s2, 288")
    V, vm = mlp.gen_g1(a, 3, fused=True, ts=ts)
    S = mlp.G2S
    def publish_h(a, V, vm, lg):
        m = V.mark()
        vz = V.get(); vn = V.get()
        a(f"v_mov_b32 v{vz}, 0")
        a(f"v_mov_b32 v{vn}, s{mlp.sNONCE}")
        a(f"s_lshl_b32 s{mlp.sT0}, s{mlp.sLB}, 1")
        a(f"s_add_u32 s{mlp.sT0}, s{mlp.sT0}, s{mlp.sWL}")
        a(f"s_mul_i32 s{mlp.sT0}, s{mlp.sT0}, {H_RS}")
        a(f"s_lshl_b32 s{mlp.sT1}, s{mlp.sFB}, 1")
        a(f"s_add_u32 s{mlp.sT1}, s{mlp.sT1}, s{mlp.sWF}")
        a(f"s_lshl_b32 s{mlp.sT1}, s{mlp.sT1}, 2")
        a(f"s_add_u32 s{mlp.sT0}, s{mlp.sT0}, s{mlp.sT1}")
        a(f"s_add_u32 s{mlp.sT0}, s{mlp.sT0}, {FL_H}")
        vm.wait("H")
        ts.at(5)
        a("s_mov_b64 exec, 1")
        vm.issue(f"buffer_store_dword v{vn}, v{vz}, s[{mlp.SWS}:{mlp.SWS+3}], s{mlp.sT0} offen sc1", "F")
        a("s_mov_b64 exec, -1")
        V.release(m)
    def wait_h(a, V, vm, lg):
        m = V.mark()
        vo = V.get(); vt = V.get()
        ts.at(6)
        if os.environ.get("HPOLL1"):
            lsk = a.newlabel("HPOLLX")
            a(f"s_cmp_lg_u32 s{mlp.sW}, 0")
            a(f"s_cbranch_scc1 {lsk}")
            a(f"v_and_b32 v{vo}, 63, v0")
            a(f"v_lshlrev_b32 v{vo}, 2, v{vo}")
            a(f"s_mul_i32 s{mlp.sT0}, s{S['G2C']}, {H_RS}")
            a(f"s_add_u32 s{mlp.sT0}, s{mlp.sT0}, {FL_H}")
            poll_eq(a, 28, vo, mlp.SWS, mlp.sT0, vt, mlp.sNONCE, mlp.sCNT)
            a.label(lsk)
            a("s_barrier")
        else:
            a(f"v_and_b32 v{vo}, 63, v0")
            a(f"v_lshlrev_b32 v{vo}, 2, v{vo}")
            a(f"s_mul_i32 s{mlp.sT0}, s{S['G2C']}, {H_RS}")
            a(f"s_mul_i32 s{mlp.sT1}, s{mlp.sW}, 28")
            a(f"s_add_u32 s{mlp.sT0}, s{mlp.sT0}, s{mlp.sT1}")
            a(f"s_add_u32 s{mlp.sT0}, s{mlp.sT0}, {FL_H}")
            poll_eq(a, 7, vo, mlp.SWS, mlp.sT0, vt, mlp.sNONCE, mlp.sCNT)
            vm.cleared()
        ts.at(7)
        V.release(m)
    def s_flag_addr(a, vo):
        a(f"v_and_b32 v{vo}, 63, v0")
        a(f"v_lshlrev_b32 v{vo}, 2, v{vo}")
        a(f"s_lshl_b32 s{mlp.sT0}, s{mlp.sJm}, 1")
        a(f"s_lshr_b32 s{mlp.sT1}, s{S['G2C']}, 4")
        a(f"s_add_u32 s{mlp.sT0}, s{mlp.sT0}, s{mlp.sT1}")
        a(f"s_mul_i32 s{mlp.sT0}, s{mlp.sT0}, {S_RS}")
        a(f"s_lshl_b32 s{mlp.sT1}, s{mlp.sW}, 6")
        a(f"s_add_u32 s{mlp.sT0}, s{mlp.sT0}, s{mlp.sT1}")
        a(f"s_add_u32 s{mlp.sT0}, s{mlp.sT0}, {FL_S}")
    def wait_s(a, V, vm, lg):
        m = V.mark()
        vo = V.get(); vt = V.get()
        s_flag_addr(a, vo)
        poll_eq(a, 16, vo, mlp.SWS, mlp.sT0, vt, mlp.sNONCE, mlp.sCNT)
        vm.cleared()
        V.release(m)
    g2.gen_g2(a, S, hooks=dict(publish_h=publish_h, wait_h=wait_h, wait_s=wait_s), vm=vm, ts=ts)
    ts.at(13)
    ts.flush(mlp.SWS, 1, 2)
    a.label("K_EXIT")
    a("s_endpgm")
    out = HEADER + "; @launch grid=(512,1,1) block=(256,1,1) lds=81920\n" + '.amdgcn_target "amdgcn-amd-amdhsa--gfx950"\n.text\n'
    out += kernel_text(KN + "_kernel", a.finish())
    out += '.section .rodata,"a"\n.p2align 6\n' + kernel_desc(KN + "_kernel", 256, 102)
    return out

if __name__ == "__main__":
    mode = sys.argv[1]; outp = sys.argv[2]
    if mode == "fused": s = build_fused()
    if mode.startswith("multi:"):
        s = build_multi(mode[6:].split(","))
    open(outp, "w").write(s)
    print("wrote", outp, len(s))
```

```python
from common import *
from track import Cnt, both

import os
DBG = os.environ.get('G2DBG', '')
NA = 10
NB = 8
RING = 10

PV = 250

ROT2 = int(os.environ.get('ROT2', '1'))
ROWS = [16384, 24576, 65536, 32768, 40960, 73728, 49152, 0, 8192, 57344]
SCHED = [int(x) for x in os.environ.get('G2SCHED', '0,0,0,0,4,0').split(',')]
assert all(sum(SCHED[:i+1]) <= m for i, m in enumerate([2, 3, 6, 7, 10, 10]))
NE = sum(SCHED)
DELTA = int(os.environ.get('G2DELTA', '0'))
TWOPATH = int(os.environ.get('G2TWO', '1'))
NOP1 = int(os.environ.get('G2NOP1', '0'))
EPI_STEP = int(os.environ.get('G2EPI', '20'))
def g2_setup(a, S, vlane, vt, vt2, vt3):
    SW2 = S["W2"]; sW, sK, sJ7, sJm = S["W"], S["K"], S["J7"], S["JM"]
    sT0 = S["T0"]; sWB, sRB, sLB2 = S["G2A"], S["G2B"], S["G2C"]
    vwo = PV
    a(f"s_lshl_b32 s{sLB2}, s{sK}, 2")
    a(f"s_add_u32 s{sLB2}, s{sLB2}, s{sJ7}")
    a(f"v_lshrrev_b32 v{vt}, 3, v{vlane}")
    a(f"v_mul_u32_u24 v{vwo}, 896, v{vt}")
    a(f"v_and_b32 v{vt2}, 7, v{vlane}")
    a(f"v_bfe_u32 v{vt3}, v{vlane}, 4, 1")
    a(f"v_lshlrev_b32 v{vt3}, 2, v{vt3}")
    a(f"v_xor_b32 v{vt2}, v{vt2}, v{vt3}")
    a(f"v_lshl_add_u32 v{vwo}, v{vt2}, 4, v{vwo}")
    a(f"s_mul_i32 s{sWB}, s{sW}, {448*896}")
    a(f"s_lshl_b32 s{sT0}, s{sJm}, 7")
    a(f"s_add_u32 s{sWB}, s{sWB}, s{sT0}")
    a(f"s_lshl_b32 s{sRB}, s{sW}, 11")
    a(f"v_add_u32 v{PV+1}, {8*896-1024}, v{vwo}")
    sW2, sW2E, sROT = S["G2E"], S["G2F"], S["G2G"]
    a(f"s_lshl_b32 s{sT0}, s{sJ7}, 1")
    a(f"s_add_u32 s{sT0}, s{sT0}, s{sJm}")
    a(f"s_cmp_ge_u32 s{sT0}, 7")
    a(f"s_cselect_b32 s{sROT}, 7, 0")
    a(f"s_sub_u32 s{sROT}, s{sT0}, s{sROT}")
    if not ROT2: a(f"s_mov_b32 s{sROT}, 0")
    a(f"s_mul_i32 s{sW2}, s{sROT}, {64*896}")
    a(f"s_add_u32 s{sW2}, s{sW2}, s{sWB}")
    a(f"s_add_u32 s{sW2E}, s{sWB}, {448*896}")
    a(f"s_lshl_b32 s{sROT}, s{sROT}, 12")

def g2_dma_items(S, k):
    slot = k % RING
    sW2, sW2E = S["G2E"], S["G2F"]
    return [("s", f"s_add_u32 m0, s{S['G2B']}, {ROWS[slot]}" if ROWS[slot] else f"s_mov_b32 m0, s{S['G2B']}"),
            ("s", "s_nop 0"),
            ("d", f"buffer_load_dwordx4 v{PV}, s[{S['W2']}:{S['W2']+3}], s{sW2} offen lds", ("D", k)),
            ("d", f"buffer_load_dwordx4 v{PV+1}, s[{S['W2']}:{S['W2']+3}], s{sW2} offen offset:1024 lds", ("D", k)),
            ("s", f"s_add_u32 s{sW2}, s{sW2}, {16*896}"),
            ("s", f"s_cmp_eq_u32 s{sW2}, s{sW2E}"),
            ("s", f"s_cselect_b32 s{sW2}, s{S['G2A']}, s{sW2}")]
def g2_dma(a, S, vm, k):
    for it in g2_dma_items(S, k):
        if it[0] == "s": a(it[1])
        else: vm.issue(it[1], it[2])

def gen_g2(a, S, hooks=None, vbase=1, standalone=False, vm=None, ts=None):
    hooks = hooks or {}
    SX, SW2, SWS, SOUT, SB2 = S["X"], S["W2"], S["WS"], S["OUT"], S["B2"]
    sW, sK, sJ7, sJm = S["W"], S["K"], S["J7"], S["JM"]
    sT0, sT1, sT2, sT3 = S["T0"], S["T1"], S["T2"], S["T3"]
    sWB, sRB, sLB2, sBO = S["G2A"], S["G2B"], S["G2C"], S["G2D"]
    V = VAlloc(vbase)
    V.limit = PV
    early_done = vm is not None
    if vm is None: vm = Cnt(a, "vmcnt", 63)
    lg = Cnt(a, "lgkmcnt", 15)
    vlane = V.get(); vt = V.get(); vt2 = V.get(); vt3 = V.get()
    a(f"v_and_b32 v{vlane}, 63, v0")
    ne = NE if early_done else 0
    if not early_done: g2_setup(a, S, vlane, vt, vt2, vt3)
    def dma(k): g2_dma(a, S, vm, k)
    if "publish_h" in hooks: hooks["publish_h"](a, V, vm, lg)
    vpo = V.get(); vpt = V.get()
    G2TS = os.environ.get("G2TS", "")
    if "poll_issue" in hooks and not NOP1: hooks["poll_issue"](a, vm, vpo, vpt)
    if G2TS: ts.at(9)
    for k in range(ne, RING): dma(k)
    if G2TS: ts.at(10)
    vg = V.get(); vc = V.get(); vi = V.get()
    a(f"v_lshrrev_b32 v{vg}, 4, v{vlane}")
    a(f"v_bfe_u32 v{vc}, v{vlane}, 2, 2")
    a(f"v_and_b32 v{vi}, 3, v{vlane}")
    vA = [V.get(), V.get()]; vAh = [V.get(), V.get()]
    vhh = V.get()
    a(f"v_lshrrev_b32 v{vhh}, 5, v{vlane}")
    a(f"v_lshl_add_u32 v{vt}, v{vhh}, 2, v{vc}")
    a(f"v_lshlrev_b32 v{vt}, 7, v{vt}")
    a(f"v_bfe_u32 v{vt2}, v{vlane}, 3, 1")
    a(f"v_lshl_add_u32 v{vt}, v{vt2}, 6, v{vt}")
    a(f"v_bfe_u32 v{vt2}, v{vlane}, 4, 1")
    a(f"v_lshl_add_u32 v{vt}, v{vt2}, 5, v{vt}")
    a(f"v_lshl_add_u32 v{vt}, v{vi}, 3, v{vt}")
    a(f"v_add_u32 v{vA[0]}, s{sRB}, v{vt}")
    a(f"v_xor_b32 v{vA[1]}, 64, v{vA[0]}")
    a(f"v_add_u32 v{vAh[0]}, 0x10000, v{vA[0]}")
    a(f"v_add_u32 v{vAh[1]}, 0x10000, v{vA[1]}")
    acc = [[V.get(16, 4) for lt in range(2)] for dt in range(2)]
    AF = [V.get(8, 4) for _ in range(NA)]
    BF = [V.get(8, 4) for _ in range(NB)]
    def trread(k):
        row = ROWS[k % RING]; b = AF[k % NA]
        base = vA if row < 65536 else vAh
        row &= 0xffff
        for dt in range(2):
            lg.issue(f"ds_read_b64_tr_b16 v[{b+4*dt}:{b+4*dt+1}], v{base[dt]} offset:{row}", ("A", k))
            lg.issue(f"ds_read_b64_tr_b16 v[{b+4*dt+2}:{b+4*dt+3}], v{base[dt]} offset:{row+1024}", ("A", k))
    vxo = V.get()
    a(f"v_lshl_add_u32 v{vt}, v{vg}, 2, v{vi}")
    a(f"v_mul_u32_u24 v{vxo}, 896, v{vt}")
    a(f"v_lshl_add_u32 v{vxo}, v{vc}, 4, v{vxo}")
    sXO = sT3
    a(f"s_lshl_b32 s{sXO}, s{sLB2}, 2")
    a(f"s_add_u32 s{sXO}, s{sXO}, s{sW}")
    a(f"s_mul_i32 s{sXO}, s{sXO}, {16*896}")
    a(f"s_lshl_b32 s{sT0}, s{sJm}, 7")
    a(f"s_add_u32 s{sXO}, s{sXO}, s{sT0}")
    XR = V.get(8, 4); BR = V.get(8, 4)
    vb2 = V.get()
    a(f"v_lshlrev_b32 v{vb2}, 4, v{vc}")
    def epi_loads():
        a(f"s_lshl_b32 s{sT0}, s{sJm}, 7")
        vm.issue(f"buffer_load_dwordx4 v[{XR}:{XR+3}], v{vxo}, s[{SX}:{SX+3}], s{sXO} offen", "X")
        vm.issue(f"buffer_load_dwordx4 v[{XR+4}:{XR+7}], v{vxo}, s[{SX}:{SX+3}], s{sXO} offen offset:64", "X")
        vm.issue(f"buffer_load_dwordx4 v[{BR}:{BR+3}], v{vb2}, s[{SB2}:{SB2+3}], s{sT0} offen", "X")
        vm.issue(f"buffer_load_dwordx4 v[{BR+4}:{BR+7}], v{vb2}, s[{SB2}:{SB2+3}], s{sT0} offen offset:64", "X")
    for dt in range(2):
        for lt in range(2):
            for i in range(16): a(f"v_mov_b32 v{acc[dt][lt]+i}, 0")
    vB = [V.get(), V.get()]
    a(f"v_lshlrev_b32 v{vt}, 4, v{vlane}")
    a(f"s_lshl_b32 s{sT0}, s{sLB2}, 1")
    a(f"s_mul_i32 s{sT0}, s{sT0}, {112*1024}")
    a(f"s_mul_i32 s{sT1}, s{sW}, {28*1024}")
    a(f"s_add_u32 s{sT0}, s{sT0}, s{sT1}")
    a(f"s_add_u32 s{sT0}, s{sT0}, {WS_HF}")
    a(f"v_add_u32 v{vB[0]}, s{sT0}, v{vt}")
    a(f"v_add_u32 v{vB[1]}, {112*1024}, v{vB[0]}")
    for k in range(NA):
        vm.wait(("D", k))
        if G2TS and k == 0: ts.at(11)
        if G2TS and k == 5: ts.at(12)
        if G2TS and k == 9: ts.at(8)
        trread(k)
    lg.waitall()
    if NOP1 and "poll_issue" in hooks: hooks["poll_issue"](a, vm, vpo, vpt)
    if G2TS: ts.at(6); ts.lock = True
    def loop(nd):
        cur_bo = [None]
        def bload(k):
            blk = k // 4
            if cur_bo[0] != blk:
                if blk == 0: a(f"s_mov_b32 s{sBO}, s{S['G2G']}")
                else:
                    a(f"s_add_u32 s{sBO}, s{sBO}, 4096")
                    a(f"s_cmp_eq_u32 s{sBO}, {7*4096}")
                    a(f"s_cselect_b32 s{sBO}, 0, s{sBO}")
                cur_bo[0] = blk
            b = BF[k % NB]
            for lt in range(2):
                vm.issue(f"buffer_load_dwordx4 v[{b+4*lt}:{b+4*lt+3}], v{vB[lt]}, s[{SWS}:{SWS+3}], s{sBO} offen offset:{(k%4)*1024} sc1", ("B", k))
        for k in range(NB): bload(k)
        while nd < 2 * RING: dma(nd); nd += 1
        nt = NA; tr_step = {}
        for k in range(28):
            both(a, vm, lg, [("B", k)], [("A", k)])
            A = AF[k % NA]; B = BF[k % NB]
            for dt in range(2):
                for lt in range(2):
                    C = acc[dt][lt]
                    a(f"v_mfma_f32_32x32x16_bf16 v[{C}:{C+15}], v[{A+4*dt}:{A+4*dt+3}], v[{B+4*lt}:{B+4*lt+3}], v[{C}:{C+15}]")
            if k + NB < 28: bload(k + NB)
            while nd < 28 and (nd - RING) in tr_step and tr_step[nd - RING] < k:
                lg.wait(("A", nd - RING))
                dma(nd); nd += 1
            while nt < 28 and nt - NA + DELTA <= k:
                vm.wait(("D", nt))
                trread(nt); tr_step[nt] = k; nt += 1
            if k == EPI_STEP: epi_loads()
        assert nd == 28 and nt == 28
    if ts: ts.at(6)
    if TWOPATH and "poll_check" in hooks:
        lB = a.newlabel("G2B"); lJ = a.newlabel("G2J")
        hooks["poll_check"](a, vm, vpt, lB)
        if ts: ts.at(7)
        q0 = list(vm.q); l0 = list(lg.q)
        loop(RING)
        a(f"s_branch {lJ}")
        a.label(lB)
        vm.q = q0; lg.q = l0
        for k in range(RING, 2*RING): dma(k)
        hooks["wait_h"](a, V, vm, lg, vpo, vpt)
        if ts: ts.at(7)
        loop(2 * RING)
        a.label(lJ)
    else:
        for k in range(RING, 2*RING): dma(k)
        if "wait_h" in hooks: hooks["wait_h"](a, V, vm, lg, vpo, vpt)
        if ts: ts.at(7)
        loop(2 * RING)
    if ts: ts.at(9)
    if "wait_s" in hooks: hooks["wait_s"](a, V, vm, lg)
    if ts: ts.at(10)
    vso = V.get(); vso2 = V.get()
    a(f"v_lshrrev_b32 v{vt}, 3, v{vlane}")
    a(f"v_lshlrev_b32 v{vso}, 12, v{vt}")
    a(f"s_and_b32 s{sT0}, s{sW}, 1")
    a(f"s_lshl_b32 s{sT0}, s{sT0}, 2")
    a(f"v_bfe_u32 v{vt2}, v{vlane}, 4, 1")
    a(f"v_or_b32 v{vt2}, s{sT0}, v{vt2}")
    a(f"v_and_b32 v{vt3}, 7, v{vlane}")
    a(f"v_xor_b32 v{vt2}, v{vt2}, v{vt3}")
    a(f"v_lshl_add_u32 v{vso}, v{vt2}, 4, v{vso}")
    a(f"v_xor_b32 v{vso2}, 32, v{vso}")
    a(f"s_lshl_b32 s{sT0}, s{sJm}, 2")
    a(f"s_add_u32 s{sT0}, s{sT0}, s{sW}")
    a(f"s_lshl_b32 s{sT0}, s{sT0}, 16")
    a(f"s_lshl_b32 s{sT1}, s{sLB2}, 7")
    a(f"s_add_u32 s{sT0}, s{sT0}, s{sT1}")
    a(f"s_add_u32 s{sT0}, s{sT0}, {WS_ST}")
    a(f"s_add_u32 s{sT1}, s{sT0}, {8*4096}")
    lg.waitall()
    a(f"s_add_u32 m0, s{sRB}, 65536")
    vm.issue(f"buffer_load_dwordx4 v{vso}, s[{SWS}:{SWS+3}], s{sT0} offen sc1 lds", "S")
    a(f"s_add_u32 m0, s{sRB}, {65536+1024}")
    vm.issue(f"buffer_load_dwordx4 v{vso2}, s[{SWS}:{SWS+3}], s{sT1} offen sc1 lds", "S")
    vn = AF[0]; vm_ = AF[0] + 1; vpw = AF[0] + 2
    a(f"v_and_b32 v{vn}, 31, v{vlane}")
    def mfun(dst, src, tmp):
        a(f"v_and_b32 v{dst}, 1, v{src}")
        a(f"v_and_b32 v{tmp}, 2, v{src}")
        a(f"v_lshl_or_b32 v{dst}, v{tmp}, 2, v{dst}")
        a(f"v_bfe_u32 v{tmp}, v{src}, 2, 2")
        a(f"v_lshl_or_b32 v{dst}, v{tmp}, 1, v{dst}")
    mfun(vm_, vn, vt)
    a(f"v_xor_b32 v{vm_}, v{vm_}, v{vhh}")
    a(f"v_lshlrev_b32 v{vm_}, 4, v{vm_}")
    a(f"v_and_b32 v{vt}, 7, v{vn}")
    a(f"v_lshl_add_u32 v{vpw}, v{vt}, 8, v{vm_}")
    a(f"v_lshrrev_b32 v{vt}, 3, v{vn}")
    a(f"v_lshl_add_u32 v{vpw}, v{vt}, 13, v{vpw}")
    a(f"v_add_u32 v{vpw}, s{sRB}, v{vpw}")
    PA = [AF[1] + i for i in range(8)]
    for c in range(8):
        a(f"v_xor_b32 v{PA[c]}, {32*c}, v{vpw}")
    for dt in range(2):
        for q in range(4):
            for lt in range(2):
                C = acc[dt][lt] + 4*q
                lg.issue(f"ds_write_b128 v{PA[4*dt+q]}, v[{C}:{C+3}] offset:{32768*lt}", "P")
    vl = AF[2]; vmr = AF[2] + 1; vpr = AF[2] + 2
    a(f"v_lshl_add_u32 v{vl}, v{vg}, 2, v{vi}")
    mfun(vmr, vl, vt)
    a(f"v_lshlrev_b32 v{vt}, 1, v{vc}")
    a(f"v_xor_b32 v{vmr}, v{vmr}, v{vt}")
    a(f"v_lshlrev_b32 v{vmr}, 4, v{vmr}")
    a(f"s_lshl_b32 s{sT0}, s{sW}, 14")
    a(f"v_and_b32 v{vt}, 7, v{vl}")
    a(f"v_lshl_add_u32 v{vpr}, v{vt}, 8, s{sT0}")
    a(f"v_lshrrev_b32 v{vt}, 3, v{vl}")
    a(f"v_lshl_add_u32 v{vpr}, v{vt}, 13, v{vpr}")
    a(f"v_add_u32 v{vpr}, v{vpr}, v{vmr}")
    PR = [AF[3] + i for i in range(4)]
    for t in range(4):
        tc = (t & 1) + 8 * (t >> 1)
        a(f"v_xor_b32 v{PR[t]}, {16*tc}, v{vpr}")
    vsr = AF[4]
    a(f"v_lshrrev_b32 v{vt}, 1, v{vi}")
    a(f"v_lshlrev_b32 v{vsr}, 11, v{vt}")
    a(f"v_and_b32 v{vt}, 1, v{vi}")
    a(f"v_lshl_add_u32 v{vt}, v{vt}, 3, v{vc}")
    a(f"v_lshl_add_u32 v{vsr}, v{vt}, 7, v{vsr}")
    a(f"v_lshrrev_b32 v{vt}, 1, v{vg}")
    a(f"s_lshl_b32 s{sT0}, s{sW}, 1")
    a(f"v_add_u32 v{vt}, s{sT0}, v{vt}")
    a(f"v_lshrrev_b32 v{vt2}, 1, v{vc}")
    a(f"v_lshl_add_u32 v{vt2}, v{vi}, 1, v{vt2}")
    a(f"v_xor_b32 v{vt}, v{vt}, v{vt2}")
    a(f"v_and_b32 v{vt}, 7, v{vt}")
    a(f"v_lshl_add_u32 v{vsr}, v{vt}, 4, v{vsr}")
    a(f"v_and_b32 v{vt}, 1, v{vg}")
    a(f"v_lshl_add_u32 v{vsr}, v{vt}, 3, v{vsr}")
    a(f"v_add_u32 v{vsr}, 0x10000, v{vsr}")
    a("s_waitcnt vmcnt(0) lgkmcnt(0)"); vm.cleared(); lg.cleared()
    if ts: ts.at(11)
    a("s_barrier")
    P = [[acc[src >> 1][src & 1] + 4*t for t in range(4)] for src in range(4)]
    SR = BF[0]
    for t in range(4):
        lg.issue(f"ds_read_b64_tr_b16 v[{SR+2*t}:{SR+2*t+1}], v{vsr} offset:{(t&1)*512 + (t>>1)*4096}", "SR")
    for t in range(4):
        for src in range(4):
            lg.issue(f"ds_read_b128 v[{P[src][t]}:{P[src][t]+3}], v{PR[t]} offset:{src*2048}", ("P", t))
    BU = AF[5]
    XU = AF[7]
    SU = BF[1]
    assert AF[6] == AF[5] + 8 and AF[8] == AF[7] + 8 and BF[2] == BF[1] + 8
    for i in range(8):
        a(f"v_lshlrev_b32 v{BU+2*i}, 16, v{BR+i}")
        a(f"v_and_b32 v{BU+2*i+1}, 0xffff0000, v{BR+i}")
    for i in range(8):
        a(f"v_lshlrev_b32 v{XU+2*i}, 16, v{XR+i}")
        a(f"v_and_b32 v{XU+2*i+1}, 0xffff0000, v{XR+i}")
    lg.wait("SR")
    for i in range(8):
        a(f"v_lshlrev_b32 v{SU+2*i}, 16, v{SR+i}")
        a(f"v_and_b32 v{SU+2*i+1}, 0xffff0000, v{SR+i}")
    CN = BF[3]
    a(f"v_mov_b32 v{CN}, {fl(-1.4426950408889634)}")
    a(f"v_mov_b32 v{CN+2}, 1.0")
    O = BF[4]; E = BF[5]
    OUT = BF[6]
    for t in range(4):
        lg.wait(("P", t))
        p = [P[s][t] for s in range(4)]
        for h in range(2):
            a(f"v_pk_add_f32 v[{p[0]+2*h}:{p[0]+2*h+1}], v[{p[0]+2*h}:{p[0]+2*h+1}], v[{p[1]+2*h}:{p[1]+2*h+1}]")
            a(f"v_pk_add_f32 v[{p[2]+2*h}:{p[2]+2*h+1}], v[{p[2]+2*h}:{p[2]+2*h+1}], v[{p[3]+2*h}:{p[3]+2*h+1}]")
        for h in range(2):
            a(f"v_pk_add_f32 v[{p[0]+2*h}:{p[0]+2*h+1}], v[{p[0]+2*h}:{p[0]+2*h+1}], v[{BU+4*t+2*h}:{BU+4*t+2*h+1}]")
        for h in range(2):
            a(f"v_pk_add_f32 v[{p[0]+2*h}:{p[0]+2*h+1}], v[{p[0]+2*h}:{p[0]+2*h+1}], v[{p[2]+2*h}:{p[2]+2*h+1}]")
        if DBG == "o":
            for h in range(2):
                a(f"v_cvt_pk_bf16_f32 v{OUT+2*t+h}, v{p[0]+2*h}, v{p[0]+2*h+1}")
            continue
        if DBG == "s":
            for h in range(2):
                a(f"v_cvt_pk_bf16_f32 v{OUT+2*t+h}, v{SU+4*t+2*h}, v{SU+4*t+2*h+1}")
            continue
        for h in range(2):
            a(f"v_pk_mul_f32 v[{p[1]+2*h}:{p[1]+2*h+1}], v[{p[0]+2*h}:{p[0]+2*h+1}], v[{CN}:{CN+1}] op_sel:[0,0] op_sel_hi:[1,0]")
        for i in range(4): a(f"v_exp_f32 v{p[1]+i}, v{p[1]+i}")
        for h in range(2):
            a(f"v_pk_add_f32 v[{p[1]+2*h}:{p[1]+2*h+1}], v[{p[1]+2*h}:{p[1]+2*h+1}], v[{CN+2}:{CN+3}] op_sel_hi:[1,0]")
        for i in range(4): a(f"v_rcp_f32 v{p[1]+i}, v{p[1]+i}")
        for h in range(2):
            a(f"v_pk_mul_f32 v[{p[0]+2*h}:{p[0]+2*h+1}], v[{p[0]+2*h}:{p[0]+2*h+1}], v[{p[1]+2*h}:{p[1]+2*h+1}]")
        for h in range(2):
            a(f"v_pk_fma_f32 v[{p[0]+2*h}:{p[0]+2*h+1}], v[{p[0]+2*h}:{p[0]+2*h+1}], v[{SU+4*t+2*h}:{SU+4*t+2*h+1}], v[{XU+4*t+2*h}:{XU+4*t+2*h+1}]")
        for h in range(2):
            a(f"v_cvt_pk_bf16_f32 v{OUT+2*t+h}, v{p[0]+2*h}, v{p[0]+2*h+1}")
    a(f"buffer_store_dwordx4 v[{OUT}:{OUT+3}], v{vxo}, s[{SOUT}:{SOUT+3}], s{sXO} offen")
    a(f"buffer_store_dwordx4 v[{OUT+4}:{OUT+7}], v{vxo}, s[{SOUT}:{SOUT+3}], s{sXO} offen offset:64")
    if ts: ts.at(12)
    return V
```

```python
from common import *

def interleave(main, fill, a, first=0):
    n = len(main); k = 0
    per = [(len(fill) * (i + 1)) // n - (len(fill) * i) // n for i in range(n)]
    for i, m in enumerate(main):
        a(m)
        for _ in range(per[i]):
            a(fill[k]); k += 1

def mlp_ids(a, sI, sLB, sFB, sK, sJ7, sJm):
    a(f"s_and_b32 s{sK}, s{sI}, 7")
    a(f"s_lshr_b32 s{sJm}, s{sI}, 3")
    a(f"s_mul_i32 s{sJ7}, s{sJm}, 37")
    a(f"s_lshr_b32 s{sJ7}, s{sJ7}, 8")
    a(f"s_mul_i32 s{sLB}, s{sJ7}, 7")
    a(f"s_sub_u32 s{sJm}, s{sJm}, s{sLB}")
    a(f"s_lshr_b32 s{sLB}, s{sK}, 1")
    a(f"s_lshl_b32 s{sLB}, s{sLB}, 2")
    a(f"s_add_u32 s{sLB}, s{sLB}, s{sJ7}")
    a(f"s_and_b32 s{sFB}, s{sK}, 1")
    a(f"s_mul_i32 s{sFB}, s{sFB}, 7")
    a(f"s_add_u32 s{sFB}, s{sFB}, s{sJm}")

SX, SW1, SWS, SB1 = 4, 8, 12, 16
SOUT, SB2 = 24, 28
sW, sLB, sFB, sK, sJ7, sJm = 32, 33, 34, 35, 36, 37
sC, sRD, sWR, sXO, sWO, sT0, sT1, sT2 = 40, 41, 42, 43, 44, 45, 46, 47
sM = 48
sWF, sWL = 50, 51
sXB0, sWB0 = 40, 41
sXE, sWRW = 63, 57
ROT = int(os.environ.get("ROT", "1"))

SW2 = 20
G1X = os.environ.get("G1X", "")
G1TS = os.environ.get("G1TS", "")
PFX = int(os.environ.get("PFX", "0"))
PFW2_STEP = int(os.environ.get("PFW2", "99"))
STAT_STEP = int(os.environ.get("STATSTEP", "10"))
SDBG, sNONCE, sTG0, sTG1, sCNT, sT3 = 52, 56, 57, 58, 59, 60
G2S = dict(X=SX, W2=SW2, WS=SWS, OUT=SOUT, B2=SB2, W=sW, K=sK, J7=sJ7, JM=sJm, T0=sT0, T1=sT1, T2=sT2, T3=sT3,
           G2A=38, G2B=39, G2C=61, G2D=62, G2E=40, G2F=41, G2G=42)

def gen_g1(a, sI, hooks=None, fused=False, ts=None):
    V = VAlloc(1)
    V.limit = 250
    T2 = (G1TS == "2")
    if T2: ts.at(1)
    a(f"s_load_dwordx2 s[{SX}:{SX+1}], s[0:1], {KA['x']}")
    a(f"s_load_dwordx2 s[{SW1}:{SW1+1}], s[0:1], {KA['w1']}")
    a(f"s_load_dwordx2 s[{SWS}:{SWS+1}], s[0:1], {KA['ws']}")
    a(f"s_load_dwordx2 s[{SB1}:{SB1+1}], s[0:1], {KA['b1']}")
    if fused:
        for s_, k_ in ((SW2, 'w2'), (SOUT, 'out'), (SB2, 'b2'), (SDBG, 'dbg')):
            a(f"s_load_dwordx2 s[{s_}:{s_+1}], s[0:1], {KA[k_]}")
    mlp_ids(a, sI, sLB, sFB, sK, sJ7, sJm)
    vlane = V.get(); vt = V.get(); vt2 = V.get(); vt3 = V.get()
    a(f"v_and_b32 v{vlane}, 63, v0")
    a(f"v_lshrrev_b32 v{vt}, 6, v0")
    a(f"v_readfirstlane_b32 s{sW}, v{vt}")
    a(f"s_and_b32 s{sWF}, s{sW}, 1")
    a(f"s_lshr_b32 s{sWL}, s{sW}, 1")
    vx = [V.get() for _ in range(4)]; vw0 = V.get(); vw1 = V.get()
    a(f"v_lshrrev_b32 v{vt}, 3, v{vlane}")
    a(f"v_mul_u32_u24 v{vx[0]}, 896, v{vt}")
    a(f"v_lshrrev_b32 v{vt}, 4, v{vlane}")
    a(f"v_and_b32 v{vt2}, 7, v{vlane}")
    a(f"v_xor_b32 v{vt2}, v{vt}, v{vt2}")
    a(f"v_xor_b32 v{vt3}, 4, v{vt2}")
    a(f"v_lshl_add_u32 v{vx[1]}, v{vt3}, 4, v{vx[0]}")
    a(f"v_lshl_add_u32 v{vx[0]}, v{vt2}, 4, v{vx[0]}")
    a(f"v_add_u32 v{vx[1]}, {7168-1024}, v{vx[1]}")
    a(f"v_add_u32 v{vx[2]}, {2*(7168-1024)}, v{vx[0]}")
    a(f"v_add_u32 v{vx[3]}, {2*(7168-1024)}, v{vx[1]}")
    a(f"s_lshl_b32 s{sT0}, s{sLB}, 7")
    a(f"s_lshl_b32 s{sT1}, s{sW}, 5")
    a(f"s_add_u32 s{sT0}, s{sT0}, s{sT1}")
    a(f"s_mul_i32 s{sXB0}, s{sT0}, 896")
    a(f"v_mul_u32_u24 v{vt3}, 3584, v{vt}")
    a(f"v_lshlrev_b32 v{vw0}, 2, v{vt}")
    a(f"v_and_b32 v{vt2}, 15, v{vlane}")
    a(f"v_xor_b32 v{vt2}, v{vw0}, v{vt2}")
    a(f"v_lshl_add_u32 v{vw0}, v{vt2}, 4, v{vt3}")
    a(f"v_add_u32 v{vw1}, {14336-1024}, v{vw0}")
    a(f"s_mul_i32 s{sWB0}, s{sW}, {8*3584}")
    a(f"s_lshl_b32 s{sT0}, s{sFB}, 8")
    a(f"s_add_u32 s{sWB0}, s{sWB0}, s{sT0}")
    a(f"s_lshl_b32 s{sWR}, s{sW}, 12")
    a(f"s_lshl_b32 s{sWRW}, s{sW}, 11")
    a(f"s_add_u32 s{sWRW}, s{sWRW}, 49152")
    a(f"s_lshl_b32 s{sT0}, s{sJ7}, 1")
    a(f"s_add_u32 s{sT0}, s{sT0}, s{sJm}")
    a(f"s_cmp_ge_u32 s{sT0}, 7")
    a(f"s_cselect_b32 s{sT1}, 7, 0")
    a(f"s_sub_u32 s{sT0}, s{sT0}, s{sT1}")
    if not ROT: a(f"s_mov_b32 s{sT0}, 0")
    a(f"s_lshl_b32 s{sT1}, s{sT0}, 7")
    a(f"s_add_u32 s{sXO}, s{sXB0}, s{sT1}")
    a(f"s_add_u32 s{sXE}, s{sXB0}, 896")
    a(f"s_mul_i32 s{sT1}, s{sT0}, {2*32*3584}")
    a(f"s_add_u32 s{sWO}, s{sWB0}, s{sT1}")
    if T2: ts.at(2)
    a("s_waitcnt lgkmcnt(0)")
    if T2: ts.at(3)
    srd_fin(a, SX, X_BYTES); srd_fin(a, SW1, W_BYTES); srd_fin(a, SWS, WS_SIZE); srd_fin(a, SB1, F*2)
    if fused:
        srd_fin(a, SW2, W_BYTES); srd_fin(a, SOUT, X_BYTES); srd_fin(a, SB2, D*2); srd_fin(a, SDBG, 256)
    from track import Cnt, both
    import g2
    vm = Cnt(a, "vmcnt", 63); lg = Cnt(a, "lgkmcnt", 15)
    def xdma(j, half):
        slot = (j % 3) * 16384
        pre = [f"s_add_u32 m0, s{sWR}, {slot}" if slot else f"s_mov_b32 m0, s{sWR}"]
        loads = [(f"buffer_load_dwordx4 v{vx[i]}, s[{SX}:{SX+3}], s{sXO} offen" + (f" offset:{1024*i}" if i else "") + " lds", ("X", j))
                 for i in (2*half, 2*half+1)]
        post = []
        if half == 1:
            post = [f"s_add_u32 s{sXO}, s{sXO}, 128", f"s_cmp_eq_u32 s{sXO}, s{sXE}", f"s_cselect_b32 s{sXO}, s{sXB0}, s{sXO}"]
        return pre, loads, post
    def wdma(c):
        slot = (c % 4) * 8192
        pre = [f"s_add_u32 m0, s{sWRW}, {slot}" if slot else f"s_mov_b32 m0, s{sWRW}"]
        loads = [(f"buffer_load_dwordx4 v{vw0}, s[{SW1}:{SW1+3}], s{sWO} offen lds", ("W", c)),
                 (f"buffer_load_dwordx4 v{vw1}, s[{SW1}:{SW1+3}], s{sWO} offen offset:1024 lds", ("W", c))]
        post = [f"s_add_u32 s{sWO}, s{sWO}, {32*3584}", f"s_cmp_ge_u32 s{sWO}, {W_BYTES}", f"s_cselect_b32 s{sWO}, s{sWB0}, s{sWO}"]
        return pre, loads, post
    def emit(d):
        pre, loads, post = d
        for t in pre: a(t)
        a("s_nop 0")
        for t, T in loads: vm.issue(t, T)
        for t in post: a(t)
    def dma_first():
        emit(xdma(0, 0)); emit(wdma(0)); emit(xdma(0, 1)); emit(wdma(1))
    def dma_second():
        emit(xdma(1, 0)); emit(wdma(2)); emit(xdma(1, 1))
    vb1 = V.get(2)
    a(f"v_and_b32 v{vt}, 31, v{vlane}")
    a(f"v_lshlrev_b32 v{vt}, 1, v{vt}")
    a(f"s_lshl_b32 s{sT0}, s{sFB}, 8")
    a(f"s_lshl_b32 s{sT1}, s{sWF}, 7")
    a(f"s_add_u32 s{sT0}, s{sT0}, s{sT1}")
    if "twice" in G1X:
        a("s_mov_b32 s94, s%d" % sXO); a("s_mov_b32 s95, s%d" % sWO)
    dma_first()
    if T2: ts.at(4)
    a(f"s_lshl_b32 s{sT0}, s{sFB}, 8")
    a(f"s_lshl_b32 s{sT1}, s{sWF}, 7")
    a(f"s_add_u32 s{sT0}, s{sT0}, s{sT1}")
    vm.issue(f"buffer_load_ushort v{vb1}, v{vt}, s[{SB1}:{SB1+3}], s{sT0} offen", "B1")
    vm.issue(f"buffer_load_ushort v{vb1+1}, v{vt}, s[{SB1}:{SB1+3}], s{sT0} offen offset:64", "B1")
    vB = [[V.get() for s_ in range(2)] for e in range(2)]; vA = [V.get(), V.get()]
    vn = V.get(); vhh = V.get()
    a(f"v_and_b32 v{vn}, 31, v{vlane}")
    a(f"v_lshrrev_b32 v{vhh}, 5, v{vlane}")
    a(f"v_bfe_u32 v{vt}, v{vn}, 1, 3")
    a(f"v_xor_b32 v{vt}, v{vt}, v{vhh}")
    a(f"s_lshl_b32 s{sT0}, s{sWL}, 13")
    a(f"v_lshl_add_u32 v{vt2}, v{vn}, 7, s{sT0}")
    a(f"v_lshl_add_u32 v{vB[0][0]}, v{vt}, 4, v{vt2}")
    for e in range(2):
        for s_ in range(2):
            if e or s_: a(f"v_xor_b32 v{vB[e][s_]}, {64*e + 32*s_}, v{vB[0][0]}")
    vr_ = V.get()
    a(f"v_bfe_u32 v{vr_}, v{vlane}, 2, 2")
    a(f"v_lshl_add_u32 v{vt}, v{vhh}, 3, v{vr_}")
    a(f"v_lshlrev_b32 v{vt}, 8, v{vt}")
    a(f"v_bfe_u32 v{vt2}, v{vlane}, 4, 1")
    a(f"v_lshl_add_u32 v{vt}, v{vt2}, 5, v{vt}")
    a(f"v_and_b32 v{vt2}, 3, v{vlane}")
    a(f"v_lshl_add_u32 v{vt}, v{vt2}, 3, v{vt}")
    a(f"v_add_u32 v{vt}, 49152, v{vt}")
    a(f"s_lshl_b32 s{sT0}, s{sWF}, 1")
    a(f"v_xor_b32 v{vt2}, s{sT0}, v{vr_}")
    a(f"v_lshl_add_u32 v{vA[0]}, v{vt2}, 6, v{vt}")
    a(f"v_xor_b32 v{vA[1]}, 64, v{vA[0]}")
    acc = [[V.get(16, 4) for lt in range(2)] for ft in range(2)]
    fa = [[[V.get(4, 4) for s in range(2)] for ft in range(2)] for p in range(2)]
    fb = [[[V.get(4, 4) for s in range(2)] for lt in range(2)] for p in range(2)]
    cs = [V.get(4, 4), V.get(4, 4)]
    sel = V.get(4, 4)
    ST = [V.get(8, 4), V.get(8, 4)]
    vso = V.get()
    vD = V.get(); vl4 = V.get()
    a(f"v_lshlrev_b32 v{vl4}, 2, v{vlane}")
    for ft in range(2):
        for lt in range(2):
            for i in range(16): a(f"v_mov_b32 v{acc[ft][lt]+i}, 0")
    for ft in range(2):
        for i in range(4): a(f"v_mov_b32 v{cs[ft]+i}, 0")
    a(f"v_and_b32 v{vt}, 15, v{vlane}")
    a(f"v_bfe_u32 v{vt2}, v{vlane}, 4, 1")
    a(f"v_cmp_eq_u32 vcc, v{vt}, v{vt2}")
    a(f"v_mov_b32 v{vt}, 0x3f803f80")
    for i in range(4): a(f"v_cndmask_b32 v{sel+i}, 0, v{vt}, vcc")
    a(f"v_lshlrev_b32 v{vso}, 5, v{vn}")

    def reads(c):
        p = c % 2; e = c % 2
        xoff = ((c // 2) % 3) * 16384; woff = (c % 4) * 8192
        def rb(lt, s): return f"ds_read_b128 v[{fb[p][lt][s]}:{fb[p][lt][s]+3}], v{vB[e][s]} offset:{xoff+4096*lt}"
        def ra(ft, s):
            b = fa[p][ft][s]
            return [f"ds_read_b64_tr_b16 v[{b}:{b+1}], v{vA[ft]} offset:{woff+4096*s}",
                    f"ds_read_b64_tr_b16 v[{b+2}:{b+3}], v{vA[ft]} offset:{woff+4096*s+1024}"]
        l = []
        for s in range(2):
            l += [rb(0, s)] + ra(0, s) + [rb(1, s)] + ra(1, s)
        return l
    def mfmas(p):
        l = []
        for s in range(2):
            for ft in range(2):
                for lt in range(2):
                    A = fa[p][ft][s]; B = fb[p][lt][s]; C = acc[ft][lt]
                    l.append(f"v_mfma_f32_32x32x16_bf16 v[{C}:{C+15}], v[{A}:{A+3}], v[{B}:{B+3}], v[{C}:{C+15}]")
        return l
    def csm(p):
        l = []
        for s in range(2):
            for ft in range(2):
                B = fa[p][ft][s]; C = cs[ft]
                l.append(f"v_mfma_f32_16x16x32_bf16 v[{C}:{C+3}], v[{sel}:{sel+3}], v[{B}:{B+3}], v[{C}:{C+3}]")
        return l
    def stat_loads(issue):
        a(f"s_lshl_b32 s{sT0}, s{sLB}, 12")
        a(f"s_lshl_b32 s{sT1}, s{sWL}, 11")
        a(f"s_add_u32 s{sT0}, s{sT0}, s{sT1}")
        a(f"s_add_u32 s{sT0}, s{sT0}, {WS_STAT}")
        for lt in range(2):
            issue(f"buffer_load_dwordx4 v[{ST[lt]}:{ST[lt]+3}], v{vso}, s[{SWS}:{SWS+3}], s{sT0} offen offset:{1024*lt} sc1")
            issue(f"buffer_load_dwordx4 v[{ST[lt]+4}:{ST[lt]+7}], v{vso}, s[{SWS}:{SWS+3}], s{sT0} offen offset:{1024*lt+16} sc1")
        if fused:
            issue(f"buffer_load_dword v{vD}, v{vl4}, s[{SDBG}:{SDBG+3}], 0 offen sc1")
    g2n = [0]
    PFA = int(os.environ.get("PFA", "99")); PFB = int(os.environ.get("PFB", "99"))
    def w2pf(i):
        if i == 0 or PFA == 99:
            a(f"v_mul_u32_u24 v252, 896, v{vlane}")
        a(f"s_mul_i32 s{sT0}, s{sW}, 448")
        a(f"s_mul_i32 s{sT1}, s{sJ7}, 112")
        a(f"s_add_u32 s{sT0}, s{sT0}, s{sT1}")
        if i == 1: a(f"s_add_u32 s{sT0}, s{sT0}, 64")
        a(f"s_mul_i32 s{sT0}, s{sT0}, 896")
        a(f"s_lshl_b32 s{sT1}, s{sJm}, 7")
        a(f"s_add_u32 s{sT0}, s{sT0}, s{sT1}")
        if i == 1: a("s_mov_b32 exec_hi, 0xffff")
        vm.issue(f"buffer_load_dword v253, v252, s[{SW2}:{SW2+3}], s{sT0} offen", "PF")
        if i == 1: a("s_mov_b64 exec, -1")
    dma_second()
    if "twice" in G1X:
        a("s_mov_b32 s97, 0")
        a.label("G1_TW")
    if T2: ts.at(5)
    for c in range(14):
        p = (c - 1) % 2
        rd = reads(c) if "noreads" not in G1X else []
        mm = mfmas(p) if c >= 1 else [None]*8
        sm = csm(p) if c >= 1 else [None]*4
        if "nocs" in G1X: sm = [None]*4
        if "nomfma" in G1X: mm = [None]*8; sm = [None]*4
        nod = "nodma" in G1X
        dw = wdma(c + 3) if (c + 3 < 14 and not nod) else ([], [None, None], [])
        jx = c // 2 + 2
        dx = xdma(jx, c % 2) if (jx < 7 and not nod) else ([], [None, None], [])
        lg.wait("R")
        if mm[0]: a(mm[0])
        vm.wait([("W", c), ("X", c // 2)])
        a("s_barrier")
        if T2:
            if c <= 5: ts.at(c + 6)
        elif G1TS and ts:
            if c <= 10: ts.at(c + 1)
        elif c == 0 and ts: ts.at(1)
        R = [("r", x) for x in rd]
        def S_(l): return [("s", x) for x in l]
        def D_(x): return [("d",) + x] if x is not None else []
        def rr(i, j): return R[i:j]
        nop = [("s", "s_nop 0")] if c == 0 else []
        seq = [(mm[1], rr(0, 3) + S_(dw[0])),
               (mm[2], nop + D_(dw[1][0]) + rr(3, 5)),
               (mm[3], rr(5, 8)),
               (sm[0], rr(8, 9)),
               (sm[1], D_(dw[1][1])),
               (mm[4], S_(dx[0]) + rr(9, 12)),
               (mm[5], D_(dx[1][0]) + S_(dw[2][:2])),
               (mm[6], S_(dw[2][2:])),
               (mm[7], D_(dx[1][1])),
               (sm[2], S_(dx[2][:2])),
               (sm[3], S_(dx[2][2:]))]
        if fused and c >= 11:
            items = []
            for _ in range(g2.SCHED[c - 10]): items += g2.g2_dma_items(G2S, g2n[0]); g2n[0] += 1
            per = (len(items) + 5) // 6
            for i_ in range(6):
                m_, fl2 = seq[5 + i_]
                seq[5 + i_] = (m_, fl2 + items[per*i_: per*(i_+1)])
        for m, fl_ in seq:
            if m: a(m)
            for f in fl_:
                if f[0] == "r": lg.issue(f[1], "R")
                elif f[0] == "d": vm.issue(f[1], f[2])
                else: a(f[1])
        if c == STAT_STEP: stat_loads(lambda t: vm.issue(t, "ST"))
        if fused and c == PFA: w2pf(0)
        if fused and c == PFB: w2pf(1)
        if fused and c == 10:
            g2.g2_setup(a, G2S, vlane, vt, vt2, vt3)
            for _ in range(g2.SCHED[0]): g2.g2_dma(a, G2S, vm, g2n[0]); g2n[0] += 1
    lg.waitall()
    if G1TS and ts: ts.at(12); g1ts_end = True
    if "twice" in G1X:
        a("s_add_u32 s97, s97, 1")
        a("s_cmp_lt_u32 s97, 2")
        a("s_cbranch_scc0 G1_TWE")
        ts.lock = False
        ts.at(10)
        a("s_waitcnt vmcnt(0) lgkmcnt(0)")
        a("s_barrier")
        ts.at(8)
        vm.q = []
        a("s_mov_b32 s%d, s94" % sXO); a("s_mov_b32 s%d, s95" % sWO)
        dma_first(); dma_second()
        a("s_branch G1_TW")
        a.label("G1_TWE")
        ts.at(9)
        ts.flush(SWS, vt, vt2)
        a("s_endpgm")
    if fused:
        a("s_barrier")
        if PFA == 14: w2pf(0)
        if PFB == 14: w2pf(1)
        for _ in range(g2.SCHED[4]): g2.g2_dma(a, G2S, vm, g2n[0]); g2n[0] += 1
    for m in csm(1) + mfmas(1): a(m)
    if G1TS and ts: ts.at(13); ts.lock = True
    if ts: ts.at(2)
    FA = [fa[0][0][0], fa[0][0][1]]
    t0 = fb[0][0][0]; t1 = t0 + 1
    a(f"s_mov_b32 s{sM}, -1"); a(f"s_mov_b32 s{sM+1}, 0")
    if fused:
        vm.wait(["ST", "B1"])
        lck = a.newlabel("G1_CK"); lok = a.newlabel("G1_OK")
        a(f"s_mov_b32 s{sCNT}, {POLL_MAX}")
        a.label(lck)
        a(f"s_lshl_b32 s{sT0}, s{sLB}, 2")
        a(f"s_lshl_b32 s{sT1}, s{sWL}, 1")
        a(f"s_add_u32 s{sT0}, s{sT0}, s{sT1}")
        a(f"s_add_u32 s{sT1}, s{sT0}, 1")
        a(f"v_readlane_b32 s{sNONCE}, v{vD}, 0")
        a(f"v_readlane_b32 s{sTG0}, v{vD}, s{sT0}")
        a(f"v_readlane_b32 s{sTG1}, v{vD}, s{sT1}")
        a(f"v_xor_b32 v{t0}, s{sTG0}, v{ST[0]+3}")
        a(f"v_xor_b32 v{t1}, s{sTG0}, v{ST[0]+7}")
        a(f"v_or_b32 v{t0}, v{t0}, v{t1}")
        a(f"v_xor_b32 v{t1}, s{sTG1}, v{ST[1]+3}")
        a(f"v_or_b32 v{t0}, v{t0}, v{t1}")
        a(f"v_xor_b32 v{t1}, s{sTG1}, v{ST[1]+7}")
        a(f"v_or_b32 v{t0}, v{t0}, v{t1}")
        a(f"v_cmp_ne_u32 vcc, 0, v{t0}")
        a(f"s_and_b32 s{sT0}, s{sTG0}, s{sTG1}")
        a(f"s_and_b32 s{sT0}, s{sT0}, s{sNONCE}")
        a(f"s_and_b32 s{sT0}, s{sT0}, 1")
        a(f"s_xor_b32 s{sT0}, s{sT0}, 1")
        a(f"s_or_b32 s{sT0}, s{sT0}, vcc_lo")
        a(f"s_or_b32 s{sT0}, s{sT0}, vcc_hi")
        a(f"s_cmp_eq_u32 s{sT0}, 0")
        a(f"s_cbranch_scc1 {lok}")
        a(f"s_sub_u32 s{sCNT}, s{sCNT}, 1")
        a(f"s_cbranch_scc1 {lok}")
        stat_loads(a)
        a("s_waitcnt vmcnt(0)")
        a(f"s_branch {lck}")
        a.label(lok)
        a(f"v_mov_b32 v{ST[0]+3}, 0"); a(f"v_mov_b32 v{ST[1]+3}, 0")
    else:
        a("s_waitcnt vmcnt(0)")
    if ts: ts.at(3)
    for ft in range(2):
        c = cs[ft]; d = FA[ft]
        a(f"v_permlane16_swap_b32 v{c}, v{c+1}")
        a(f"v_cvt_pk_bf16_f32 v{d}, v{c}, v{c}")
        a(f"v_and_b32 v{t1}, 0xffff0000, v{d}")
        a(f"v_sub_f32 v{t1}, v{c}, v{t1}")
        a(f"v_and_b32 v{d+1}, 0xffff, v{d}")
        a(f"v_cvt_pk_bf16_f32 v{d}, v{c}, v{t1}")
        a(f"v_lshl_or_b32 v{d+1}, v{vb1+ft}, 16, v{d+1}")
        a(f"v_mov_b32 v{d+2}, v{vb1+ft}")
        a(f"v_mov_b32 v{d+3}, 0")
        for k in range(3):
            a(f"v_cndmask_b32 v{d+k}, 0, v{d+k}, s[{sM}:{sM+1}]")
    for ft in range(2):
        for lt in range(2):
            C = acc[ft][lt]
            a(f"v_mfma_f32_32x32x16_bf16 v[{C}:{C+15}], v[{FA[ft]}:{FA[ft]+3}], v[{ST[lt]}:{ST[lt]+3}], v[{C}:{C+15}]")
    vho = V.get()
    a(f"v_lshlrev_b32 v{vho}, 4, v{vlane}")
    a(f"s_lshl_b32 s{sT0}, s{sLB}, 2")
    a(f"s_lshl_b32 s{sT1}, s{sWL}, 1")
    a(f"s_add_u32 s{sT0}, s{sT0}, s{sT1}")
    a(f"s_mul_i32 s{sT0}, s{sT0}, 112")
    a(f"s_lshl_b32 s{sT1}, s{sFB}, 3")
    a(f"s_add_u32 s{sT0}, s{sT0}, s{sT1}")
    a(f"s_lshl_b32 s{sT1}, s{sWF}, 2")
    a(f"s_add_u32 s{sT0}, s{sT0}, s{sT1}")
    a(f"s_lshl_b32 s{sT0}, s{sT0}, 10")
    a(f"s_add_u32 s{sT0}, s{sT0}, {WS_HF}")
    a(f"s_add_u32 s{sT1}, s{sT0}, {112*1024}")
    TA = [fa[1][0][0], fb[1][0][0]]
    TB = [fb[0][0][0], fb[0][1][0]]
    blk = 0
    for lt in range(2):
        K = ST[lt] + 4
        a(f"v_mov_b32 v{K-2}, v{K+1}")
        for ft in range(2):
            for kp in range(2):
                A0 = acc[ft][lt] + 8*kp
                T = TA[blk % 2]; O = TB[blk % 2]
                for k in range(4):
                    a(f"v_pk_mul_f32 v[{T+2*k}:{T+2*k+1}], v[{A0+2*k}:{A0+2*k+1}], v[{A0+2*k}:{A0+2*k+1}]")
                for k in range(4):
                    a(f"v_pk_fma_f32 v[{T+2*k}:{T+2*k+1}], v[{T+2*k}:{T+2*k+1}], v[{K-2}:{K-1}], v[{K}:{K+1}] op_sel_hi:[1,0,0]")
                for k in range(4):
                    a(f"v_pk_mul_f32 v[{T+2*k}:{T+2*k+1}], v[{T+2*k}:{T+2*k+1}], v[{A0+2*k}:{A0+2*k+1}]")
                for k in range(8):
                    a(f"v_exp_f32 v{T+k}, v{T+k}")
                for k in range(4):
                    a(f"v_pk_fma_f32 v[{T+2*k}:{T+2*k+1}], v[{T+2*k}:{T+2*k+1}], v[{K+2}:{K+3}], v[{K+2}:{K+3}] op_sel:[0,0,0] op_sel_hi:[1,0,0]")
                for k in range(8):
                    a(f"v_rcp_f32 v{T+k}, v{T+k}")
                for k in range(4):
                    a(f"v_pk_mul_f32 v[{T+2*k}:{T+2*k+1}], v[{T+2*k}:{T+2*k+1}], v[{A0+2*k}:{A0+2*k+1}]")
                for k in range(4):
                    a(f"v_cvt_pk_bf16_f32 v{O+k}, v{T+2*k}, v{T+2*k+1}")
                so = sT0 if lt == 0 else sT1
                txt = f"buffer_store_dwordx4 v[{O}:{O+3}], v{vho}, s[{SWS}:{SWS+3}], s{so} offen offset:{(2*ft+kp)*1024} sc1"
                if fused: vm.issue(txt, "H")
                else: a(txt)
                blk += 1
                if fused and blk == 4 and PFB == 15:
                    a(f"s_mov_b32 s{sT2}, s{sT0}"); a(f"s_mov_b32 s{sT3}, s{sT1}")
                    w2pf(1)
                    a(f"s_mov_b32 s{sT0}, s{sT2}"); a(f"s_mov_b32 s{sT1}, s{sT3}")
                if fused and blk == 4:
                    for _ in range(g2.SCHED[5]): g2.g2_dma(a, G2S, vm, g2n[0]); g2n[0] += 1
    if ts: ts.at(4)
    if fused: return V, vm
    return V
```

```python
from common import *
from track import Cnt, both
import math

U_SZ = 17408
L_U = 0
L_KR = 2 * U_SZ
KR_SZ = 4608
L_T32 = L_KR + 2 * KR_SZ
T32_SZ = 3072
L_FR = L_T32 + 2 * T32_SZ
FR_SZ = 4352
L_END = L_FR + 4 * FR_SZ
assert L_END <= 81920
LOG2E = 1.4426950408889634

def cmul(a, d, z, w, conjw=False):
    a(f"v_pk_mul_f32 v[{d}:{d+1}], v[{z}:{z+1}], v[{w}:{w+1}] op_sel:[0,0] op_sel_hi:[1,0]")
    a(f"v_pk_fma_f32 v[{d}:{d+1}], v[{z}:{z+1}], v[{w}:{w+1}], v[{d}:{d+1}] op_sel:[1,1,0] op_sel_hi:[0,1,1] neg_lo:[0,1,0]")

import os
PKPASS = os.environ.get("PKPASS", "0")
USE_PK = [True]
SPSEQ = [None if x == "-" else int(x) for x in os.environ.get("SPSEQ", "-,-,-,-").split(",")]
def cmul2(a, items):
    if not USE_PK[0]:
        for d, z, w in items:
            assert d != z and d != w
            a(f"v_mul_f32 v{d}, v{z}, v{w}")
            a(f"v_mul_f32 v{d+1}, v{z+1}, v{w}")
        for d, z, w in items:
            a(f"v_fma_f32 v{d}, -v{z+1}, v{w+1}, v{d}")
            a(f"v_fma_f32 v{d+1}, v{z}, v{w+1}, v{d+1}")
        return
    for d, z, w in items:
        assert d != z and d != w
        a(f"v_pk_mul_f32 v[{d}:{d+1}], v[{z}:{z+1}], v[{w}:{w+1}] op_sel:[0,0] op_sel_hi:[1,0]")
    for d, z, w in items:
        a(f"v_pk_fma_f32 v[{d}:{d+1}], v[{z}:{z+1}], v[{w}:{w+1}], v[{d}:{d+1}] op_sel:[1,1,0] op_sel_hi:[0,1,1] neg_lo:[0,1,0]")

def gen_ssm(a, sP, hooks=None, S=None, ts=None):
    hooks = hooks or {}
    V = VAlloc(1, 246)
    vm = Cnt(a, "vmcnt", 63); lg = Cnt(a, "lgkmcnt", 15)
    SLAR, SAIM, SCRE, SCIM, SWS = 4, 8, 12, 16, 20
    sLDT, sDSK = 24, 26
    sW, sCH, sHW, sD, sT0, sT1, sT2, sDT, sDS, sUB = 32, 33, 34, 35, 36, 37, 38, 39, 40, 41
    for s, k in ((SLAR, 'lar'), (SAIM, 'aim'), (SCRE, 'cre'), (SCIM, 'cim'), (SWS, 'ws'), (sLDT, 'ldt'), (sDSK, 'dsk')):
        a(f"s_load_dwordx2 s[{s}:{s+1}], s[0:1], {KA[k]}")
    if "pre" in hooks: hooks["pre"](a)
    if SPSEQ[0] is not None: a(f"s_setprio {SPSEQ[0]}")
    vlane = V.get(); vt = V.get(); vt2 = V.get(); vt3 = V.get()
    a(f"v_and_b32 v{vlane}, 63, v0")
    a(f"v_lshrrev_b32 v{vt}, 6, v0")
    a(f"v_readfirstlane_b32 s{sW}, v{vt}")
    a(f"s_lshr_b32 s{sCH}, s{sW}, 1")
    a(f"s_and_b32 s{sHW}, s{sW}, 1")
    a(f"s_lshl_b32 s{sD}, s{sP}, 1")
    a(f"s_add_u32 s{sD}, s{sD}, s{sCH}")
    vpo = V.get()
    a(f"v_lshlrev_b32 v{vpo}, 2, v{vlane}")
    a(f"s_lshl_b32 s{sT0}, s{sD}, 9")
    a(f"s_lshl_b32 s{sT1}, s{sHW}, 8")
    a(f"s_add_u32 s{sT0}, s{sT0}, s{sT1}")
    a(f"s_lshl_b32 s{sT2}, s{sP}, 2")
    a("s_waitcnt lgkmcnt(0)")
    for s in (SLAR, SAIM, SCRE, SCIM): srd_fin(a, s, D * N * 2)
    srd_fin(a, SWS, WS_SIZE)
    if "post" in hooks: hooks["post"](a)
    PR = V.get(4)
    for i, s in enumerate((SLAR, SAIM, SCRE, SCIM)):
        vm.issue(f"buffer_load_dword v{PR+i}, v{vpo}, s[{s}:{s+3}], s{sT0} offen", "P")
    a(f"s_load_dword s{sDT}, s[{sLDT}:{sLDT+1}], s{sT2}")
    a(f"s_load_dword s{sDS}, s[{sDSK}:{sDSK+1}], s{sT2}")
    Z = V.get(2, 2)
    a(f"v_mov_b32 v{Z}, 0"); a(f"v_mov_b32 v{Z+1}, 0")
    a(f"v_lshlrev_b32 v{vt2}, 3, v{vlane}")
    a(f"s_mul_i32 s{sT0}, s{sCH}, {KR_SZ}")
    a(f"v_add_u32 v{vt2}, s{sT0}, v{vt2}")
    a(f"ds_write_b64 v{vt2}, v[{Z}:{Z+1}] offset:{L_KR + 4096}")
    GI = V.get(16)
    vtau = V.get(); vf = V.get(2, 2)
    a(f"s_lshl_b32 s{sT0}, s{sHW}, 6")
    a(f"v_add_u32 v{vtau}, s{sT0}, v{vlane}")
    a(f"v_lshlrev_b32 v{vt}, 1, v{vtau}")
    a(f"v_sub_u32 v{vt}, 2047, v{vt}")
    a(f"v_cvt_f32_u32 v{vf}, v{vt}")
    a(f"v_add_f32 v{vf+1}, -1.0, v{vf}")
    a(f"s_mul_i32 s{sT0}, s{sCH}, {T32_SZ}")
    a(f"s_add_u32 s{sT0}, s{sT0}, {L_T32}")
    a(f"s_sub_u32 s{sT1}, s{sT0}, {(0x4300 - 128) * 4}")
    C256 = V.get(2, 2)
    a(f"v_mov_b32 v{C256}, {fl(-256.0)}"); a(f"v_mov_b32 v{C256+1}, {fl(-256.0)}")
    for k in range(7):
        a(f"v_cvt_pk_bf16_f32 v{vt2}, v{vf}, v{vf+1}")
        a(f"v_and_b32 v{vt3}, 0xffff, v{vt2}")
        a(f"v_lshl_add_u32 v{GI+2*k}, v{vt3}, 2, s{sT1}")
        a(f"v_lshrrev_b32 v{vt3}, 16, v{vt2}")
        a(f"v_lshl_add_u32 v{GI+2*k+1}, v{vt3}, 2, s{sT1}")
        if k < 6: a(f"v_pk_add_f32 v[{vf}:{vf+1}], v[{vf}:{vf+1}], v[{C256}:{C256+1}]")
    a(f"v_subrev_u32 v{vt}, {7*256}, v{vt}")
    a(f"v_lshl_add_u32 v{GI+14}, v{vt}, 2, s{sT0}")
    a(f"v_add_u32 v{GI+15}, -4, v{GI+14}")
    vfw = V.get(); vfr = V.get()
    a(f"s_mul_i32 s{sT0}, s{sW}, {FR_SZ}")
    a(f"s_add_u32 s{sT0}, s{sT0}, {L_FR}")
    a(f"v_lshrrev_b32 v{vt}, 4, v{vlane}")
    a(f"v_mul_u32_u24 v{vfw}, 1088, v{vt}")
    a(f"v_bfe_u32 v{vt2}, v{vlane}, 2, 2")
    a(f"v_mul_u32_u24 v{vt2}, 272, v{vt2}")
    a(f"v_add_u32 v{vfw}, v{vfw}, v{vt2}")
    a(f"v_and_b32 v{vt2}, 3, v{vlane}")
    a(f"v_lshl_add_u32 v{vfw}, v{vt2}, 2, v{vfw}")
    a(f"v_add_u32 v{vfw}, s{sT0}, v{vfw}")
    a(f"v_mul_u32_u24 v{vfr}, 272, v{vt}")
    a(f"v_and_b32 v{vt2}, 15, v{vlane}")
    a(f"v_lshl_add_u32 v{vfr}, v{vt2}, 4, v{vfr}")
    a(f"v_add_u32 v{vfr}, s{sT0}, v{vfr}")
    vsa = V.get(); vsb0 = V.get(); vsb1 = V.get(); vsc = V.get()
    a(f"s_mul_i32 s{sT0}, s{sCH}, {T32_SZ}")
    a(f"s_add_u32 s{sT0}, s{sT0}, {L_T32}")
    a(f"v_lshrrev_b32 v{vt3}, 1, v{vt}")
    a(f"v_lshlrev_b32 v{vsa}, 7, v{vt3}")
    a(f"v_lshl_add_u32 v{vsa}, v{vt2}, 3, v{vsa}")
    a(f"v_and_b32 v{vsb0}, 1, v{vt}")
    a(f"v_lshl_add_u32 v{vsa}, v{vsb0}, 2, v{vsa}")
    a(f"v_lshl_add_u32 v{vsa}, v{vsa}, 2, s{sT0}")
    a(f"v_lshlrev_b32 v{vsb0}, 1, v{vt2}")
    a(f"v_lshlrev_b32 v{vsb1}, 2, v{vt2}")
    a(f"v_cmp_gt_u32 vcc, 2, v{vt}")
    a(f"v_cndmask_b32 v{vsb0}, v{vsb0}, v{vsb1}, vcc")
    a(f"v_lshl_add_u32 v{vsb0}, v{vt}, 6, v{vsb0}")
    a(f"v_add_u32 v{vsb0}, 256, v{vsb0}")
    a(f"v_mov_b32 v{vsb1}, 32")
    a(f"v_cndmask_b32 v{vsb1}, v{vsb1}, 2, vcc")
    a(f"v_add_u32 v{vsb1}, v{vsb1}, v{vsb0}")
    a(f"v_lshl_add_u32 v{vsb0}, v{vsb0}, 2, s{sT0}")
    a(f"v_lshl_add_u32 v{vsb1}, v{vsb1}, 2, s{sT0}")
    a(f"v_lshl_add_u32 v{vsc}, v{vt}, 6, v{vt2}")
    a(f"v_add_u32 v{vsc}, 512, v{vsc}")
    a(f"v_lshl_add_u32 v{vsc}, v{vsc}, 2, s{sT0}")
    vdt = V.get(); vds = V.get()
    a("s_waitcnt lgkmcnt(0)")
    a(f"s_lshl_b32 s{sT0}, s{sCH}, 4")
    a(f"s_lshr_b32 s{sDT}, s{sDT}, s{sT0}")
    a(f"s_lshl_b32 s{sDT}, s{sDT}, 16")
    a(f"s_lshr_b32 s{sDS}, s{sDS}, s{sT0}")
    a(f"s_lshl_b32 s{sDS}, s{sDS}, 16")
    a(f"v_mov_b32 v{vdt}, {fl(LOG2E)}")
    a(f"v_mul_f32 v{vdt}, s{sDT}, v{vdt}")
    a(f"v_exp_f32 v{vdt}, v{vdt}")
    bf16r(a, vdt, vdt)
    a(f"s_cmp_eq_u32 s{sHW}, 0")
    a(f"s_cselect_b32 s{sDS}, s{sDS}, 0")
    a(f"v_mov_b32 v{vds}, s{sDS}")
    a(f"v_cmp_eq_u32 vcc, 0, v{vlane}")
    a(f"v_cndmask_b32 v{vds}, 0, v{vds}, vcc")
    mark = V.mark()
    ACC = [V.get(4, 4) for _ in range(3)]
    for t in range(3):
        for i in range(4): a(f"v_mov_b32 v{ACC[t]+i}, 0")
    LF = V.get(16, 4); HF = [V.get(16, 4), V.get(16, 4)]
    E1, E2, E4, E8, E16, E128, E256 = [V.get(2, 2) for _ in range(7)]
    P = [V.get(2, 2) for _ in range(17)]
    W = [V.get(2, 2) for _ in range(8)]
    CV = V.get(16)
    x0 = V.get(); x1 = V.get(); x2 = V.get(); x3 = V.get(); xr = V.get(); xi = V.get()
    if ts: ts.at(1)
    vm.wait("P")
    if ts: ts.at(2)
    def expk(dst, k, conj):
        if k == 1:
            a(f"v_exp_f32 v{x0}, v{xr}")
            a(f"v_fract_f32 v{x1}, v{xi}")
        else:
            a(f"v_mul_f32 v{x0}, {fl(float(k))}, v{xr}")
            a(f"v_mul_f32 v{x1}, {fl(float(k))}, v{xi}")
            a(f"v_exp_f32 v{x0}, v{x0}")
            a(f"v_fract_f32 v{x1}, v{x1}")
        a(f"v_cos_f32 v{dst}, v{x1}")
        a(f"v_sin_f32 v{dst+1}, v{x1}")
        a(f"v_mul_f32 v{dst}, v{x0}, v{dst}")
        if conj: a(f"v_mul_f32 v{dst+1}, -v{x0}, v{dst+1}")
        else: a(f"v_mul_f32 v{dst+1}, v{x0}, v{dst+1}")
    def wr_rows(vals, n):
        i = 0
        while i < n:
            if i + 1 < n:
                lg.issue(f"ds_write2_b32 v{vfw}, v{vals[i]}, v{vals[i+1]} offset0:{4*i} offset1:{4*i+4}", "W"); i += 2
            else:
                lg.issue(f"ds_write_b32 v{vfw}, v{vals[i]} offset:{16*i}", "W"); i += 1
    def rd_frags(dst, tag):
        for s in range(4):
            lg.issue(f"ds_read_b128 v[{dst+4*s}:{dst+4*s+3}], v{vfr} offset:{1088*s}", tag)
    def mf(t, H):
        for s in range(4):
            a(f"v_mfma_f32_16x16x32_bf16 v[{ACC[t]}:{ACC[t]+3}], v[{H+4*s}:{H+4*s+3}], v[{LF+4*s}:{LF+4*s+3}], v[{ACC[t]}:{ACC[t]+3}]")
    def cv(dst, z): a(f"v_cvt_pk_bf16_f32 v{dst}, v{z}, v{z+1}")
    pend = None
    for ps in range(2):
        USE_PK[0] = str(ps) in PKPASS
        if ps == 1 and SPSEQ[1] is not None: a(f"s_setprio {SPSEQ[1]}")
        def unp(dst, src):
            if ps == 0: a(f"v_lshlrev_b32 v{dst}, 16, v{src}")
            else: a(f"v_and_b32 v{dst}, 0xffff0000, v{src}")
        unp(x0, PR + 0)
        a(f"v_mul_f32 v{x0}, {fl(LOG2E)}, v{x0}")
        a(f"v_exp_f32 v{x0}, v{x0}")
        unp(x1, PR + 1)
        unp(x2, PR + 2)
        unp(x3, PR + 3)
        bf16r(a, x0, x0)
        a(f"v_mul_f32 v{xr}, v{x0}, v{vdt}")
        a(f"v_mul_f32 v{xi}, v{x1}, v{vdt}")
        a(f"v_mul_f32 v{xr}, {fl(-LOG2E)}, v{xr}")
        a(f"v_mul_f32 v{xi}, {fl(1.0/(2*math.pi))}, v{xi}")
        a(f"v_mul_f32 v{x2}, v{x2}, v{vdt}")
        a(f"v_mul_f32 v{x3}, v{x3}, v{vdt}")
        a(f"v_add_f32 v{P[0]}, v{x2}, v{x2}")
        a(f"v_add_f32 v{P[0]+1}, v{x3}, v{x3}")
        expk(E8, 8, True)
        expk(E128, 128, False)
        expk(E1, 1, False)
        if pend is not None:
            lg.wait(pend[2]); mf(pend[0], pend[1]); pend = None
        cmul2(a, [(E16, E8, E8), (E256, E128, E128), (E2, E1, E1), (P[1], P[0], E128)])
        if ts and ps == 0: ts.at(9)
        a(f"v_mov_b32 v{CV}, 0x3f80")
        cv(CV + 1, E8); cv(CV + 2, E16)
        ev, od = E16, E8
        wi = 0
        cur_e, cur_o = E16, E8
        first = True
        for k in range(1, 8):
            no = W[wi % 4]; ne = W[(wi + 1) % 4]; wi += 2
            items = [(no, cur_o, E16)]
            if 2*k + 2 <= 14: items.append((ne, cur_e, E16))
            if k == 1: items.append((E4, E2, E2))
            items.append((P[2*k], P[2*k-2], E256)); items.append((P[2*k+1], P[2*k-1], E256))
            cmul2(a, items)
            cv(CV + 2*k + 1, no)
            if 2*k + 2 <= 14: cv(CV + 2*k + 2, ne)
            cur_o, cur_e = no, ne
        cmul2(a, [(P[16], P[14], E256)])
        wr_rows([CV + i for i in range(16)], 16)
        rd_frags(LF, "L")
        if "kpt" in hooks: hooks["kpt"](a, V, vm, lg, 4*ps + 0)
        if ts and ps == 0: ts.at(10)
        cv(CV + 0, P[0]); cv(CV + 8, P[1])
        c0, c1 = P[0], P[1]
        for b in range(1, 8):
            n0 = W[(2*b) % 4]; n1 = W[(2*b + 1) % 4]
            cmul2(a, [(n0, c0, E1), (n1, c1, E1)])
            cv(CV + b, n0); cv(CV + 8 + b, n1)
            c0, c1 = n0, n1
        wr_rows([CV + i for i in range(16)], 16)
        rd_frags(HF[0], "A")
        if "kpt" in hooks: hooks["kpt"](a, V, vm, lg, 4*ps + 1)
        cv(CV + 0, P[2]); cv(CV + 4, P[3])
        c0, c1 = P[2], P[3]
        for b in range(1, 4):
            n0 = W[(2*b) % 4]; n1 = W[(2*b + 1) % 4]
            cmul2(a, [(n0, c0, E2), (n1, c1, E2)])
            cv(CV + b, n0); cv(CV + 4 + b, n1)
            c0, c1 = n0, n1
        cmul2(a, [(W[4+i], P[4+i], E4) for i in range(4)])
        for i in range(4):
            cv(CV + 8 + 2*i, P[4+i]); cv(CV + 9 + 2*i, W[4+i])
        wr_rows([CV + i for i in range(16)], 16)
        lg.wait("A"); mf(0, HF[0])
        rd_frags(HF[1], "B")
        if "kpt" in hooks: hooks["kpt"](a, V, vm, lg, 4*ps + 2)
        for i in range(9): cv(CV + i, P[8+i])
        wr_rows([CV + i for i in range(9)], 9)
        lg.wait("B"); mf(1, HF[1])
        rd_frags(HF[0], "C")
        pend = (2, HF[0], "C")
        if ts and ps == 0: ts.at(11)
        if ps == 0 and "mid_kgen" in hooks: hooks["mid_kgen"](a, V, vm, lg)
        if "kpt" in hooks: hooks["kpt"](a, V, vm, lg, 4*ps + 3)
    lg.wait(pend[2]); mf(pend[0], pend[1])
    if SPSEQ[2] is not None: a(f"s_setprio {SPSEQ[2]}")
    a(f"v_add_f32 v{ACC[0]}, v{ACC[0]}, v{vds}")
    vxw = x0; vxr = x1
    XR = W[0]
    assert W[1] == W[0] + 2 and W[2] == W[0] + 4
    XR4 = CV
    XR4 = (CV + 3) // 4 * 4
    a(f"s_mul_i32 s{sT0}, s{sW}, {FR_SZ}")
    a(f"s_add_u32 s{sT0}, s{sT0}, {L_FR}")
    a(f"v_lshl_add_u32 v{vxw}, v{vlane}, 4, s{sT0}")
    a(f"s_xor_b32 s{sT1}, s{sW}, 1")
    a(f"s_mul_i32 s{sT0}, s{sT1}, {FR_SZ}")
    a(f"s_add_u32 s{sT0}, s{sT0}, {L_FR}")
    a(f"v_lshl_add_u32 v{vxr}, v{vlane}, 4, s{sT0}")
    lg.waitall()
    if ts: ts.at(12)
    lx1 = a.newlabel("SSM_X1"); lxe = a.newlabel("SSM_XE")
    a(f"s_cmp_eq_u32 s{sHW}, 1")
    a(f"s_cbranch_scc1 {lx1}")
    for hw in range(2):
        if hw == 1: a.label(lx1)
        send4 = ACC[2] if hw == 0 else ACC[0]
        send2 = ACC[1] + 2 if hw == 0 else ACC[1]
        keep4 = ACC[0] if hw == 0 else ACC[2]
        keep2 = ACC[1] if hw == 0 else ACC[1] + 2
        a(f"ds_write_b128 v{vxw}, v[{send4}:{send4+3}]")
        a(f"v_mov_b32 v{XR4+4}, v{send2}"); a(f"v_mov_b32 v{XR4+5}, v{send2+1}")
        a(f"ds_write_b128 v{vxw}, v[{XR4+4}:{XR4+7}] offset:1024")
        a("s_waitcnt lgkmcnt(0)")
        a("s_barrier")
        a(f"ds_read_b128 v[{XR4}:{XR4+3}], v{vxr}")
        a(f"ds_read_b128 v[{XR4+4}:{XR4+7}], v{vxr} offset:1024")
        a("s_waitcnt lgkmcnt(0)")
        for i in range(4): a(f"v_add_f32 v{keep4+i}, v{keep4+i}, v{XR4+i}")
        for i in range(2): a(f"v_add_f32 v{keep2+i}, v{keep2+i}, v{XR4+4+i}")
        if hw == 0:
            a(f"ds_write_b128 v{vsa}, v[{keep4}:{keep4+3}]")
            a(f"ds_write_b64 v{vsb0}, v[{keep2}:{keep2+1}]")
            a(f"s_branch {lxe}")
        else:
            a(f"ds_write_b64 v{vsb1}, v[{keep2}:{keep2+1}]")
            a(f"ds_write2_b32 v{vsc}, v{keep4}, v{keep4+1} offset0:0 offset1:16")
            a(f"ds_write2_b32 v{vsc}, v{keep4+2}, v{keep4+3} offset0:32 offset1:48")
    a.label(lxe)
    lg.cleared()
    for _ in range(3): lg.note("TS")
    if ts: ts.at(13)
    lg.waitall()
    a("s_barrier")
    G = V.get(16)
    for i in range(16): lg.issue(f"ds_read_b32 v{G+i}, v{GI+i}", ("G", i // 2))
    vkw = V.get()
    a(f"s_mul_i32 s{sT0}, s{sCH}, {KR_SZ}")
    a(f"s_add_u32 s{sT0}, s{sT0}, {L_KR}")
    a(f"v_lshl_add_u32 v{vkw}, v{vtau}, 2, s{sT0}")
    for k in range(8):
        lg.wait(("G", k))
        a(f"v_cvt_pk_bf16_f32 v{G+2*k}, v{G+2*k}, v{G+2*k+1}")
        if k % 2 == 1:
            lg.issue(f"ds_write2st64_b32 v{vkw}, v{G+2*k-2}, v{G+2*k} offset0:{2*(k-1)} offset1:{2*k}", "KW")
    lg.waitall()
    if SPSEQ[3] is not None: a(f"s_setprio {SPSEQ[3]}")
    if "wait_ln" in hooks: hooks["wait_ln"](a, V, vm, lg)
    vuo = V.get()
    a(f"v_lshrrev_b32 v{vt}, 2, v{vlane}")
    a(f"v_lshlrev_b32 v{vuo}, 4, v{vt}")
    a(f"v_and_b32 v{vt}, 3, v{vlane}")
    a(f"v_lshl_add_u32 v{vuo}, v{vt}, 1, v{vuo}")
    a(f"s_mul_i32 s{sUB}, s{sCH}, {U_SZ}")
    a(f"s_mul_i32 s{sT0}, s{sD}, {XNT_PITCH}")
    a(f"s_mul_i32 s{sT1}, s{sHW}, {9*256}")
    a(f"s_add_u32 s{sT0}, s{sT0}, s{sT1}")
    a(f"s_add_u32 s{sT0}, s{sT0}, {WS_XNT + 98}")
    a(f"s_mul_i32 s{sT1}, s{sHW}, {9*1024}")
    a(f"s_add_u32 s{sT1}, s{sT1}, s{sUB}")
    for k in range(9):
        if k == 8:
            lsk = a.newlabel("SSM_SK")
            a(f"s_cmp_eq_u32 s{sHW}, 1")
            a(f"s_cbranch_scc1 {lsk}")
        a(f"s_add_u32 m0, s{sT1}, {1024*k}")
        a(f"s_add_u32 s{sT2}, s{sT0}, {256*k}")
        a(f"buffer_load_dwordx4 v{vuo}, s[{SWS}:{SWS+3}], s{sT2} offen sc1 lds")
        if k == 8: a.label(lsk)
    V.release(mark)
    vA1 = V.get(); vA2 = V.get(); vB = V.get()
    a(f"v_and_b32 v{vt}, 15, v{vlane}")
    a(f"v_lshrrev_b32 v{vt2}, 4, v{vlane}")
    a(f"v_lshl_add_u32 v{vt3}, v{vt2}, 3, v{vt}")
    a(f"v_lshrrev_b32 v{vA1}, 3, v{vt3}")
    a(f"v_lshlrev_b32 v{vA1}, 6, v{vA1}")
    a(f"v_and_b32 v{vA2}, 3, v{vt3}")
    a(f"v_lshl_add_u32 v{vA1}, v{vA2}, 4, v{vA1}")
    a(f"s_lshl_b32 s{sT0}, s{sHW}, 10")
    a(f"s_add_u32 s{sT0}, s{sT0}, s{sUB}")
    a(f"v_add_u32 v{vA1}, s{sT0}, v{vA1}")
    a(f"v_bfe_u32 v{vt3}, v{vt3}, 2, 1")
    a(f"v_mul_u32_u24 v{vA2}, 56, v{vt3}")
    a(f"v_lshl_add_u32 v{vA1}, v{vt3}, 3, v{vA1}")
    a(f"v_mul_u32_u24 v{vA2}, 48, v{vt3}")
    a(f"v_add3_u32 v{vA2}, v{vA2}, v{vA1}, 8")
    a(f"s_mul_i32 s{sT0}, s{sCH}, {KR_SZ}")
    a(f"s_lshl_b32 s{sT1}, s{sHW}, 8")
    a(f"s_add_u32 s{sT0}, s{sT0}, s{sT1}")
    a(f"s_add_u32 s{sT0}, s{sT0}, {L_KR + 480}")
    a(f"v_lshlrev_b32 v{vt}, 5, v{vt}")
    a(f"v_sub_u32 v{vB}, s{sT0}, v{vt}")
    a(f"v_lshl_add_u32 v{vB}, v{vt2}, 4, v{vB}")
    YA = [V.get(4, 4) for _ in range(8)]
    AF = [[V.get(4, 4) for _ in range(8)] for _ in range(2)]
    BFr = [[V.get(4, 4) for _ in range(8)] for _ in range(2)]
    for c in range(8):
        for i in range(4): a(f"v_mov_b32 v{YA[c]+i}, 0")
    a("s_waitcnt vmcnt(0) lgkmcnt(0)"); vm.cleared(); lg.cleared()
    if ts: ts.at(5)
    a("s_barrier")
    def reads(ph):
        st = ph % 2; l = []
        for T in range(8):
            b = BFr[st][T]
            l.append(f"ds_read_b128 v[{b}:{b+3}], v{vB} offset:{512*T + 64*ph}")
            f = AF[st][T]
            l.append(f"ds_read_b64 v[{f}:{f+1}], v{vA1} offset:{2048*T + 256*ph}")
            l.append(f"ds_read_b64 v[{f+2}:{f+3}], v{vA2} offset:{2048*T + 256*ph}")
        return l
    def mfmas(ph):
        st = ph % 2; l = []
        for T in range(8):
            for c in range(T, 8):
                bp = T - c + 7
                l.append(f"v_mfma_f32_16x16x32_bf16 v[{YA[c]}:{YA[c]+3}], v[{AF[st][T]}:{AF[st][T]+3}], v[{BFr[st][bp]}:{BFr[st][bp]+3}], v[{YA[c]}:{YA[c]+3}]")
        return l
    for l in reads(0): a(l)
    for ph in range(4):
        a("s_waitcnt lgkmcnt(0)")
        mm = mfmas(ph)
        rd = reads(ph + 1) if ph < 3 else []
        k = 0
        for i, m in enumerate(mm):
            a(m)
            if k < len(rd) and i < 30:
                a(rd[k]); k += 1
        while k < len(rd): a(rd[k]); k += 1
    if ts: ts.at(6)
    if "nonce" in hooks: hooks["nonce"](a, V, vm, lg)
    vrw = V.get(); vrr = V.get(); vso = V.get()
    a(f"s_mul_i32 s{sT0}, s{sW}, {FR_SZ}")
    a(f"s_add_u32 s{sT0}, s{sT0}, {L_FR}")
    a(f"v_lshl_add_u32 v{vrw}, v{vlane}, 4, s{sT0}")
    a(f"s_xor_b32 s{sT1}, s{sW}, 1")
    a(f"s_mul_i32 s{sT0}, s{sT1}, {FR_SZ}")
    a(f"s_add_u32 s{sT0}, s{sT0}, {L_FR}")
    a(f"v_lshl_add_u32 v{vrr}, v{vlane}, 4, s{sT0}")
    a(f"v_and_b32 v{vt}, 15, v{vlane}")
    a(f"v_lshlrev_b32 v{vso}, 5, v{vt}")
    a(f"v_bfe_u32 v{vt}, v{vlane}, 4, 1")
    a(f"v_lshl_add_u32 v{vso}, v{vt}, 9, v{vso}")
    a(f"v_lshrrev_b32 v{vt}, 5, v{vlane}")
    a(f"v_lshl_add_u32 v{vso}, v{vt}, 4, v{vso}")
    a(f"s_lshl_b32 s{sT0}, s{sD}, 12")
    a(f"s_lshl_b32 s{sT1}, s{sHW}, 11")
    a(f"s_add_u32 s{sT0}, s{sT0}, s{sT1}")
    a(f"s_add_u32 s{sT0}, s{sT0}, {WS_ST}")
    R = AF[0][0]
    O = AF[1][0]
    lh1 = a.newlabel("SSM_H1"); lend = a.newlabel("SSM_RE")
    a(f"s_cmp_eq_u32 s{sHW}, 1")
    a(f"s_cbranch_scc1 {lh1}")
    for hw in range(2):
        if hw == 1: a.label(lh1)
        mine = range(4*hw, 4*hw + 4); other = range(4*(1-hw), 4*(1-hw) + 4)
        for i, c in enumerate(other):
            a(f"ds_write_b128 v{vrw}, v[{YA[c]}:{YA[c]+3}] offset:{1024*i}")
        a("s_waitcnt lgkmcnt(0)")
        a("s_barrier")
        for i in range(4):
            a(f"ds_read_b128 v[{R+4*i}:{R+4*i+3}], v{vrr} offset:{1024*i}")
        for i, c in enumerate(mine):
            a(f"s_waitcnt lgkmcnt({3-i})")
            for e in range(4): a(f"v_add_f32 v{R+4*i+e}, v{R+4*i+e}, v{YA[c]+e}")
            a(f"v_cvt_pk_bf16_f32 v{O+2*i}, v{R+4*i}, v{R+4*i+1}")
            a(f"v_cvt_pk_bf16_f32 v{O+2*i+1}, v{R+4*i+2}, v{R+4*i+3}")
        if hw == 0: a(f"s_branch {lend}")
    a.label(lend)
    for p in range(2):
        a(f"v_permlane16_swap_b32 v{O+4*p}, v{O+4*p+2}")
        a(f"v_permlane16_swap_b32 v{O+4*p+1}, v{O+4*p+3}")
    for p in range(2):
        a(f"buffer_store_dwordx4 v[{O+4*p}:{O+4*p+3}], v{vso}, s[{SWS}:{SWS+3}], s{sT0} offen offset:{1024*p} sc1")
    if "done" in hooks: hooks["done"](a, V, SWS)
    return V
```

```python
import sys
from common import *
import prep

def build_multi(parts):
    text = []; desc = []; launches = []
    if "prep" in parts:
        a = Asm()
        a("s_cmp_ge_u32 s2, 64")
        a("s_cbranch_scc1 PREP_EXIT")
        a("s_mov_b32 s3, s2")
        hi = prep.gen_prep(a, 3)
        a.label("PREP_EXIT")
        a("s_endpgm")
        text.append(kernel_text("prep_kernel", a.finish())); desc.append(kernel_desc("prep_kernel", 256))
        launches.append("; @launch kernel=prep_kernel grid=(64,1,1) block=(256,1,1) lds=81920")
    if "g1" in parts:
        import mlp
        a = Asm()
        a("s_cmp_ge_u32 s2, 224")
        a("s_cbranch_scc1 G1_EXIT")
        a("s_mov_b32 s3, s2")
        mlp.gen_g1(a, 3)
        a.label("G1_EXIT")
        a("s_endpgm")
        text.append(kernel_text("g1_kernel", a.finish())); desc.append(kernel_desc("g1_kernel", 256))
        launches.append("; @launch kernel=g1_kernel grid=(224,1,1) block=(256,1,1) lds=81920")
    if "ssm" in parts:
        import ssm
        a = Asm()
        a("s_cmp_ge_u32 s2, 224")
        a("s_cbranch_scc1 SSM_EXIT")
        a("s_mov_b32 s3, s2")
        ssm.gen_ssm(a, 3)
        a.label("SSM_EXIT")
        a("s_endpgm")
        text.append(kernel_text("ssm_kernel", a.finish())); desc.append(kernel_desc("ssm_kernel", 256))
        launches.append("; @launch kernel=ssm_kernel grid=(224,1,1) block=(256,1,1) lds=81920")
    if "g2" in parts:
        import mlp
        a = Asm()
        a("s_cmp_ge_u32 s2, 224")
        a("s_cbranch_scc1 G2_EXIT")
        a("s_mov_b32 s3, s2")
        import g2
        S = dict(X=4, W2=8, WS=12, OUT=24, B2=28, W=32, K=35, J7=36, JM=37, T0=45, T1=46, T2=47, T3=48, G2A=40, G2B=41, G2C=42, G2D=43, G2E=49, G2F=50, G2G=51)
        for nm, ka in (("X","x"),("W2","w2"),("WS","ws"),("OUT","out"),("B2","b2")):
            a(f"s_load_dwordx2 s[{S[nm]}:{S[nm]+1}], s[0:1], {KA[ka]}")
        mlp.mlp_ids(a, 3, 33, 34, 35, 36, 37)
        a("v_lshrrev_b32 v1, 6, v0")
        a("v_readfirstlane_b32 s32, v1")
        a("s_waitcnt lgkmcnt(0)")
        srd_fin(a, 4, X_BYTES); srd_fin(a, 8, W_BYTES); srd_fin(a, 12, WS_SIZE); srd_fin(a, 24, X_BYTES); srd_fin(a, 28, D*2)
        g2.gen_g2(a, S, standalone=True)
        a.label("G2_EXIT")
        a("s_endpgm")
        text.append(kernel_text("g2_kernel", a.finish())); desc.append(kernel_desc("g2_kernel", 256))
        launches.append("; @launch kernel=g2_kernel grid=(224,1,1) block=(256,1,1) lds=81920")
    out = HEADER + "\n".join(launches) + "\n" + '.amdgcn_target "amdgcn-amd-amdhsa--gfx950"\n.text\n' + "\n".join(text)
    out += '.section .rodata,"a"\n.p2align 6\n' + "\n".join(desc)
    return out

def build_fused():
    import prep2, ssm, mlp, g2
    a = Asm()
    ts = Stamps(a)
    a("s_cmp_ge_u32 s2, 512")
    a("s_cbranch_scc1 K_EXIT")
    ts.at(0)
    if PROF: a("s_memtime s[98:99]")
    MAP = int(os.environ.get("MAP", "1"))
    if MAP == 0:
        a("s_cmp_ge_u32 s2, 288")
        a("s_cbranch_scc1 K_MLP")
        a("s_cmp_ge_u32 s2, 64")
        a("s_cbranch_scc1 K_SSM")
        a("s_mov_b32 s3, s2")
    else:
        a("s_cmp_ge_u32 s2, 288")
        a("s_cbranch_scc1 K_SSM")
        a("s_sub_u32 s3, s2, 32")
        a("s_cmp_lt_u32 s3, 224")
        a("s_cbranch_scc1 K_MLP")
        a("s_sub_u32 s4, s2, 224")
        a("s_cmp_lt_u32 s2, 32")
        a("s_cselect_b32 s3, s2, s4")
    prep2.gen_prep2(a, 3, ts)
    a("s_endpgm")
    a.label("K_SSM")
    if os.environ.get("NOSSM"): a("s_endpgm")
    a("s_sub_u32 s3, s2, 64" if MAP == 0 else "s_sub_u32 s3, s2, 288")
    SPRIO = int(os.environ.get("SPRIO", "0"))
    if SPRIO: a(f"s_setprio {SPRIO}")
    SDBG = 44
    SPF = 56
    sPFO = 60
    PFW2 = int(os.environ.get("PFW2S", "0"))
    sW, sCH, sHW, sD = 32, 33, 34, 35
    sNONCE, sCNT, sX0 = 48, 49, 50
    def mid_kgen(a, V, vm, lg):
        a(f"v_and_b32 v248, 63, v0")
        a(f"v_lshlrev_b32 v248, 2, v248")
        vm.issue(f"buffer_load_dword v249, v248, s[{SDBG}:{SDBG+3}], 0 offen sc1", "D")
    PFSTART = int(os.environ.get("PFSTART", "1"))
    PFL = int(os.environ.get("PFL", "16"))
    def kpt(a, V, vm, lg, idx):
        if not PFW2: return
        nb = (112 + PFL - 1) // PFL
        if idx == PFSTART - 1 or (PFSTART == 0 and idx == 0):
            a(f"s_lshr_b32 s{sPFO}, s3, 3")
            a(f"s_lshl_b32 s{sPFO}, s{sPFO}, 2")
            a(f"s_add_u32 s{sPFO}, s{sPFO}, s{sW}")
            a(f"s_mul_i32 s{sPFO}, s{sPFO}, 14336")
            a(f"v_and_b32 v247, 63, v0")
            a(f"v_lshlrev_b32 v247, 7, v247")
        b = idx - PFSTART
        lo = b; hi = b + 1
        if idx == 7: hi = nb
        for bb in range(lo, hi):
            if 0 <= bb < nb:
                a(f"s_mov_b64 exec, 0x{(1 << PFL) - 1:x}" if PFL < 32 else f"s_mov_b64 exec, -1")
                vm.issue(f"buffer_load_dword v246, v247, s[{SPF}:{SPF+3}], s{sPFO} offen", "PF")
                a("s_mov_b64 exec, -1")
                a(f"s_add_u32 s{sPFO}, s{sPFO}, {PFL*128}")
    def wait_ln(a, V, vm, lg):
        ts.at(3)
        m = V.mark()
        vF = V.get(); vDd = 249; vo = 248
        lsk = a.newlabel("SPOLLX")
        a(f"s_cmp_lg_u32 s{sW}, 0")
        a(f"s_cbranch_scc1 {lsk}")
        a(f"s_lshr_b32 s{sX0}, s3, 5")
        a(f"s_mul_i32 s{sX0}, s{sX0}, {LN_RS}")
        a(f"s_lshr_b32 s{sX0+1}, s{sD}, 4")
        a(f"s_and_b32 s{sX0+1}, s{sX0+1}, 3")
        a(f"s_lshl_b32 s{sX0+1}, s{sX0+1}, 8")
        a(f"s_add_u32 s{sX0}, s{sX0}, s{sX0+1}")
        a(f"s_add_u32 s{sX0}, s{sX0}, {FL_LN}")
        lp = a.newlabel("SPOLL"); dn = a.newlabel("SPOLLD"); lnd = a.newlabel("SPOLLN")
        a(f"s_mov_b32 s{sCNT}, {POLL_MAX}")
        a.label(lp)
        a(f"buffer_load_dword v{vF}, v{vo}, s[20:23], s{sX0} offen sc1")
        a(f"s_sub_u32 s{sCNT}, s{sCNT}, 1")
        a(f"s_cbranch_scc1 {dn}")
        a("s_waitcnt vmcnt(0)")
        a(f"v_cmp_eq_u32 s[{sX0+2}:{sX0+3}], 0, v{vDd}")
        a(f"v_cmp_ne_u32 vcc, v{vF}, v{vDd}")
        a(f"s_cmp_eq_u64 s[{sX0+2}:{sX0+3}], 0")
        a(f"s_cbranch_scc1 {lnd}")
        a(f"buffer_load_dword v{vDd}, v{vo}, s[{SDBG}:{SDBG+3}], 0 offen sc1")
        a(f"s_sleep {POLL_SLEEP}")
        a(f"s_branch {lp}")
        a.label(lnd)
        a("s_cmp_eq_u64 vcc, 0")
        a(f"s_cbranch_scc1 {dn}")
        a(f"s_sleep {POLL_SLEEP}")
        a(f"s_branch {lp}")
        a.label(dn)
        a(f"s_branch {lsk}")
        a.label(lsk)
        a("s_waitcnt vmcnt(0)")
        a("s_barrier")
        vm.cleared()
        V.release(m)
        ts.at(4)
    def done(a, V, SWS):
        vz = V.get(); vn = V.get()
        a(f"v_mov_b32 v{vz}, 0")
        a(f"v_mov_b32 v{vn}, s{sNONCE}")
        a(f"s_lshr_b32 s{sX0}, s{sD}, 6")
        a(f"s_lshl_b32 s{sX0}, s{sX0}, 1")
        a(f"s_add_u32 s{sX0}, s{sX0}, s{sHW}")
        a(f"s_mul_i32 s{sX0}, s{sX0}, {S_RS}")
        a(f"s_and_b32 s{sX0+1}, s{sD}, 63")
        a(f"s_lshl_b32 s{sX0+1}, s{sX0+1}, 2")
        a(f"s_add_u32 s{sX0}, s{sX0}, s{sX0+1}")
        a(f"s_add_u32 s{sX0}, s{sX0}, {FL_S}")
        ts.at(7)
        a("s_waitcnt vmcnt(0)")
        ts.at(8)
        a("s_mov_b64 exec, 1")
        a(f"buffer_store_dword v{vn}, v{vz}, s[{SWS}:{SWS+3}], s{sX0} offen sc1")
        a("s_mov_b64 exec, -1")
        ts.flush(SWS, vz, vn)
    def get_nonce(a, V, vm, lg):
        lo = a.newlabel("SNON")
        a(f"v_readfirstlane_b32 s{sNONCE}, v249")
        a(f"s_cmp_lg_u32 s{sNONCE}, 0")
        a(f"s_cbranch_scc1 {lo}")
        a(f"buffer_load_dword v249, v248, s[{SDBG}:{SDBG+3}], 0 offen sc1")
        a("s_waitcnt vmcnt(0)")
        a(f"v_readfirstlane_b32 s{sNONCE}, v249")
        a.label(lo)
    def ssm_pre(a):
        a(f"s_load_dwordx2 s[{SDBG}:{SDBG+1}], s[0:1], {KA['dbg']}")
        if PFW2: a(f"s_load_dwordx2 s[{SPF}:{SPF+1}], s[0:1], {KA['w2']}")
    def ssm_post(a):
        srd_fin(a, SDBG, 256)
        if PFW2: srd_fin(a, SPF, W_BYTES)
    ssm.gen_ssm(a, 3, hooks=dict(wait_ln=wait_ln, done=done, pre=ssm_pre, post=ssm_post, mid_kgen=mid_kgen, nonce=get_nonce, kpt=kpt), ts=ts)
    a("s_endpgm")
    a.label("K_MLP")
    if MAP == 0: a("s_sub_u32 s3, s2, 288")
    V, vm = mlp.gen_g1(a, 3, fused=True, ts=ts)
    S = mlp.G2S
    sHO = 43
    def publish_h(a, V, vm, lg):
        m = V.mark()
        vz = V.get(); vn = V.get()
        a(f"v_mov_b32 v{vz}, 0")
        a(f"v_mov_b32 v{vn}, s{mlp.sNONCE}")
        a(f"s_lshl_b32 s{mlp.sT0}, s{mlp.sLB}, 1")
        a(f"s_add_u32 s{mlp.sT0}, s{mlp.sT0}, s{mlp.sWL}")
        a(f"s_mul_i32 s{mlp.sT0}, s{mlp.sT0}, {H_RS}")
        a(f"s_lshl_b32 s{mlp.sT1}, s{mlp.sFB}, 1")
        a(f"s_add_u32 s{mlp.sT1}, s{mlp.sT1}, s{mlp.sWF}")
        a(f"s_lshl_b32 s{mlp.sT1}, s{mlp.sT1}, 2")
        a(f"s_add_u32 s{mlp.sT0}, s{mlp.sT0}, s{mlp.sT1}")
        a(f"s_add_u32 s{mlp.sT0}, s{mlp.sT0}, {FL_H}")
        vm.wait("H")
        ts.at(5)
        a("s_mov_b64 exec, 1")
        vm.issue(f"buffer_store_dword v{vn}, v{vz}, s[{mlp.SWS}:{mlp.SWS+3}], s{mlp.sT0} offen sc1", "F")
        a("s_mov_b64 exec, -1")
        V.release(m)
    def poll_issue(a, vm, vo, vt):
        a(f"v_and_b32 v{vo}, 63, v0")
        a(f"v_lshlrev_b32 v{vo}, 2, v{vo}")
        a(f"s_mul_i32 s{sHO}, s{S['G2C']}, {H_RS}")
        a(f"s_mul_i32 s{mlp.sT1}, s{mlp.sW}, 28")
        a(f"s_add_u32 s{sHO}, s{sHO}, s{mlp.sT1}")
        a(f"s_add_u32 s{sHO}, s{sHO}, {FL_H}")
        a("s_mov_b64 exec, 0x7f")
        vm.issue(f"buffer_load_dword v{vt}, v{vo}, s[{mlp.SWS}:{mlp.SWS+3}], s{sHO} offen sc1", "P1")
        a("s_mov_b64 exec, -1")
    def poll_check(a, vm, vt, lB):
        vm.wait("P1")
        a("s_mov_b64 exec, 0x7f")
        a(f"v_cmp_ne_u32 vcc, s{mlp.sNONCE}, v{vt}")
        a("s_mov_b64 exec, -1")
        a("s_cmp_eq_u64 vcc, 0")
        a(f"s_cbranch_scc0 {lB}")
    def wait_h(a, V, vm, lg, vo, vt):
        poll_eq(a, 7, vo, mlp.SWS, sHO, vt, mlp.sNONCE, mlp.sCNT)
        vm.cleared()
    def s_flag_addr(a, vo):
        a(f"v_and_b32 v{vo}, 63, v0")
        a(f"v_lshlrev_b32 v{vo}, 2, v{vo}")
        a(f"s_lshl_b32 s{mlp.sT0}, s{mlp.sJm}, 1")
        a(f"s_lshr_b32 s{mlp.sT1}, s{S['G2C']}, 4")
        a(f"s_add_u32 s{mlp.sT0}, s{mlp.sT0}, s{mlp.sT1}")
        a(f"s_mul_i32 s{mlp.sT0}, s{mlp.sT0}, {S_RS}")
        a(f"s_lshl_b32 s{mlp.sT1}, s{mlp.sW}, 6")
        a(f"s_add_u32 s{mlp.sT0}, s{mlp.sT0}, s{mlp.sT1}")
        a(f"s_add_u32 s{mlp.sT0}, s{mlp.sT0}, {FL_S}")
    def wait_s(a, V, vm, lg):
        m = V.mark()
        vo = V.get(); vt = V.get()
        s_flag_addr(a, vo)
        poll_eq(a, 16, vo, mlp.SWS, mlp.sT0, vt, mlp.sNONCE, mlp.sCNT)
        vm.cleared()
        V.release(m)
    g2.gen_g2(a, S, hooks=dict(publish_h=publish_h, poll_issue=poll_issue, poll_check=poll_check, wait_h=wait_h, wait_s=wait_s), vm=vm, ts=ts)
    ts.at(13)
    ts.flush(mlp.SWS, 1, 2)
    a.label("K_EXIT")
    a("s_endpgm")
    out = HEADER + "; @launch grid=(512,1,1) block=(256,1,1) lds=81920\n" + '.amdgcn_target "amdgcn-amd-amdhsa--gfx950"\n.text\n'
    out += kernel_text(KN + "_kernel", a.finish())
    out += '.section .rodata,"a"\n.p2align 6\n' + kernel_desc(KN + "_kernel", 256, 102)
    return out

if __name__ == "__main__":
    mode = sys.argv[1]; outp = sys.argv[2]
    if mode == "fused": s = build_fused()
    if mode.startswith("multi:"):
        s = build_multi(mode[6:].split(","))
    open(outp, "w").write(s)
    print("wrote", outp, len(s))
```
